```python
import torch

def _softmax(x, axis=-1):
    return torch.softmax(x, dim=axis)
def _gelu(x):
    return torch.nn.functional.gelu(x, approximate="tanh")
def _silu(x):
    return torch.nn.functional.silu(x)
def _sigmoid(x):
    return torch.sigmoid(x)
def _layernorm(x, axis=-1, eps=1e-5):
    m = x.mean(dim=axis, keepdim=True)
    v = x.var(dim=axis, keepdim=True, unbiased=False)
    return (x - m) / torch.sqrt(v + eps)
def _scatter_add(tgt, idx, src, axis=0):
    return tgt.clone().index_add_(axis, idx, src)
def _segment_sum(src, seg, n):
    out = torch.zeros((n,) + src.shape[1:], dtype=src.dtype)
    return out.index_add_(0, seg, src)
def _pad(x, pw):
    flat = tuple(v for pair in reversed(pw) for v in pair)
    return torch.nn.functional.pad(x, flat)

kernel_name = 'parallel_sum__ssm_conv_h3__glu_gated_swiglu__prompt'

def setup_inputs():

    _w = (lambda a: (lambda t: t.to(torch.bfloat16) if t.is_floating_point() else t)(torch.as_tensor(a)))
    def _A_setup():
        B, S, D = 1, 2048, 576
        ks = 4
        return {
            "q": _w((lambda *s: torch.randn(*s, dtype=torch.bfloat16) * 0.05)(B, S, D)),
            "k": _w((lambda *s: torch.randn(*s, dtype=torch.bfloat16) * 0.2)(B, S, D)),
            "v": _w((lambda *s: torch.randn(*s, dtype=torch.bfloat16) * 0.2)(B, S, D)),
            "shift_k": _w((lambda *s: torch.randn(*s, dtype=torch.bfloat16) * 0.2)(D, ks) * 0.5),
            "ssm_k": _w((lambda *s: torch.randn(*s, dtype=torch.bfloat16) * 0.4)(D, S) * (1.0 / S ** 0.5)),
            "ssm_D": _w((lambda *s: torch.randn(*s, dtype=torch.bfloat16) * 0.2)(D)),
        }
    _A_in = _A_setup()

    def _B_setup():
        B, S, D, F = 1, 2048, 576, 4608
        return {
            "x": _w((lambda *s: torch.randn(*s, dtype=torch.bfloat16) * 0.05)(B, S, D)),
            "w1": _w((lambda *s: torch.randn(*s, dtype=torch.bfloat16) * 0.2)(D, F) * (2.0 / D) ** 0.5),
            "w3": _w((lambda *s: torch.randn(*s, dtype=torch.bfloat16) * 0.2)(D, F) * (2.0 / D) ** 0.5),
            "w2": _w((lambda *s: torch.randn(*s, dtype=torch.bfloat16) * 0.2)(F, D) * (2.0 / F) ** 0.5),
        }
    _B_in = _B_setup()

    return {
        "A_q": _A_in["q"],
        "A_k": _A_in["k"],
        "A_v": _A_in["v"],
        "A_shift_k": _A_in["shift_k"],
        "A_ssm_k": _A_in["ssm_k"],
        "A_ssm_D": _A_in["ssm_D"],
        "B_x": _B_in["x"],
        "B_w1": _B_in["w1"],
        "B_w3": _B_in["w3"],
        "B_w2": _B_in["w2"],
    }

def reference(A_q, A_k, A_v, A_shift_k, A_ssm_k, A_ssm_D, B_x, B_w1, B_w3, B_w2):
    def _A_ref(q, k, v, shift_k, ssm_k, ssm_D):
        B, S, D = q.shape
        ks = shift_k.shape[-1]
        k_pad = _pad(k, ((0, 0), (ks - 1, 0), (0, 0)))
        k_shift = torch.zeros_like(k)
        for t in range(ks):
            k_shift = k_shift + k_pad[:, t:t + S, :] * shift_k[:, ks - 1 - t][None, None, :]
        kv = k_shift * v
        L = 2 * S
        kv_pad = _pad(kv, ((0, 0), (0, S), (0, 0)))
        kf_pad = _pad(ssm_k, ((0, 0), (0, S)))
        kv_f = (lambda x, axes=(-2,-1): torch.fft.rfft2(x.float(), dim=axes))(kv_pad[:, None, :, :], axes=(1, 2))
        kf_f = (lambda x, axes=(-2,-1): torch.fft.rfft2(x.float(), dim=axes))(kf_pad[:, None, :], axes=(1, 2))
        kf_f = (lambda x, *d: x.permute(*d))(kf_f, 1, 2, 0)
        y_f = kv_f * kf_f[None, :, :, :]
        y = (lambda x, s, axes=(-2,-1): torch.fft.irfft2(x, s=s, dim=axes).to(torch.bfloat16))(y_f, (1, L), axes=(1, 2))[:, 0, :S, :]
        y = y + kv * ssm_D[None, None, :]
        return q * y

    def _B_ref(x, w1, w3, w2):
        gate = torch.einsum("bsd,df->bsf", x, w1)
        up = torch.einsum("bsd,df->bsf", x, w3)
        h = _silu(gate) * up
        out = torch.einsum("bsf,fd->bsd", h, w2)
        return out

    x = A_q
    xn = _layernorm(x, axis=-1)
    return x + _A_ref(xn, A_k, A_v, A_shift_k, A_ssm_k, A_ssm_D) + _B_ref(xn, B_w1, B_w3, B_w2)
```

```python
import sys

S, D, F = 2048, 576, 4608
WS_XN, WS_KVT, WS_Y2T, WS_H, WS_P = 0x0, 0x400000, 0x800000, 0x1000000, 0x3000000
SZ_SD = S * D * 2
SZ_W = D * F * 2
SZ_H = S * F * 2
SZ_P = 4 * S * D * 4

class Asm:
    def __init__(self):
        self.l = []
        self.vm = []
        self.lg = []
    def __call__(self, s):
        self.l.append("    " + s)
    def label(self, s):
        self.l.append(s + ":")
    def c(self, s):
        self.l.append("    ; " + s)
    def vmem(self, s, tag):
        self(s); self.vm.append(tag)
    def lds(self, s, tag):
        self(s); self.lg.append(tag)
    def wait_vm(self, tag):
        if tag not in self.vm: return
        idx = max(i for i, t in enumerate(self.vm) if t == tag)
        n = len(self.vm) - 1 - idx
        assert n <= 63
        self(f"s_waitcnt vmcnt({n})")
        self.vm = self.vm[idx + 1:]
    def wait_lg(self, tag):
        if tag not in self.lg: return
        idx = max(i for i, t in enumerate(self.lg) if t == tag)
        n = len(self.lg) - 1 - idx
        assert n <= 15, n
        self(f"s_waitcnt lgkmcnt({n})")
        self.lg = self.lg[idx + 1:]
    def wait_all(self):
        self("s_waitcnt vmcnt(0) lgkmcnt(0)")
        self.vm = []; self.lg = []
    def srd(self, d, base, size, off=0):
        if off:
            self(f"s_add_u32 s{d}, s{base}, {off}")
            self(f"s_addc_u32 s{d+1}, s{base+1}, 0")
        else:
            self(f"s_mov_b32 s{d}, s{base}")
            self(f"s_mov_b32 s{d+1}, s{base+1}")
        self(f"s_mov_b32 s{d+2}, {size}")
        self(f"s_mov_b32 s{d+3}, 0x00020000")
    def kernel_begin(self, name):
        self.l.append(f".globl {name}")
        self.l.append(".p2align 8")
        self.l.append(f".type {name},@function")
        self.label(name)
        self.vm = []; self.lg = []

def vr(b, n=1):
    return f"v{b}" if n == 1 else f"v[{b}:{b+n-1}]"

def desc(name, vgpr, sgpr=64):
    acc = (vgpr + 3) // 4 * 4
    return f""".amdhsa_kernel {name}
  .amdhsa_next_free_vgpr {vgpr}
  .amdhsa_next_free_sgpr {sgpr}
  .amdhsa_accum_offset {acc}
  .amdhsa_group_segment_fixed_size 0
  .amdhsa_kernarg_size 104
  .amdhsa_user_sgpr_count 2
  .amdhsa_user_sgpr_kernarg_segment_ptr 1
  .amdhsa_system_sgpr_workgroup_id_x 1
  .amdhsa_float_denorm_mode_32 3
.end_amdhsa_kernel
"""

def unpack_lo(a, d, s): a(f"v_lshlrev_b32 v{d}, 16, v{s}")
def unpack_hi(a, d, s): a(f"v_and_b32 v{d}, 0xffff0000, v{s}")

def gen_prep(a):
    a.kernel_begin("prep_kernel")
    a("s_cmp_ge_u32 s2, 352")
    a("s_cbranch_scc1 L_prep_end")
    a("s_load_dwordx2 s[4:5], s[0:1], 0")
    a("s_load_dwordx4 s[8:11], s[0:1], 8")
    a("s_load_dwordx2 s[12:13], s[0:1], 24")
    a("s_load_dwordx2 s[14:15], s[0:1], 96")
    a("s_waitcnt lgkmcnt(0)")
    a("s_cmp_ge_u32 s2, 64")
    a("s_cbranch_scc1 L_prep_kv")
    a.srd(16, 4, SZ_SD)
    a.srd(20, 14, SZ_SD, WS_XN)
    a("s_lshl_b32 s3, s2, 5")
    a("v_lshrrev_b32 v1, 3, v0")
    a("v_add_u32 v1, s3, v1")
    a("v_mul_u32_u24 v1, 1152, v1")
    a("v_and_b32 v2, 7, v0")
    a("v_lshlrev_b32 v2, 4, v2")
    a("v_add_u32 v1, v1, v2")
    for i in range(9):
        a(f"buffer_load_dwordx4 v[{8+4*i}:{11+4*i}], v1, s[16:19], 0 offen offset:{128*i}")
    a("s_waitcnt vmcnt(0)")
    X = 48
    for i in range(36):
        unpack_lo(a, X + 2*i, 8 + i)
        unpack_hi(a, X + 2*i + 1, 8 + i)
    a(f"v_add_f32 v2, v{X}, v{X+1}")
    a(f"v_add_f32 v3, v{X+2}, v{X+3}")
    for i in range(4, 72, 2):
        a(f"v_add_f32 v2, v2, v{X+i}")
        a(f"v_add_f32 v3, v3, v{X+i+1}")
    a("v_add_f32 v2, v2, v3")
    def red8(r, t):
        a("s_nop 1")
        a(f"v_add_f32_dpp v{t}, v{r}, v{r} quad_perm:[1,0,3,2] row_mask:0xf bank_mask:0xf")
        a("s_nop 1")
        a(f"v_add_f32_dpp v{r}, v{t}, v{t} quad_perm:[2,3,0,1] row_mask:0xf bank_mask:0xf")
        a("s_nop 1")
        a(f"v_add_f32_dpp v{t}, v{r}, v{r} row_half_mirror row_mask:0xf bank_mask:0xf")
        a(f"v_mov_b32 v{r}, v{t}")
    red8(2, 3)
    a("s_mov_b32 s24, 0x3ae38e39")
    a("v_mul_f32 v2, s24, v2")
    a("v_mov_b32 v4, 0")
    a("v_mov_b32 v5, 0")
    for i in range(0, 72, 2):
        a(f"v_sub_f32 v6, v{X+i}, v2")
        a(f"v_sub_f32 v7, v{X+i+1}, v2")
        a("v_fmac_f32 v4, v6, v6")
        a("v_fmac_f32 v5, v7, v7")
    a("v_add_f32 v4, v4, v5")
    red8(4, 5)
    a("v_mul_f32 v4, s24, v4")
    a("v_cvt_pk_bf16_f32 v5, v2, v4")
    unpack_lo(a, 2, 5)
    unpack_hi(a, 4, 5)
    a("v_add_f32 v4, 0x3727c5ac, v4")
    a("v_cvt_pk_bf16_f32 v4, v4, v4")
    unpack_hi(a, 4, 4)
    a("v_sqrt_f32 v4, v4")
    a("s_nop 0")
    a("v_cvt_pk_bf16_f32 v4, v4, v4")
    unpack_hi(a, 4, 4)
    a("v_rcp_f32 v5, v4")
    a("s_nop 0")
    for i in range(36):
        x0, x1 = X + 2*i, X + 2*i + 1
        a(f"v_sub_f32 v{x0}, v{x0}, v2")
        a(f"v_sub_f32 v{x1}, v{x1}, v2")
        a(f"v_cvt_pk_bf16_f32 v6, v{x0}, v{x1}")
        unpack_lo(a, x0, 6)
        unpack_hi(a, x1, 6)
        a(f"v_mul_f32 v6, v{x0}, v5")
        a(f"v_mul_f32 v7, v{x1}, v5")
        a(f"v_fma_f32 v{x0}, -v6, v4, v{x0}")
        a(f"v_fma_f32 v{x1}, -v7, v4, v{x1}")
        a(f"v_fma_f32 v6, v{x0}, v5, v6")
        a(f"v_fma_f32 v7, v{x1}, v5, v7")
        a(f"v_cvt_pk_bf16_f32 v{8+i}, v6, v7")
    for i in range(9):
        a(f"buffer_store_dwordx4 v[{8+4*i}:{11+4*i}], v1, s[20:23], 0 offen offset:{128*i}")
    a("s_endpgm")
    a.label("L_prep_kv")
    a.srd(16, 8, SZ_SD)
    a.srd(20, 10, SZ_SD)
    a.srd(24, 12, D * 8)
    a.srd(28, 14, SZ_SD, WS_KVT)
    a("s_sub_u32 s3, s2, 64")
    a("s_and_b32 s32, s3, 31")
    a("s_lshr_b32 s33, s3, 5")
    a("v_lshrrev_b32 v1, 3, v0")
    a("v_and_b32 v2, 7, v0")
    a("s_lshl_b32 s34, s32, 6")
    a("v_lshlrev_b32 v3, 1, v1")
    a("v_add_u32 v3, s34, v3")
    a("s_lshl_b32 s35, s33, 7")
    a("v_lshlrev_b32 v4, 4, v2")
    a("v_add_u32 v4, s35, v4")
    a("v_mul_u32_u24 v5, 1152, v3")
    a("v_add_u32 v5, v5, v4")
    for r in range(5):
        a(f"v_add_u32 v{6+r}, {(r-3)*1152 & 0xffffffff}, v5")
    for r in range(5):
        a(f"buffer_load_dwordx4 v[{12+4*r}:{15+4*r}], v{6+r}, s[16:19], 0 offen")
    a("buffer_load_dwordx4 v[32:35], v5, s[20:23], 0 offen")
    a("buffer_load_dwordx4 v[36:39], v5, s[20:23], 0 offen offset:1152")
    a("v_lshlrev_b32 v11, 2, v4")
    for i in range(4):
        a(f"buffer_load_dwordx4 v[{40+4*i}:{43+4*i}], v11, s[24:27], 0 offen offset:{16*i}")
    a("v_mul_u32_u24 v56, 1088, v2")
    a("v_sub_u32 v57, 31, v1")
    a("v_lshlrev_b32 v57, 2, v57")
    a("v_add_u32 v56, v56, v57")
    a("s_waitcnt vmcnt(0)")
    for c in range(8):
        w, hi = c >> 1, c & 1
        up = unpack_hi if hi else unpack_lo
        for r in range(5):
            up(a, 60 + r, 12 + 4*r + w)
        up(a, 65, 32 + w); up(a, 66, 36 + w)
        unpack_lo(a, 67, 40 + 2*c); unpack_hi(a, 68, 40 + 2*c)
        unpack_lo(a, 69, 41 + 2*c); unpack_hi(a, 70, 41 + 2*c)
        for step, j in enumerate([3, 2, 1, 0]):
            kk0 = 60 + (3 - j); kk1 = kk0 + 1
            a(f"v_mul_f32 v71, v{kk0}, v{67+j}")
            a(f"v_mul_f32 v72, v{kk1}, v{67+j}")
            a("v_cvt_pk_bf16_f32 v73, v71, v72")
            if step == 0:
                unpack_lo(a, 74, 73); unpack_hi(a, 75, 73)
            else:
                unpack_lo(a, 71, 73); unpack_hi(a, 72, 73)
                a("v_add_f32 v74, v74, v71")
                a("v_add_f32 v75, v75, v72")
                a("v_cvt_pk_bf16_f32 v73, v74, v75")
                unpack_lo(a, 74, 73); unpack_hi(a, 75, 73)
        a("v_mul_f32 v74, v74, v65")
        a("v_mul_f32 v75, v75, v66")
        a("v_cvt_pk_bf16_f32 v73, v75, v74")
        a(f"ds_write_b32 v56, v73 offset:{136*c}")
    a("s_waitcnt lgkmcnt(0)")
    a("s_barrier")
    a("v_lshrrev_b32 v1, 2, v0")
    a("v_and_b32 v2, 3, v0")
    a("v_mul_u32_u24 v3, 136, v1")
    a("v_lshlrev_b32 v4, 5, v2")
    a("v_add_u32 v3, v3, v4")
    for m in range(4):
        a(f"ds_read_b64 v[{8+2*m}:{9+2*m}], v3 offset:{8*m}")
    a("s_lshl_b32 s36, s33, 18")
    a("s_lshl_b32 s37, s32, 7")
    a("s_sub_u32 s36, s36, s37")
    a("s_add_u32 s36, s36, 3968")
    a("v_lshlrev_b32 v5, 12, v1")
    a("v_add_u32 v5, v5, v4")
    a("v_add_u32 v5, s36, v5")
    a("s_waitcnt lgkmcnt(0)")
    a("buffer_store_dwordx4 v[8:11], v5, s[28:31], 0 offen")
    a("buffer_store_dwordx4 v[12:15], v5, s[28:31], 0 offen offset:16")
    a.label("L_prep_end")
    a("s_endpgm")
    return desc("prep_kernel", 128)

STAGE = 36864
NST = 4
PD = 5

def gemm_setup_dma(a, row_bytes, vD, sW, sH, half_is_rows):
    a("s_and_b32 s41, s40, 3")
    a("s_lshr_b32 s42, s40, 2")
    a("s_mul_i32 s43, s42, 18432")
    a("s_lshl_b32 s44, s41, 12")
    a(f"s_add_u32 s{sW}, s43, s44")
    a("s_lshl_b32 s44, s41, 9")
    a("s_add_u32 s44, s44, 16384")
    a(f"s_add_u32 s{sH}, s43, s44")
    a("s_movk_i32 s45, 3641")
    for i in range(5):
        if i < 4:
            a("s_lshl_b32 s44, s41, 8")
            a(f"s_add_u32 s44, s44, {64*i}")
        else:
            a("s_lshl_b32 s44, s41, 5")
            a("s_add_u32 s44, s44, 1024")
        a("v_add_u32 v17, s44, v1")
        a("v_mul_lo_u32 v18, v17, s45")
        a("v_lshrrev_b32 v18, 16, v18")
        a("v_mul_u32_u24 v19, 18, v18")
        a("v_sub_u32 v19, v17, v19")
        a("v_lshrrev_b32 v17, 4, v18")
        a("v_and_b32 v17, 1, v17")
        a("v_lshlrev_b32 v17, 2, v17")
        a("v_xor_b32 v18, v18, v17")
        a(f"v_mul_u32_u24 v18, {row_bytes}, v18")
        a("v_lshlrev_b32 v19, 4, v19")
        a(f"v_add_u32 v{vD+i}, v18, v19")

def gemm_setup_tr(a, vB):
    a("v_lshrrev_b32 v17, 4, v1")
    a("v_lshrrev_b32 v18, 2, v1")
    a("v_and_b32 v18, 3, v18")
    a("v_and_b32 v19, 1, v17")
    a("v_lshlrev_b32 v17, 4, v17")
    a("v_add_u32 v17, v17, v18")
    a("v_lshlrev_b32 v19, 2, v19")
    a("v_add_u32 v18, v17, v19")
    a("v_xor_b32 v19, 4, v19")
    a("v_add_u32 v19, v17, v19")
    a("v_mul_u32_u24 v18, 288, v18")
    a("v_mul_u32_u24 v19, 288, v19")
    a("v_and_b32 v17, 3, v1")
    a("v_lshlrev_b32 v17, 3, v17")
    a(f"v_add_u32 v{vB}, v18, v17")
    a(f"v_add_u32 v{vB+1}, v19, v17")
    for st in range(1, NST):
        a(f"v_add_u32 v{vB+2*st}, {st*STAGE}, v{vB}")
        a(f"v_add_u32 v{vB+2*st+1}, {st*STAGE}, v{vB+1}")

def gemm_dma(a, j, vD, sW, sH, srdW, kstep_bytes):
    st = j % NST
    a(f"s_mov_b32 s46, {j*kstep_bytes}")
    for i in range(4):
        a(f"s_add_u32 m0, s{sW}, {st*STAGE + 1024*i}")
        a("s_nop 0")
        a.vmem(f"buffer_load_dwordx4 v{vD+i}, s[{srdW}:{srdW+3}], s46 offen lds", f"D{j}")
    a(f"s_add_u32 m0, s{sH}, {st*STAGE}")
    a("s_mov_b32 exec_hi, 0")
    a.vmem(f"buffer_load_dwordx4 v{vD+4}, s[{srdW}:{srdW+3}], s46 offen lds", f"D{j}")
    a("s_mov_b32 exec_hi, -1")

def gen_gemm1(a):
    a.kernel_begin("gemm1_kernel")
    a("s_cmp_ge_u32 s2, 256")
    a("s_cbranch_scc1 L_g1_end")
    a("s_load_dwordx4 s[4:7], s[0:1], 56")
    a("s_load_dwordx2 s[8:9], s[0:1], 96")
    a("v_and_b32 v1, 63, v0")
    a("v_lshrrev_b32 v2, 6, v0")
    a("s_nop 0")
    a("v_readfirstlane_b32 s40, v2")
    a("s_and_b32 s30, s2, 7")
    a("s_lshr_b32 s31, s2, 3")
    a("s_lshl_b32 s30, s30, 2")
    a("s_and_b32 s32, s31, 3")
    a("s_add_u32 s30, s30, s32")
    a("s_lshr_b32 s31, s31, 2")
    a("s_mul_i32 s33, s30, 288")
    a("s_waitcnt lgkmcnt(0)")
    a("s_cmp_ge_u32 s40, 4")
    a("s_cselect_b32 s10, s6, s4")
    a("s_cselect_b32 s11, s7, s5")
    a("s_add_u32 s12, s10, s33")
    a("s_addc_u32 s13, s11, 0")
    a(f"s_sub_u32 s14, {SZ_W}, s33")
    a("s_mov_b32 s15, 0x00020000")
    a.srd(16, 8, SZ_SD, WS_XN)
    a.srd(20, 8, SZ_H, WS_H)
    vD, vA, vB = 2, 7, 9
    AB, WB, ACC = 20, 52, 80
    gemm_setup_dma(a, 9216, vD, 34, 35, False)
    gemm_setup_tr(a, vB)
    a("s_lshl_b32 s36, s31, 8")
    a("s_lshl_b32 s37, s40, 5")
    a("s_add_u32 s36, s36, s37")
    a("v_and_b32 v17, 15, v1")
    a("v_add_u32 v17, s36, v17")
    a("v_lshrrev_b32 v18, 4, v1")
    a("v_mul_u32_u24 v19, 1152, v17")
    a("v_lshlrev_b32 v18, 5, v18")
    a(f"v_add_u32 v{vA}, v19, v18")
    a(f"v_add_u32 v{vA+1}, {16*1152}, v{vA}")
    def a_loads(j):
        b = AB + 16 * (j & 1)
        for t in range(2):
            for kh in range(2):
                r = b + 8*t + 4*kh
                a.vmem(f"buffer_load_dwordx4 v[{r}:{r+3}], v{vA+t}, s[16:19], 0 offen offset:{128*j+16*kh}", f"A{j}")
    KB = 64 * 9216
    gemm_dma(a, 0, vD, 34, 35, 12, KB)
    a_loads(0)
    gemm_dma(a, 1, vD, 34, 35, 12, KB)
    gemm_dma(a, 2, vD, 34, 35, 12, KB)
    for i in range(144):
        a(f"v_mov_b32 v{ACC+i}, 0")
    NU = 36
    units = [(j, kh, mat, c) for j in range(9) for kh in range(2) for mat in range(2) for c in range(9)]
    def w_reads(U):
        j, kh, mat, c = units[U]
        st = j % NST
        r = WB + 4 * (U % (PD + 1))
        off = mat*18432 + 8*kh*288 + c*32
        a.lds(f"ds_read_b64_tr_b16 v[{r}:{r+1}], v{vB+2*st} offset:{off}", f"W{U}")
        a.lds(f"ds_read_b64_tr_b16 v[{r+2}:{r+3}], v{vB+2*st+1} offset:{off}", f"W{U}")
    a.wait_vm("A0")
    a("s_barrier")
    for U in range(PD):
        w_reads(U)
    for U, (j, kh, mat, c) in enumerate(units):
        u = U % NU
        if u == 0:
            if j > 0:
                a.wait_vm(f"A{j}")
            if j + 1 <= 8:
                a_loads(j + 1)
        if u == NU - PD and j < 8:
            a.wait_vm(f"D{j+1}")
            a("s_barrier")
            if j + 3 <= 8:
                gemm_dma(a, j + 3, vD, 34, 35, 12, KB)
        if U + PD < len(units):
            w_reads(U + PD)
        a.wait_lg(f"W{U}")
        r = WB + 4 * (U % (PD + 1))
        for t in range(2):
            ac = ACC + 4 * (t*18 + mat*9 + c)
            ar = AB + 16*(j & 1) + 8*t + 4*kh
            a(f"v_mfma_f32_16x16x32_bf16 v[{ac}:{ac+3}], v[{r}:{r+3}], v[{ar}:{ar+3}], v[{ac}:{ac+3}]")
    a("v_and_b32 v17, 15, v1")
    a("v_add_u32 v17, s36, v17")
    a("v_lshrrev_b32 v18, 4, v1")
    a("v_mul_u32_u24 v19, 9216, v17")
    a("v_lshlrev_b32 v18, 3, v18")
    a("v_add_u32 v19, v19, v18")
    a("v_add_u32 v2, s33, v19")
    a(f"v_add_u32 v3, {16*9216}, v2")
    a("s_mov_b32 s47, 0xbfb8aa3b")
    a("s_nop 4")
    T = 20
    for t in range(2):
        for c in range(9):
            g = ACC + 4*(t*18 + c); u_ = ACC + 4*(t*18 + 9 + c)
            T = 20 + 16 * ((t*9 + c) & 1)
            a(f"v_cvt_pk_bf16_f32 v{T}, v{g}, v{g+1}")
            a(f"v_cvt_pk_bf16_f32 v{T+1}, v{g+2}, v{g+3}")
            a(f"v_cvt_pk_bf16_f32 v{T+2}, v{u_}, v{u_+1}")
            a(f"v_cvt_pk_bf16_f32 v{T+3}, v{u_+2}, v{u_+3}")
            unpack_lo(a, g, T); unpack_hi(a, g+1, T); unpack_lo(a, g+2, T+1); unpack_hi(a, g+3, T+1)
            unpack_lo(a, u_, T+2); unpack_hi(a, u_+1, T+2); unpack_lo(a, u_+2, T+3); unpack_hi(a, u_+3, T+3)
            for i in range(4):
                a(f"v_mul_f32 v{T+4+i}, s47, v{g+i}")
            for i in range(4):
                a(f"v_exp_f32 v{T+4+i}, v{T+4+i}")
            for i in range(4):
                a(f"v_add_f32 v{T+4+i}, 1.0, v{T+4+i}")
            for i in range(4):
                a(f"v_rcp_f32 v{T+4+i}, v{T+4+i}")
            for i in range(4):
                a(f"v_mul_f32 v{T+4+i}, v{g+i}, v{T+4+i}")
            a(f"v_cvt_pk_bf16_f32 v{T}, v{T+4}, v{T+5}")
            a(f"v_cvt_pk_bf16_f32 v{T+1}, v{T+6}, v{T+7}")
            unpack_lo(a, T+4, T); unpack_hi(a, T+5, T); unpack_lo(a, T+6, T+1); unpack_hi(a, T+7, T+1)
            for i in range(4):
                a(f"v_mul_f32 v{T+4+i}, v{T+4+i}, v{u_+i}")
            a(f"v_cvt_pk_bf16_f32 v{T+8}, v{T+4}, v{T+5}")
            a(f"v_cvt_pk_bf16_f32 v{T+9}, v{T+6}, v{T+7}")
            a(f"buffer_store_dwordx2 v[{T+8}:{T+9}], v{2+t}, s[20:23], 0 offen offset:{32*c}")
    a.label("L_g1_end")
    a("s_endpgm")
    return desc("gemm1_kernel", 224)

def gen_gemm2(a):
    a.kernel_begin("gemm2_kernel")
    a("s_cmp_ge_u32 s2, 256")
    a("s_cbranch_scc1 L_g2_end")
    a("s_load_dwordx2 s[4:5], s[0:1], 72")
    a("s_load_dwordx2 s[8:9], s[0:1], 96")
    a("v_and_b32 v1, 63, v0")
    a("v_lshrrev_b32 v2, 6, v0")
    a("s_nop 0")
    a("v_readfirstlane_b32 s40, v2")
    a("s_and_b32 s30, s2, 7")
    a("s_lshr_b32 s31, s2, 3")
    a("s_lshr_b32 s29, s30, 1")
    a("s_and_b32 s30, s30, 1")
    a("s_lshl_b32 s30, s30, 3")
    a("s_lshr_b32 s32, s31, 2")
    a("s_add_u32 s32, s32, s30")
    a("s_and_b32 s31, s31, 3")
    a("s_lshr_b32 s42, s40, 2")
    a("s_mul_i32 s33, s29, 1152")
    a("s_lshl_b32 s34, s42, 6")
    a("s_add_u32 s33, s33, s34")
    a("s_mul_i32 s34, s33, 1152")
    a("s_mul_i32 s35, s31, 288")
    a("s_add_u32 s34, s34, s35")
    a("s_waitcnt lgkmcnt(0)")
    a("s_add_u32 s12, s4, s34")
    a("s_addc_u32 s13, s5, 0")
    a(f"s_sub_u32 s14, {SZ_W}, s34")
    a("s_mov_b32 s15, 0x00020000")
    a.srd(16, 8, SZ_H, WS_H)
    a.srd(20, 8, SZ_P, WS_P)
    vD, vA, vB = 2, 7, 9
    AB, WB, ACC = 20, 52, 80
    gemm_setup_dma(a, 1152, vD, 36, 37, True)
    gemm_setup_tr(a, vB)
    a("s_mul_i32 s43, s42, 18432")
    for i in range(2*NST):
        a(f"v_add_u32 v{vB+i}, s43, v{vB+i}")
    a("s_lshl_b32 s38, s32, 7")
    a("s_and_b32 s39, s40, 3")
    a("s_lshl_b32 s39, s39, 5")
    a("s_add_u32 s38, s38, s39")
    a("v_and_b32 v17, 15, v1")
    a("v_add_u32 v17, s38, v17")
    a("v_lshrrev_b32 v18, 4, v1")
    a("v_mul_u32_u24 v19, 9216, v17")
    a("v_lshlrev_b32 v18, 5, v18")
    a("v_add_u32 v19, v19, v18")
    a("s_lshl_b32 s39, s33, 1")
    a(f"v_add_u32 v{vA}, s39, v19")
    a(f"v_add_u32 v{vA+1}, {16*9216}, v{vA}")
    def a_loads(j):
        b = AB + 16 * (j & 1)
        for t in range(2):
            for kh in range(2):
                r = b + 8*t + 4*kh
                a.vmem(f"buffer_load_dwordx4 v[{r}:{r+3}], v{vA+t}, s[16:19], 0 offen offset:{256*j+16*kh}", f"A{j}")
    KB = 128 * 1152
    gemm_dma(a, 0, vD, 36, 37, 12, KB)
    a_loads(0)
    gemm_dma(a, 1, vD, 36, 37, 12, KB)
    gemm_dma(a, 2, vD, 36, 37, 12, KB)
    for i in range(72):
        a(f"v_mov_b32 v{ACC+i}, 0")
    NU = 18
    units = [(j, kh, c) for j in range(9) for kh in range(2) for c in range(9)]
    def w_reads(U):
        j, kh, c = units[U]
        st = j % NST
        r = WB + 4 * (U % (PD + 1))
        off = 8*kh*288 + c*32
        a.lds(f"ds_read_b64_tr_b16 v[{r}:{r+1}], v{vB+2*st} offset:{off}", f"W{U}")
        a.lds(f"ds_read_b64_tr_b16 v[{r+2}:{r+3}], v{vB+2*st+1} offset:{off}", f"W{U}")
    a.wait_vm("A0")
    a("s_barrier")
    for U in range(PD):
        w_reads(U)
    for U, (j, kh, c) in enumerate(units):
        u = U % NU
        if u == 0:
            if j > 0:
                a.wait_vm(f"A{j}")
            if j + 1 <= 8:
                a_loads(j + 1)
        if u == NU - PD and j < 8:
            a.wait_vm(f"D{j+1}")
            a("s_barrier")
            if j + 3 <= 8:
                gemm_dma(a, j + 3, vD, 36, 37, 12, KB)
        if U + PD < len(units):
            w_reads(U + PD)
        a.wait_lg(f"W{U}")
        r = WB + 4 * (U % (PD + 1))
        for t in range(2):
            ac = ACC + 4 * (t*9 + c)
            ar = AB + 16*(j & 1) + 8*t + 4*kh
            a(f"v_mfma_f32_16x16x32_bf16 v[{ac}:{ac+3}], v[{r}:{r+3}], v[{ar}:{ar+3}], v[{ac}:{ac+3}]")
    a("s_barrier")
    a("s_and_b32 s39, s40, 3")
    a("s_mul_i32 s39, s39, 18432")
    a("v_lshlrev_b32 v17, 4, v1")
    a("v_add_u32 v17, s39, v17")
    a("s_nop 4")
    a("s_cmp_lt_u32 s40, 4")
    a("s_cbranch_scc1 L_g2_lo")
    for i in range(18):
        a(f"ds_write_b128 v17, v[{ACC+4*i}:{ACC+4*i+3}] offset:{1024*i}")
    a("s_waitcnt lgkmcnt(0)")
    a("s_barrier")
    a("s_endpgm")
    a.label("L_g2_lo")
    a("s_barrier")
    a("v_and_b32 v18, 15, v1")
    a("v_add_u32 v18, s38, v18")
    a("v_mul_u32_u24 v18, 2304, v18")
    a("v_lshrrev_b32 v19, 4, v1")
    a("v_lshlrev_b32 v19, 4, v19")
    a("v_add_u32 v18, v18, v19")
    a(f"s_mul_i32 s43, s29, {S*D*4}")
    a("s_mul_i32 s44, s31, 576")
    a("s_add_u32 s43, s43, s44")
    a("v_add_u32 v2, s43, v18")
    a(f"v_add_u32 v3, {16*2304}, v2")
    for i in range(18):
        r = 20 + 4*(i % 8)
        a.lds(f"ds_read_b128 v[{r}:{r+3}], v17 offset:{1024*i}", f"R{i}")
        if i >= 7:
            k = i - 7
            rk = 20 + 4*(k % 8)
            a.wait_lg(f"R{k}")
            for e in range(4):
                a(f"v_add_f32 v{ACC+4*k+e}, v{ACC+4*k+e}, v{rk+e}")
            a(f"buffer_store_dwordx4 v[{ACC+4*k}:{ACC+4*k+3}], v{2+k//9}, s[20:23], 0 offen offset:{64*(k%9)}")
    for k in range(11, 18):
        rk = 20 + 4*(k % 8)
        a.wait_lg(f"R{k}")
        for e in range(4):
            a(f"v_add_f32 v{ACC+4*k+e}, v{ACC+4*k+e}, v{rk+e}")
        a(f"buffer_store_dwordx4 v[{ACC+4*k}:{ACC+4*k+3}], v{2+k//9}, s[20:23], 0 offen offset:{64*(k%9)}")
    a.label("L_g2_end")
    a("s_endpgm")
    return desc("gemm2_kernel", 152)

def gen_conv(a):
    a.kernel_begin("conv_kernel")
    a("s_cmp_ge_u32 s2, 144")
    a("s_cbranch_scc1 L_cv_end")
    a("s_load_dwordx4 s[4:7], s[0:1], 32")
    a("s_load_dwordx2 s[8:9], s[0:1], 96")
    a("v_and_b32 v1, 63, v0")
    a("v_lshrrev_b32 v2, 6, v0")
    a("s_nop 0")
    a("v_readfirstlane_b32 s40, v2")
    a("s_lshl_b32 s30, s2, 2")
    a("s_add_u32 s30, s30, s40")
    a("s_mul_i32 s31, s40, 9216")
    a("s_lshl_b32 s32, s30, 12")
    a("s_waitcnt lgkmcnt(0)")
    a.srd(12, 4, SZ_SD)
    a.srd(16, 6, D*2)
    a.srd(20, 8, SZ_SD, WS_KVT)
    a.srd(24, 8, SZ_SD, WS_Y2T)
    a("v_lshlrev_b32 v2, 4, v1")
    for i in range(4):
        a(f"s_add_u32 m0, s31, {32 + 1024*i}")
        a(f"s_add_u32 s33, s32, {1024*i}")
        a("buffer_load_dwordx4 v2, s[12:15], s33 offen lds")
    for i in range(4):
        a(f"s_add_u32 m0, s31, {4608 + 1024*i}")
        a(f"s_add_u32 s33, s32, {1024*i}")
        a("buffer_load_dwordx4 v2, s[20:23], s33 offen lds")
    a("s_lshl_b32 s33, s30, 1")
    a("v_mov_b32 v3, s33")
    a("buffer_load_ushort v3, v3, s[16:19], 0 offen")
    a("v_mov_b32 v4, 0"); a("v_mov_b32 v5, 0"); a("v_mov_b32 v6, 0"); a("v_mov_b32 v7, 0")
    a("v_add_u32 v8, s31, v2")
    a("s_mov_b32 exec_hi, 0")
    a(f"ds_write_b128 v8, v[4:7] offset:{4608+4096}")
    a("s_mov_b32 exec_lo, 3")
    a("ds_write_b128 v8, v[4:7]")
    a("s_mov_b64 exec, -1")
    a("v_and_b32 v9, 15, v1")
    a("v_lshrrev_b32 v10, 4, v1")
    a("v_lshlrev_b32 v11, 1, v9")
    a("v_lshlrev_b32 v12, 4, v10")
    a("v_add_u32 v11, v11, v12")
    a("v_add_u32 v11, 2, v11")
    a("v_add_u32 v11, s31, v11")
    a("v_lshlrev_b32 v13, 5, v9")
    a("v_sub_u32 v13, v12, v13")
    a(f"v_add_u32 v13, {4608+480}, v13")
    a("v_add_u32 v13, s31, v13")
    ACC = 16; FA = 48; FB = 80
    for i in range(32):
        a(f"v_mov_b32 v{ACC+i}, 0")
    a("s_waitcnt vmcnt(0) lgkmcnt(0)")
    def reads(rho):
        o = 64 * (rho & 1)
        for pi in range(8):
            p = 8*pi + rho
            a.lds(f"ds_read_b128 v[{FA+o+4*pi}:{FA+o+4*pi+3}], v11 offset:{64*p}", f"F{rho}")
            w = 8*pi - rho
            a.lds(f"ds_read_b128 v[{FB+o+4*pi}:{FB+o+4*pi+3}], v13 offset:{64*(56-w)}", f"F{rho}")
    reads(0)
    for rho in range(8):
        a("s_waitcnt lgkmcnt(0)"); a.lg = []
        if rho < 7:
            reads(rho + 1)
        o = 64 * (rho & 1)
        for t in range(8):
            for pi in range(t + 1):
                tau = t - pi
                a(f"v_mfma_f32_16x16x32_bf16 v[{ACC+4*t}:{ACC+4*t+3}], v[{FA+o+4*pi}:{FA+o+4*pi+3}], v[{FB+o+4*tau}:{FB+o+4*tau+3}], v[{ACC+4*t}:{ACC+4*t+3}]")
    a("v_lshlrev_b32 v3, 16, v3")
    a("v_lshlrev_b32 v14, 5, v9")
    a("v_lshlrev_b32 v15, 3, v10")
    a("v_add_u32 v14, v14, v15")
    a(f"v_sub_u32 v15, {4608+504}, v14")
    a("v_add_u32 v15, s31, v15")
    a("v_add_u32 v14, s32, v14")
    for t in range(8):
        a(f"ds_read_b64 v[{48+2*t}:{49+2*t}], v15 offset:{512*(7-t)}")
    a("s_waitcnt lgkmcnt(0)")
    for t in range(8):
        y = ACC + 4*t; kq = 48 + 2*t; T = 64 + 8*(t & 1)
        unpack_hi(a, T, kq+1); unpack_lo(a, T+1, kq+1); unpack_hi(a, T+2, kq); unpack_lo(a, T+3, kq)
        for i in range(4):
            a(f"v_mul_f32 v{T+i}, v{T+i}, v3")
        a(f"v_cvt_pk_bf16_f32 v{T+4}, v{T}, v{T+1}")
        a(f"v_cvt_pk_bf16_f32 v{T+5}, v{T+2}, v{T+3}")
        a(f"v_cvt_pk_bf16_f32 v{T+6}, v{y}, v{y+1}")
        a(f"v_cvt_pk_bf16_f32 v{T+7}, v{y+2}, v{y+3}")
        unpack_lo(a, T, T+4); unpack_hi(a, T+1, T+4); unpack_lo(a, T+2, T+5); unpack_hi(a, T+3, T+5)
        unpack_lo(a, y, T+6); unpack_hi(a, y+1, T+6); unpack_lo(a, y+2, T+7); unpack_hi(a, y+3, T+7)
        for i in range(4):
            a(f"v_add_f32 v{T+i}, v{T+i}, v{y+i}")
        a(f"v_cvt_pk_bf16_f32 v{y}, v{T}, v{T+1}")
        a(f"v_cvt_pk_bf16_f32 v{y+1}, v{T+2}, v{T+3}")
        a(f"buffer_store_dwordx2 v[{y}:{y+1}], v14, s[24:27], 0 offen offset:{512*t}")
    a.label("L_cv_end")
    a("s_endpgm")
    return desc("conv_kernel", 176)

def gen_final(a):
    a.kernel_begin("final_kernel")
    a("s_cmp_ge_u32 s2, 288")
    a("s_cbranch_scc1 L_fin_end")
    a("s_load_dwordx2 s[4:5], s[0:1], 0")
    a("s_load_dwordx2 s[6:7], s[0:1], 80")
    a("s_load_dwordx2 s[8:9], s[0:1], 96")
    a("s_and_b32 s32, s2, 31")
    a("s_lshr_b32 s33, s2, 5")
    a("s_waitcnt lgkmcnt(0)")
    a.srd(12, 4, SZ_SD)
    a.srd(16, 6, SZ_SD)
    a.srd(20, 8, SZ_SD, WS_XN)
    a.srd(24, 8, SZ_SD, WS_Y2T)
    a.srd(28, 8, SZ_P, WS_P)
    a("v_lshrrev_b32 v1, 2, v0")
    a("v_and_b32 v2, 3, v0")
    a("v_lshlrev_b32 v3, 12, v1")
    a("v_lshlrev_b32 v4, 5, v2")
    a("v_add_u32 v3, v3, v4")
    a("s_lshl_b32 s34, s33, 18")
    a("s_lshl_b32 s35, s32, 7")
    a("s_add_u32 s34, s34, s35")
    a("v_add_u32 v3, s34, v3")
    a("buffer_load_dwordx4 v[8:11], v3, s[24:27], 0 offen")
    a("buffer_load_dwordx4 v[12:15], v3, s[24:27], 0 offen offset:16")
    a("v_mul_u32_u24 v5, 136, v1")
    a("v_add_u32 v5, v5, v4")
    a("v_lshrrev_b32 v6, 3, v0")
    a("v_and_b32 v7, 7, v0")
    a("s_lshl_b32 s34, s32, 6")
    a("v_add_u32 v16, s34, v6")
    a("v_mul_u32_u24 v16, 1152, v16")
    a("v_lshlrev_b32 v17, 4, v7")
    a("s_lshl_b32 s35, s33, 7")
    a("v_add_u32 v17, s35, v17")
    a("v_add_u32 v16, v16, v17")
    a(f"v_add_u32 v17, {32*1152}, v16")
    a("v_lshlrev_b32 v18, 1, v16")
    a("v_lshlrev_b32 v19, 1, v17")
    for it in range(2):
        b = 24 + 40*it
        a(f"buffer_load_dwordx4 v[{b}:{b+3}], v{16+it}, s[12:15], 0 offen")
        a(f"buffer_load_dwordx4 v[{b+4}:{b+7}], v{16+it}, s[20:23], 0 offen")
        for ks in range(4):
            a(f"s_mov_b32 s36, {ks*S*D*4}")
            a(f"buffer_load_dwordx4 v[{b+8+8*ks}:{b+11+8*ks}], v{18+it}, s[28:31], s36 offen")
            a(f"buffer_load_dwordx4 v[{b+12+8*ks}:{b+15+8*ks}], v{18+it}, s[28:31], s36 offen offset:16")
    a("s_waitcnt vmcnt(20)")
    for m in range(4):
        a(f"ds_write_b64 v5, v[{8+2*m}:{9+2*m}] offset:{8*m}")
    a("s_waitcnt lgkmcnt(0)")
    a("s_barrier")
    a("v_mul_u32_u24 v20, 1088, v7")
    a("v_lshlrev_b32 v21, 1, v6")
    a("v_add_u32 v20, v20, v21")
    for it in range(2):
        for c in range(8):
            a(f"ds_read_u16 v{104+8*it+c}, v20 offset:{136*c + 64*it}")
    a("s_waitcnt vmcnt(0) lgkmcnt(0)")
    for it in range(2):
        b = 24 + 40*it
        for w in range(4):
            T = 120
            y0, y1 = 104 + 8*it + 2*w, 104 + 8*it + 2*w + 1
            unpack_lo(a, y0, y0); unpack_lo(a, y1, y1)
            unpack_lo(a, T, b+4+w); unpack_hi(a, T+1, b+4+w)
            a(f"v_mul_f32 v{T}, v{T}, v{y0}")
            a(f"v_mul_f32 v{T+1}, v{T+1}, v{y1}")
            a(f"v_cvt_pk_bf16_f32 v{T+2}, v{T}, v{T+1}")
            unpack_lo(a, T, T+2); unpack_hi(a, T+1, T+2)
            unpack_lo(a, T+3, b+w); unpack_hi(a, T+4, b+w)
            a(f"v_add_f32 v{T}, v{T}, v{T+3}")
            a(f"v_add_f32 v{T+1}, v{T+1}, v{T+4}")
            a(f"v_cvt_pk_bf16_f32 v{T+2}, v{T}, v{T+1}")
            unpack_lo(a, T, T+2); unpack_hi(a, T+1, T+2)
            p = b + 8 + 2*w
            a(f"v_add_f32 v{T+3}, v{p}, v{p+8}")
            a(f"v_add_f32 v{T+4}, v{p+1}, v{p+9}")
            a(f"v_add_f32 v{T+5}, v{p+16}, v{p+24}")
            a(f"v_add_f32 v{T+6}, v{p+17}, v{p+25}")
            a(f"v_add_f32 v{T+3}, v{T+3}, v{T+5}")
            a(f"v_add_f32 v{T+4}, v{T+4}, v{T+6}")
            a(f"v_cvt_pk_bf16_f32 v{T+2}, v{T+3}, v{T+4}")
            unpack_lo(a, T+3, T+2); unpack_hi(a, T+4, T+2)
            a(f"v_add_f32 v{T}, v{T}, v{T+3}")
            a(f"v_add_f32 v{T+1}, v{T+1}, v{T+4}")
            a(f"v_cvt_pk_bf16_f32 v{b+w}, v{T}, v{T+1}")
        a(f"buffer_store_dwordx4 v[{b}:{b+3}], v{16+it}, s[16:19], 0 offen")
    a.label("L_fin_end")
    a("s_endpgm")
    return desc("final_kernel", 128)

def main(path):
    hdr = open("parallel_sum__ssm_conv_h3__glu_gated_swiglu__prompt.s.ref").read().split("\n")
    head = [l for l in hdr if l.startswith(";") and "@launch" not in l and "Override launch" not in l and "grid=ceil" not in l]
    launches = [
        "; @launch kernel=prep_kernel grid=(352,1,1) block=(256,1,1) lds=8704",
        f"; @launch kernel=gemm1_kernel grid=(256,1,1) block=(512,1,1) lds={NST*STAGE}",
        "; @launch kernel=conv_kernel grid=(144,1,1) block=(256,1,1) lds=36864",
        f"; @launch kernel=gemm2_kernel grid=(256,1,1) block=(512,1,1) lds={NST*STAGE}",
        "; @launch kernel=final_kernel grid=(288,1,1) block=(256,1,1) lds=8704",
    ]
    a = Asm()
    descs = [gen_prep(a), gen_gemm1(a), gen_conv(a), gen_gemm2(a), gen_final(a)]
    out = "\n".join(head + launches) + "\n"
    out += '.amdgcn_target "amdgcn-amd-amdhsa--gfx950"\n.text\n'
    out += "\n".join(a.l) + "\n"
    out += '.section .rodata,"a"\n'
    for d in descs:
        out += ".p2align 6\n" + d
    open(path, "w").write(out)

if __name__ == "__main__":
    main(sys.argv[1] if len(sys.argv) > 1 else "parallel_sum__ssm_conv_h3__glu_gated_swiglu__prompt.s")
```

```python
import sys, os
FL = set(os.environ.get('FL','').split(','))

S, D, F = 2048, 576, 4608
WS_XN, WS_KVT, WS_Y2T, WS_H, WS_P = 0x0, 0x400000, 0x800000, 0x1000000, 0x3000000
SZ_SD = S * D * 2
SZ_W = D * F * 2
SZ_H = S * F * 2
SZ_P = 4 * S * D * 4

class Asm:
    def __init__(self):
        self.l = []
        self.gemm = False
        self.keepbar = False
        self.vm = []
        self.lg = []
    def __call__(self, s):
        if self.gemm:
            if 'nomfma' in FL and s.startswith('v_mfma'): return
            if 'nolds' in FL and s.startswith('ds_read_b64_tr'): return
            if 'nodma' in FL and s.endswith('offen lds'): return
            if 'noa' in FL and s.startswith('buffer_load_dwordx4 v['): return
            if 'nobar' in FL and s.startswith('s_barrier') and not self.keepbar: return
            if 'nostore' in FL and s.startswith('buffer_store'): return
        self.l.append("    " + s)
    def label(self, s):
        self.l.append(s + ":")
    def c(self, s):
        self.l.append("    ; " + s)
    def vmem(self, s, tag):
        self(s); self.vm.append(tag)
    def lds(self, s, tag):
        self(s); self.lg.append(tag)
    def wait_vm(self, tag):
        if tag not in self.vm: return
        idx = max(i for i, t in enumerate(self.vm) if t == tag)
        n = len(self.vm) - 1 - idx
        assert n <= 63
        self(f"s_waitcnt vmcnt({n})")
        self.vm = self.vm[idx + 1:]
    def wait_lg(self, tag):
        if tag not in self.lg: return
        idx = max(i for i, t in enumerate(self.lg) if t == tag)
        n = len(self.lg) - 1 - idx
        assert n <= 15, n
        self(f"s_waitcnt lgkmcnt({n})")
        self.lg = self.lg[idx + 1:]
    def wait_all(self):
        self("s_waitcnt vmcnt(0) lgkmcnt(0)")
        self.vm = []; self.lg = []
    def srd(self, d, base, size, off=0):
        if off:
            self(f"s_add_u32 s{d}, s{base}, {off}")
            self(f"s_addc_u32 s{d+1}, s{base+1}, 0")
        else:
            self(f"s_mov_b32 s{d}, s{base}")
            self(f"s_mov_b32 s{d+1}, s{base+1}")
        self(f"s_mov_b32 s{d+2}, {size}")
        self(f"s_mov_b32 s{d+3}, 0x00020000")
    def stamp(self, i):
        if 'stamp' not in FL: return
        self(f"s_memtime s[{50+2*i}:{51+2*i}]")
        if i == 0: self("s_memrealtime s[62:63]")
    def stamp_flush(self, n, wsb, base):
        if 'stamp' not in FL: return
        self("s_memrealtime s[64:65]")
        self("s_waitcnt lgkmcnt(0)")
        self(f"s_add_u32 s68, s{wsb}, {base}")
        self(f"s_addc_u32 s69, s{wsb+1}, 0")
        self("s_mov_b32 s70, 0x100000")
        self("s_mov_b32 s71, 0x00020000")
        self("s_lshl_b32 s66, s2, 9")
        self("s_lshl_b32 s67, s40, 6")
        self("s_add_u32 s66, s66, s67")
        self("v_mov_b32 v5, s66")
        for i in range(8):
            self(f"v_mov_b32 v6, s{50+2*i}")
            self(f"v_mov_b32 v7, s{51+2*i}")
            self(f"buffer_store_dwordx2 v[6:7], v5, s[68:71], 0 offen offset:{8*i}")
            self("s_nop 1")
    def kernel_begin(self, name):
        self.l.append(f".globl {name}")
        self.l.append(".p2align 8")
        self.l.append(f".type {name},@function")
        self.label(name)
        self.gemm = name.startswith('gemm'); self.keepbar = False
        self.vm = []; self.lg = []

def vr(b, n=1):
    return f"v{b}" if n == 1 else f"v[{b}:{b+n-1}]"

def desc(name, vgpr, sgpr=80):
    acc = (vgpr + 3) // 4 * 4
    return f""".amdhsa_kernel {name}
  .amdhsa_next_free_vgpr {vgpr}
  .amdhsa_next_free_sgpr {sgpr}
  .amdhsa_accum_offset {acc}
  .amdhsa_group_segment_fixed_size 0
  .amdhsa_kernarg_size 104
  .amdhsa_user_sgpr_count 2
  .amdhsa_user_sgpr_kernarg_segment_ptr 1
  .amdhsa_system_sgpr_workgroup_id_x 1
  .amdhsa_float_denorm_mode_32 3
.end_amdhsa_kernel
"""

def unpack_lo(a, d, s): a(f"v_lshlrev_b32 v{d}, 16, v{s}")
def unpack_hi(a, d, s): a(f"v_and_b32 v{d}, 0xffff0000, v{s}")

CV_O, CV_U, CV_SZ = 4224, 8448, 13056
def gen_front(a):
    a.kernel_begin("front_kernel")
    a("s_cmp_ge_u32 s2, 480")
    a("s_cbranch_scc1 L_fr_end")
    a("s_cmp_lt_u32 s2, 64")
    a("s_cbranch_scc1 L_fr_pf")
    a("s_cmp_ge_u32 s2, 192")
    a("s_cbranch_scc1 L_fr_kv")
    a("s_load_dwordx2 s[4:5], s[0:1], 0")
    a("s_load_dwordx2 s[14:15], s[0:1], 96")
    a("s_waitcnt lgkmcnt(0)")
    a.srd(16, 4, SZ_SD)
    a.srd(20, 14, SZ_SD, WS_XN)
    a("s_sub_u32 s3, s2, 64")
    a("s_lshl_b32 s3, s3, 4")
    a("v_lshrrev_b32 v1, 4, v0")
    a("v_add_u32 v1, s3, v1")
    a("v_and_b32 v2, 15, v0")
    a("v_mul_u32_u24 v3, 1152, v1")
    a("v_lshlrev_b32 v4, 3, v2")
    a("v_add_u32 v3, v3, v4")
    for i in range(9):
        a(f"buffer_load_dwordx2 v[{8+2*i}:{9+2*i}], v3, s[16:19], 0 offen offset:{128*i}")
    a("v_lshrrev_b32 v4, 4, v1")
    a("v_mul_u32_u24 v4, 18432, v4")
    a("v_and_b32 v5, 15, v1")
    a("v_lshlrev_b32 v5, 4, v5")
    a("v_add_u32 v4, v4, v5")
    a("v_lshrrev_b32 v5, 2, v2")
    a("v_lshlrev_b32 v5, 8, v5")
    a("v_add_u32 v4, v4, v5")
    a("v_lshrrev_b32 v5, 1, v2")
    a("v_and_b32 v5, 1, v5")
    a("v_lshlrev_b32 v5, 10, v5")
    a("v_add_u32 v4, v4, v5")
    a("v_and_b32 v5, 1, v2")
    a("v_lshlrev_b32 v5, 3, v5")
    a("v_add_u32 v1, v4, v5")
    a("s_waitcnt vmcnt(0)")
    X = 32
    for i in range(18):
        unpack_lo(a, X + 2*i, 8 + i)
        unpack_hi(a, X + 2*i + 1, 8 + i)
    a(f"v_add_f32 v2, v{X}, v{X+1}")
    a(f"v_add_f32 v3, v{X+2}, v{X+3}")
    for i in range(4, 36, 2):
        a(f"v_add_f32 v2, v2, v{X+i}")
        a(f"v_add_f32 v3, v3, v{X+i+1}")
    a("v_add_f32 v2, v2, v3")
    def red16(r, t):
        a("s_nop 1")
        a(f"v_add_f32_dpp v{t}, v{r}, v{r} quad_perm:[1,0,3,2] row_mask:0xf bank_mask:0xf")
        a("s_nop 1")
        a(f"v_add_f32_dpp v{r}, v{t}, v{t} quad_perm:[2,3,0,1] row_mask:0xf bank_mask:0xf")
        a("s_nop 1")
        a(f"v_add_f32_dpp v{t}, v{r}, v{r} row_half_mirror row_mask:0xf bank_mask:0xf")
        a("s_nop 1")
        a(f"v_add_f32_dpp v{r}, v{t}, v{t} row_mirror row_mask:0xf bank_mask:0xf")
    red16(2, 3)
    a("s_mov_b32 s24, 0x3ae38e39")
    a("v_mul_f32 v2, s24, v2")
    a("v_mov_b32 v4, 0")
    a("v_mov_b32 v5, 0")
    for i in range(0, 36, 2):
        a(f"v_sub_f32 v6, v{X+i}, v2")
        a(f"v_sub_f32 v7, v{X+i+1}, v2")
        a("v_fmac_f32 v4, v6, v6")
        a("v_fmac_f32 v5, v7, v7")
    a("v_add_f32 v4, v4, v5")
    red16(4, 5)
    a("v_mul_f32 v4, s24, v4")
    a("v_cvt_pk_bf16_f32 v5, v2, v4")
    unpack_lo(a, 2, 5)
    unpack_hi(a, 4, 5)
    a("v_add_f32 v4, 0x3727c5ac, v4")
    a("v_cvt_pk_bf16_f32 v4, v4, v4")
    unpack_hi(a, 4, 4)
    a("v_sqrt_f32 v4, v4")
    a("s_nop 0")
    a("v_cvt_pk_bf16_f32 v4, v4, v4")
    unpack_hi(a, 4, 4)
    a("v_rcp_f32 v5, v4")
    a("s_nop 0")
    for i in range(18):
        x0, x1 = X + 2*i, X + 2*i + 1
        a(f"v_sub_f32 v{x0}, v{x0}, v2")
        a(f"v_sub_f32 v{x1}, v{x1}, v2")
        a(f"v_cvt_pk_bf16_f32 v6, v{x0}, v{x1}")
        unpack_lo(a, x0, 6)
        unpack_hi(a, x1, 6)
        a(f"v_mul_f32 v6, v{x0}, v5")
        a(f"v_mul_f32 v7, v{x1}, v5")
        a(f"v_fma_f32 v{x0}, -v6, v4, v{x0}")
        a(f"v_fma_f32 v{x1}, -v7, v4, v{x1}")
        a(f"v_fma_f32 v6, v{x0}, v5, v6")
        a(f"v_fma_f32 v7, v{x1}, v5, v7")
        a(f"v_cvt_pk_bf16_f32 v{8+i}, v6, v7")
    for i in range(9):
        a(f"s_mov_b32 s25, {2048*i}")
        a(f"buffer_store_dwordx2 v[{8+2*i}:{9+2*i}], v1, s[20:23], s25 offen")
    a("s_endpgm")
    a.label("L_fr_pf")
    a("s_load_dwordx4 s[4:7], s[0:1], 56")
    a("s_load_dwordx2 s[8:9], s[0:1], 32")
    a("v_and_b32 v1, 63, v0")
    a("v_lshrrev_b32 v2, 6, v0")
    a("s_nop 0")
    a("v_readfirstlane_b32 s40, v2")
    a("s_and_b32 s30, s2, 7")
    a("s_mul_i32 s30, s30, 1152")
    a("s_mov_b32 s31, s2")
    a("s_lshr_b32 s31, s31, 3")
    a("s_lshl_b32 s31, s31, 2")
    a("s_add_u32 s31, s31, s40")
    a(f"s_mul_i32 s31, s31, {7*9216}")
    a("v_mul_u32_u24 v2, 57, v1")
    a("v_lshrrev_b32 v2, 9, v2")
    a("v_mul_u32_u24 v3, 9, v2")
    a("v_sub_u32 v3, v1, v3")
    a("v_mul_u32_u24 v2, 9216, v2")
    a("v_lshlrev_b32 v3, 7, v3")
    a("v_add_u32 v2, v2, v3")
    a("s_waitcnt lgkmcnt(0)")
    for m in range(2):
        a(f"s_add_u32 s{12+4*m}, s{4+2*m}, s30")
        a(f"s_addc_u32 s{13+4*m}, s{5+2*m}, 0")
        a(f"s_sub_u32 s{14+4*m}, {SZ_W}, s30")
        a(f"s_mov_b32 s{15+4*m}, 0x00020000")
    for r in range(0 if 'nofpf' in FL else (1 if 'fpf1' in FL else 3)):
        a(f"buffer_load_dword v{8+2*r}, v2, s[12:15], s31 offen")
        a(f"buffer_load_dword v{9+2*r}, v2, s[16:19], s31 offen")
        a(f"s_add_u32 s31, s31, {32*7*9216}")
    a.srd(20, 8, SZ_SD)
    a("s_mov_b32 s31, s2")
    a("s_lshl_b32 s31, s31, 2")
    a("s_add_u32 s31, s31, s40")
    a("s_lshl_b32 s31, s31, 13")
    a("v_lshlrev_b32 v3, 7, v1")
    a("buffer_load_dword v16, v3, s[20:23], s31 offen")
    a(f"s_add_u32 s31, s31, {256*8192}")
    a("buffer_load_dword v17, v3, s[20:23], s31 offen")
    a("s_endpgm")
    a.label("L_fr_kv")
    a("s_load_dwordx4 s[8:11], s[0:1], 8")
    a("s_load_dwordx2 s[12:13], s[0:1], 24")
    a("s_load_dwordx2 s[14:15], s[0:1], 96")
    a("s_waitcnt lgkmcnt(0)")
    a.srd(16, 8, SZ_SD)
    a.srd(20, 10, SZ_SD)
    a.srd(24, 12, D * 8)
    a.srd(28, 14, SZ_SD, WS_KVT)
    a("s_sub_u32 s3, s2, 192")
    a("s_and_b32 s32, s3, 31")
    a("s_lshr_b32 s33, s3, 5")
    a("v_lshrrev_b32 v1, 3, v0")
    a("v_and_b32 v2, 7, v0")
    a("s_lshl_b32 s34, s32, 6")
    a("v_lshlrev_b32 v3, 1, v1")
    a("v_add_u32 v3, s34, v3")
    a("s_lshl_b32 s35, s33, 7")
    a("v_lshlrev_b32 v4, 4, v2")
    a("v_add_u32 v4, s35, v4")
    a("v_mul_u32_u24 v5, 1152, v3")
    a("v_add_u32 v5, v5, v4")
    for r in range(5):
        a(f"v_add_u32 v{6+r}, {(r-3)*1152 & 0xffffffff}, v5")
    for r in range(5):
        a(f"buffer_load_dwordx4 v[{12+4*r}:{15+4*r}], v{6+r}, s[16:19], 0 offen")
    a("buffer_load_dwordx4 v[32:35], v5, s[20:23], 0 offen")
    a("buffer_load_dwordx4 v[36:39], v5, s[20:23], 0 offen offset:1152")
    a("v_lshlrev_b32 v11, 2, v4")
    for i in range(4):
        a(f"buffer_load_dwordx4 v[{40+4*i}:{43+4*i}], v11, s[24:27], 0 offen offset:{16*i}")
    a("v_mul_u32_u24 v56, 1088, v2")
    a("v_sub_u32 v57, 31, v1")
    a("v_lshlrev_b32 v57, 2, v57")
    a("v_add_u32 v56, v56, v57")
    a("s_waitcnt vmcnt(0)")
    for c in range(8):
        w, hi = c >> 1, c & 1
        up = unpack_hi if hi else unpack_lo
        for r in range(5):
            up(a, 60 + r, 12 + 4*r + w)
        up(a, 65, 32 + w); up(a, 66, 36 + w)
        unpack_lo(a, 67, 40 + 2*c); unpack_hi(a, 68, 40 + 2*c)
        unpack_lo(a, 69, 41 + 2*c); unpack_hi(a, 70, 41 + 2*c)
        for step, j in enumerate([3, 2, 1, 0]):
            kk0 = 60 + (3 - j); kk1 = kk0 + 1
            a(f"v_mul_f32 v71, v{kk0}, v{67+j}")
            a(f"v_mul_f32 v72, v{kk1}, v{67+j}")
            a("v_cvt_pk_bf16_f32 v73, v71, v72")
            if step == 0:
                unpack_lo(a, 74, 73); unpack_hi(a, 75, 73)
            else:
                unpack_lo(a, 71, 73); unpack_hi(a, 72, 73)
                a("v_add_f32 v74, v74, v71")
                a("v_add_f32 v75, v75, v72")
                a("v_cvt_pk_bf16_f32 v73, v74, v75")
                unpack_lo(a, 74, 73); unpack_hi(a, 75, 73)
        a("v_mul_f32 v74, v74, v65")
        a("v_mul_f32 v75, v75, v66")
        a("v_cvt_pk_bf16_f32 v73, v75, v74")
        a(f"ds_write_b32 v56, v73 offset:{136*c}")
    a("s_waitcnt lgkmcnt(0)")
    a("s_barrier")
    a("v_lshrrev_b32 v1, 2, v0")
    a("v_and_b32 v2, 3, v0")
    a("v_mul_u32_u24 v3, 136, v1")
    a("v_lshlrev_b32 v4, 5, v2")
    a("v_add_u32 v3, v3, v4")
    for m in range(4):
        a(f"ds_read_b64 v[{8+2*m}:{9+2*m}], v3 offset:{8*m}")
    a("s_lshl_b32 s36, s33, 18")
    a("s_lshl_b32 s37, s32, 7")
    a("s_sub_u32 s36, s36, s37")
    a("s_add_u32 s36, s36, 3968")
    a("v_lshlrev_b32 v5, 12, v1")
    a("v_add_u32 v5, v5, v4")
    a("v_add_u32 v5, s36, v5")
    a("s_waitcnt lgkmcnt(0)")
    a("buffer_store_dwordx4 v[8:11], v5, s[28:31], 0 offen")
    a("buffer_store_dwordx4 v[12:15], v5, s[28:31], 0 offen offset:16")
    a.label("L_fr_end")
    a("s_endpgm")
    return desc("front_kernel", 128)

STAGE = 36864
NST = 4
PD = 5

def gemm_setup_dma(a, row_bytes, vD, sW, sH, perm):
    a("s_and_b32 s41, s40, 3")
    a("s_lshr_b32 s42, s40, 2")
    a("s_mul_i32 s43, s42, 18432")
    a("s_lshl_b32 s44, s41, 12")
    a(f"s_add_u32 s{sW}, s43, s44")
    a("s_lshl_b32 s44, s41, 9")
    a("s_add_u32 s44, s44, 16384")
    a(f"s_add_u32 s{sH}, s43, s44")
    a("s_movk_i32 s45, 3641")
    for i in range(5):
        if i < 4:
            a("s_lshl_b32 s44, s41, 8")
            a(f"s_add_u32 s44, s44, {64*i}")
        else:
            a("s_lshl_b32 s44, s41, 5")
            a("s_add_u32 s44, s44, 1024")
        a("v_add_u32 v17, s44, v1")
        a("v_mul_lo_u32 v18, v17, s45")
        a("v_lshrrev_b32 v18, 16, v18")
        a("v_mul_u32_u24 v19, 18, v18")
        a("v_sub_u32 v19, v17, v19")
        if perm:
            a("v_lshrrev_b32 v17, 4, v18")
            a("v_and_b32 v17, 1, v17")
            a("v_lshlrev_b32 v17, 2, v17")
            a("v_xor_b32 v18, v18, v17")
        a(f"v_mul_u32_u24 v18, {row_bytes}, v18")
        a("v_lshlrev_b32 v19, 4, v19")
        a(f"v_add_u32 v{vD+i}, v18, v19")

def gemm_dma(a, j, vD, sW, sH, srdW, kstep_bytes):
    st = j % NST
    a(f"s_mov_b32 s46, {j*kstep_bytes}")
    for i in range(4):
        a(f"s_add_u32 m0, s{sW}, {st*STAGE + 1024*i}")
        a("s_nop 0")
        a.vmem(f"buffer_load_dwordx4 v{vD+i}, s[{srdW}:{srdW+3}], s46 offen lds", f"D{j}")
    a(f"s_add_u32 m0, s{sH}, {st*STAGE}")
    a("s_mov_b32 exec_hi, 0")
    a.vmem(f"buffer_load_dwordx4 v{vD+4}, s[{srdW}:{srdW+3}], s46 offen lds", f"D{j}")
    a("s_mov_b32 exec_hi, -1")

def gemm_loop(a, units, NU, NAB, w_reads, mfmas, a_loads, dma, early, late=None):
    a.wait_vm("A0")
    a("s_barrier")
    a.stamp(2)
    for U in range(PD):
        w_reads(U)
    for U, un in enumerate(units):
        j = un[0]; u = U % NU
        if U == NU*4: a.stamp(3)
        if u == 0 and j > 0:
            a.wait_vm(f"A{j}")
            if j + NAB - 1 <= 8:
                a_loads(j + NAB - 1)
        if j == 0 and u in early:
            early[u]()
        if j == 8 and u == 2 and late: late()
        if u == NU - PD and j < 8:
            a.wait_vm(f"D{j+1}")
            a("s_barrier")
            if j + 3 <= 8:
                dma(j + 3)
        if U + PD < len(units):
            w_reads(U + PD)
        a.wait_lg(f"W{U}")
        mfmas(U)

CVB = 3 * 36864
G1_LDS = CVB + 4 * CV_SZ
def conv_head_loads(a):
    a("s_lshr_b32 s80, s40, 1")
    a("s_lshl_b32 s81, s80, 8")
    a("s_add_u32 s81, s81, s2")
    a("s_cmp_lt_u32 s81, 576")
    a("s_cselect_b32 s82, 1, 0")
    a("s_min_u32 s81, s81, 575")
    a(f"s_mul_i32 s83, s80, {CV_SZ}")
    a(f"s_add_u32 s83, s83, {CVB}")
    a("s_lshl_b32 s84, s81, 12")
    a.srd(88, 72, SZ_SD)
    a.srd(92, 74, D*2)
    a.srd(96, 8, SZ_SD, WS_KVT)
    a("v_lshlrev_b32 v212, 4, v1")
    for i in range(4):
        a.vmem(f"buffer_load_dwordx4 v[{84+8*i}:{87+8*i}], v212, s[88:91], s84 offen offset:{1024*i}", "CK")
        a.vmem(f"buffer_load_dword v{88+8*i}, v212, s[88:91], s84 offen offset:{1024*i+16}", "CK")
    for i in range(4):
        a(f"s_add_u32 m0, s83, {CV_U + 1024*i}")
        a(f"s_add_u32 s85, s84, {1024*i}")
        a.vmem("buffer_load_dwordx4 v212, s[96:99], s85 offen lds", "CU")
    a("s_lshl_b32 s85, s81, 1")
    a("v_mov_b32 v213, s85")
    a.vmem("buffer_load_ushort v213, v213, s[92:95], 0 offen", "CU")

def conv_head_compute(a):
    Z = 216
    for i in range(4): a(f"v_mov_b32 v{Z+i}, 0")
    a("v_add_u32 v214, s83, v212")
    a("s_mov_b32 exec_hi, 0")
    a(f"ds_write_b128 v214, v[{Z}:{Z+3}] offset:{CV_U+4096}")
    a("s_mov_b32 exec_lo, 3")
    a(f"ds_write_b128 v214, v[{Z}:{Z+3}]")
    a("s_mov_b32 exec_lo, 1")
    a(f"ds_write_b128 v214, v[{Z}:{Z+3}] offset:{CV_O}")
    a("s_mov_b64 exec, -1")
    a("v_and_b32 v220, 15, v1")
    a("v_lshrrev_b32 v221, 4, v1")
    a("v_lshlrev_b32 v222, 1, v220")
    a("v_lshlrev_b32 v223, 4, v221")
    a("v_add_u32 v222, v222, v223")
    a("v_and_b32 v224, 1, v220")
    a("v_cmp_eq_u32 vcc, 1, v224")
    a(f"v_mov_b32 v224, {CV_O}")
    a("s_nop 1")
    a("v_cndmask_b32 v224, v224, 2, vcc")
    a("v_add3_u32 v222, v222, v224, s83")
    a("v_lshlrev_b32 v225, 5, v220")
    a("v_sub_u32 v225, v223, v225")
    a(f"v_add_u32 v225, {CV_U+480}, v225")
    a("v_add_u32 v225, s83, v225")
    KA = [226, 227, 228, 229, 230]
    for i in range(5):
        a(f"v_add_u32 v{KA[i]}, {960*i}, v222")
    ACC = 52; FA = 84; FB = 116
    for i in range(16):
        a(f"v_mov_b32 v{ACC+i}, 0")
    a.wait_vm("CK")
    for i in range(4):
        b = 84 + 8*i
        a(f"ds_write_b128 v214, v[{b}:{b+3}] offset:{32+1024*i}")
        for t in range(4):
            a(f"v_alignbit_b32 v{232+4*(i&1)+t}, v{b+t+1}, v{b+t}, 16")
        a(f"ds_write_b128 v214, v[{232+4*(i&1)}:{235+4*(i&1)}] offset:{CV_O+32+1024*i}")
        if i == 0:
            a(f"v_lshlrev_b32 v{Z+3}, 16, v84")
            a("s_mov_b64 exec, 1")
            a(f"ds_write_b128 v214, v[{Z}:{Z+3}] offset:{CV_O+16}")
            a("s_mov_b64 exec, -1")
    a.wait_vm("CU")
    a("s_waitcnt lgkmcnt(0)")
    a("s_cmp_eq_u32 s82, 0")
    a("s_cbranch_scc1 L_cvh_epi")
    a("s_and_b32 s85, s40, 1")
    a("s_cmp_eq_u32 s85, 1")
    a("s_cbranch_scc1 L_cvh_p1")
    TS = [[7, 4, 1, 0], [6, 5, 3, 2]]
    for part in range(2):
        if part == 1: a.label("L_cvh_p1")
        ts = TS[part]; mx = max(ts)
        def reads(rho):
            o = 64 * (rho & 1)
            for pi in range(mx + 1):
                p = 8*pi + rho
                r = FA+o+4*pi
                a(f"ds_read2_b32 v[{r}:{r+1}], v{KA[p//15]} offset0:{16*(p%15)} offset1:{16*(p%15)+1}")
                a(f"ds_read2_b32 v[{r+2}:{r+3}], v{KA[p//15]} offset0:{16*(p%15)+2} offset1:{16*(p%15)+3}")
                w = 8*pi - rho
                a(f"ds_read_b128 v[{FB+o+4*pi}:{FB+o+4*pi+3}], v225 offset:{64*(56-w)}")
        reads(0)
        for rho in range(8):
            a("s_waitcnt lgkmcnt(0)")
            if rho < 7:
                reads(rho + 1)
            o = 64 * (rho & 1)
            work = [[(ti, t, pi) for pi in range(t + 1)] for ti, t in enumerate(ts)]
            while any(work):
                for wl in work:
                    if wl:
                        ti, t, pi = wl.pop(0)
                        tau = t - pi
                        a(f"v_mfma_f32_16x16x32_bf16 v[{ACC+4*ti}:{ACC+4*ti+3}], v[{FA+o+4*pi}:{FA+o+4*pi+3}], v[{FB+o+4*tau}:{FB+o+4*tau+3}], v[{ACC+4*ti}:{ACC+4*ti+3}]")
        for ti, t in enumerate(ts):
            a(f"s_mov_b32 s{76+ti}, {512*t}")
        if part == 0: a("s_branch L_cvh_epi")
    a.label("L_cvh_epi")
    a.srd(88, 8, SZ_SD, WS_Y2T)
    a("s_cmp_eq_u32 s82, 0")
    a("s_cselect_b32 s84, 0x7f000000, s84")
    for ti in range(4):
        a(f"s_cselect_b32 s{76+ti}, 0, s{76+ti}")
    a("v_lshlrev_b32 v213, 16, v213")
    a("v_lshlrev_b32 v224, 5, v220")
    a("v_lshlrev_b32 v226, 3, v221")
    a("v_add_u32 v224, v224, v226")
    a(f"v_sub_u32 v226, {CV_U+4088}, v224")
    a("v_add_u32 v226, s83, v226")
    a("v_add_u32 v224, s84, v224")
    for ti in range(4):
        a(f"v_subrev_u32 v227, s{76+ti}, v226")
        a(f"ds_read_b64 v[{84+2*ti}:{85+2*ti}], v227")
    a("s_waitcnt lgkmcnt(0)")
    for ti in range(4):
        y = ACC + 4*ti; kq = 84 + 2*ti; T = 100 + 8*(ti & 1)
        unpack_hi(a, T, kq+1); unpack_lo(a, T+1, kq+1); unpack_hi(a, T+2, kq); unpack_lo(a, T+3, kq)
        for i in range(4):
            a(f"v_mul_f32 v{T+i}, v{T+i}, v213")
        a(f"v_cvt_pk_bf16_f32 v{T+4}, v{T}, v{T+1}")
        a(f"v_cvt_pk_bf16_f32 v{T+5}, v{T+2}, v{T+3}")
        a(f"v_cvt_pk_bf16_f32 v{T+6}, v{y}, v{y+1}")
        a(f"v_cvt_pk_bf16_f32 v{T+7}, v{y+2}, v{y+3}")
        unpack_lo(a, T, T+4); unpack_hi(a, T+1, T+4); unpack_lo(a, T+2, T+5); unpack_hi(a, T+3, T+5)
        unpack_lo(a, y, T+6); unpack_hi(a, y+1, T+6); unpack_lo(a, y+2, T+7); unpack_hi(a, y+3, T+7)
        for i in range(4):
            a(f"v_add_f32 v{T+i}, v{T+i}, v{y+i}")
        a(f"v_cvt_pk_bf16_f32 v{240+2*ti}, v{T}, v{T+1}")
        a(f"v_cvt_pk_bf16_f32 v{241+2*ti}, v{T+2}, v{T+3}")
        a.vmem(f"buffer_store_dwordx2 v[{240+2*ti}:{241+2*ti}], v224, s[88:91], s{76+ti} offen", "CS")

def gen_gemm1(a):
    a.kernel_begin("gemm1_kernel")
    a("s_cmp_ge_u32 s2, 256")
    a("s_cbranch_scc1 L_g1_end")
    a.stamp(0)
    a("s_load_dwordx4 s[4:7], s[0:1], 56")
    a("s_load_dwordx2 s[8:9], s[0:1], 96")
    a("s_load_dwordx4 s[72:75], s[0:1], 32")
    a("s_load_dwordx2 s[86:87], s[0:1], 72")
    a("v_and_b32 v1, 63, v0")
    a("v_lshrrev_b32 v2, 6, v0")
    a("s_nop 0")
    a("v_readfirstlane_b32 s40, v2")
    a("s_and_b32 s30, s2, 7")
    a("s_lshr_b32 s31, s2, 3")
    a("s_lshl_b32 s30, s30, 2")
    a("s_and_b32 s32, s31, 3")
    a("s_add_u32 s30, s30, s32")
    a("s_lshr_b32 s31, s31, 2")
    a("s_mul_i32 s33, s30, 288")
    vD, vA, vB = 2, 7, 9
    AB, WB, ACC = 20, 84, 108
    NAB = 4
    gemm_setup_dma(a, 9216, vD, 34, 35, True)
    a("s_lshl_b32 s36, s31, 4")
    a("s_lshl_b32 s37, s40, 1")
    a("s_add_u32 s36, s36, s37")
    a("s_mul_i32 s37, s36, 18432")
    a("v_lshlrev_b32 v17, 4, v1")
    a(f"v_add_u32 v{vA}, s37, v17")
    a(f"v_add_u32 v{vA+1}, 18432, v{vA}")
    a("s_waitcnt lgkmcnt(0)")
    a("s_cmp_ge_u32 s40, 4")
    a("s_cselect_b32 s10, s6, s4")
    a("s_cselect_b32 s11, s7, s5")
    a("s_add_u32 s12, s10, s33")
    a("s_addc_u32 s13, s11, 0")
    a(f"s_sub_u32 s14, {SZ_W}, s33")
    a("s_mov_b32 s15, 0x00020000")
    a.srd(16, 8, SZ_SD, WS_XN)
    a.srd(20, 8, SZ_H, WS_H)
    def a_loads(j):
        b = AB + 16 * (j % NAB)
        a(f"s_mov_b32 s47, {2048*j}")
        for t in range(2):
            for kh in range(2):
                r = b + 8*t + 4*kh
                a.vmem(f"buffer_load_dwordx4 v[{r}:{r+3}], v{vA+t}, s[16:19], s47 offen offset:{1024*kh}", f"A{j}")
    KB = 64 * 9216
    dma = lambda j: gemm_dma(a, j, vD, 34, 35, 12, KB)
    if 'cvhead' in FL: conv_head_loads(a)
    dma(0); a_loads(0); dma(1); a_loads(1)
    if 'nopf' not in FL:
        a("s_and_b32 s41, s2, 7")
        a("s_mul_i32 s41, s41, 1152")
        a("s_add_u32 s24, s10, s41")
        a("s_addc_u32 s25, s11, 0")
        a(f"s_sub_u32 s26, {SZ_W}, s41")
        a("s_mov_b32 s27, 0x00020000")
        a("s_lshr_b32 s41, s2, 3")
        a("v_mul_u32_u24 v17, 3641, v1")
        a("v_lshrrev_b32 v17, 16, v17")
        a("v_mul_u32_u24 v18, 18, v17")
        a("v_sub_u32 v18, v1, v18")
        a("v_lshlrev_b32 v17, 5, v17")
        a("v_add_u32 v17, s41, v17")
        a("v_mul_u32_u24 v17, 9216, v17")
        a("v_lshlrev_b32 v18, 6, v18")
        a("v_add_u32 v17, v17, v18")
        a("s_and_b32 s42, s40, 3")
        a(f"s_mul_i32 s43, s42, {3*32*9216}")
        a(f"s_add_u32 s43, s43, {4*32*9216}")
        a.vmem("buffer_load_dword v0, v17, s[24:27], s43 offen", "PF")
        a("s_and_b32 s42, s41, 3")
        a("s_lshl_b32 s42, s42, 2")
        a("s_lshl_b32 s44, s31, 4")
        a("s_add_u32 s42, s42, s44")
        a("s_and_b32 s44, s40, 1")
        a("s_lshl_b32 s44, s44, 1")
        a("s_add_u32 s42, s42, s44")
        a("s_mul_i32 s42, s42, 18432")
        a("s_lshr_b32 s44, s40, 1")
        a("s_lshl_b32 s44, s44, 11")
        a("s_add_u32 s42, s42, s44")
        a("s_add_u32 s42, s42, 4096")
        a("v_lshrrev_b32 v18, 5, v1")
        a("v_mul_u32_u24 v18, 18432, v18")
        a("v_and_b32 v19, 31, v1")
        a("v_lshlrev_b32 v19, 6, v19")
        a("v_add_u32 v18, v18, v19")
        a.vmem("buffer_load_dword v0, v18, s[16:19], s42 offen", "PF")
        a(f"s_add_u32 s43, s43, {12*32*9216}")
        a.vmem("buffer_load_dword v0, v17, s[24:27], s43 offen", "PF")
        a("s_add_u32 s42, s42, 8192")
        a("s_cmp_ge_u32 s40, 6")
        a("s_cselect_b32 s42, 0x7f000000, s42")
        a.vmem("buffer_load_dword v0, v18, s[16:19], s42 offen", "PF")
    if 'cvhead' in FL: conv_head_compute(a)
    a("v_lshrrev_b32 v17, 4, v1")
    a("v_lshrrev_b32 v18, 2, v1")
    a("v_and_b32 v18, 3, v18")
    a("v_and_b32 v19, 1, v17")
    a("v_lshlrev_b32 v17, 4, v17")
    a("v_add_u32 v17, v17, v18")
    a("v_lshlrev_b32 v19, 2, v19")
    a("v_add_u32 v18, v17, v19")
    a("v_xor_b32 v19, 4, v19")
    a("v_add_u32 v19, v17, v19")
    a("v_mul_u32_u24 v18, 288, v18")
    a("v_mul_u32_u24 v19, 288, v19")
    a("v_and_b32 v17, 3, v1")
    a("v_lshlrev_b32 v17, 3, v17")
    a(f"v_add_u32 v{vB}, v18, v17")
    a(f"v_add_u32 v{vB+1}, v19, v17")
    for st in range(1, NST):
        a(f"v_add_u32 v{vB+2*st}, {st*STAGE}, v{vB}")
        a(f"v_add_u32 v{vB+2*st+1}, {st*STAGE}, v{vB+1}")
    for i in range(144):
        a(f"v_mov_b32 v{ACC+i}, 0")
    a.stamp(1)
    NU = 36
    units = [(j, kh, mat, c) for j in range(9) for kh in range(2) for mat in range(2) for c in range(9)]
    def w_reads(U):
        j, kh, mat, c = units[U]
        st = j % NST
        r = WB + 4 * (U % (PD + 1))
        off = mat*18432 + 8*kh*288 + c*32
        a.lds(f"ds_read_b64_tr_b16 v[{r}:{r+1}], v{vB+2*st} offset:{off}", f"W{U}")
        a.lds(f"ds_read_b64_tr_b16 v[{r+2}:{r+3}], v{vB+2*st+1} offset:{off}", f"W{U}")
    def mfmas(U):
        j, kh, mat, c = units[U]
        r = WB + 4 * (U % (PD + 1))
        for t in range(2):
            ac = ACC + 4 * (t*18 + mat*9 + c)
            ar = AB + 16*(j % NAB) + 8*t + 4*kh
            a(f"v_mfma_f32_16x16x32_bf16 v[{ac}:{ac+3}], v[{r}:{r+3}], v[{ar}:{ar+3}], v[{ac}:{ac+3}]")
    def w2_pf():
        a("s_mov_b32 s24, s86")
        a("s_mov_b32 s25, s87")
        a("s_lshr_b32 s41, s2, 3")
        a("s_lshl_b32 s41, s41, 13")
        a(f"s_mul_i32 s42, s40, {576*1152}")
        a("s_add_u32 s41, s41, s42")
        a("v_lshlrev_b32 v17, 7, v1")
        a("s_and_b32 s43, s2, 7")
        a("s_lshr_b32 s44, s2, 3")
        a("s_lshl_b32 s43, s43, 5")
        a("s_add_u32 s43, s43, s44")
        a("s_lshr_b32 s44, s43, 2")
        a("s_and_b32 s43, s43, 3")
        a("s_add_u32 s44, s44, 32")
        a("s_lshl_b32 s44, s44, 13")
        a("s_add_u32 s44, s44, s42")
        a("s_and_b32 s45, s40, 3")
        a("s_cmp_eq_u32 s45, s43")
        a("s_cselect_b32 s44, s44, 0x7f000000")
        a(f"s_mov_b32 s26, {SZ_W}")
        a("s_mov_b32 s27, 0x00020000")
        a("buffer_load_dword v0, v17, s[24:27], s41 offen")
        a("buffer_load_dword v0, v17, s[24:27], s44 offen")
    gemm_loop(a, units, NU, NAB, w_reads, mfmas, a_loads, dma,
              {2: lambda: dma(2), 12: lambda: a_loads(2), 22: lambda: a_loads(3)}, late=(None if 'nopf2' in FL else w2_pf))
    a.stamp(4)
    a("s_mul_i32 s37, s36, 147456")
    a("s_mul_i32 s38, s30, 9")
    a("s_and_b32 s39, s38, 1")
    a("s_lshr_b32 s38, s38, 1")
    a("s_lshl_b32 s38, s38, 10")
    a("s_add_u32 s37, s37, s38")
    a("v_lshlrev_b32 v17, 4, v1")
    a("v_add_u32 v2, s37, v17")
    a("v_add_u32 v3, 147456, v2")
    a("s_mov_b32 s46, 0xbfb8aa3b")
    a("s_mov_b32 s47, 0xbfb8aa3b")
    a("s_mov_b32 s48, 1.0")
    a("s_mov_b32 s49, 1.0")
    a("s_movk_i32 s45, 4096")
    a("s_cmp_eq_u32 s39, 0")
    a("s_cbranch_scc0 L_g1_epi_odd")
    def group(t, c, T, O):
        g = ACC + 4*(t*18 + c); u_ = ACC + 4*(t*18 + 9 + c)
        a(f"v_cvt_pk_bf16_f32 v{T}, v{g}, v{g+1}")
        a(f"v_cvt_pk_bf16_f32 v{T+1}, v{g+2}, v{g+3}")
        a(f"v_cvt_pk_bf16_f32 v{T+2}, v{u_}, v{u_+1}")
        a(f"v_cvt_pk_bf16_f32 v{T+3}, v{u_+2}, v{u_+3}")
        unpack_lo(a, g, T); unpack_hi(a, g+1, T); unpack_lo(a, g+2, T+1); unpack_hi(a, g+3, T+1)
        a(f"v_pk_mul_f32 v[{T+4}:{T+5}], v[{g}:{g+1}], s[46:47]")
        a(f"v_pk_mul_f32 v[{T+6}:{T+7}], v[{g+2}:{g+3}], s[46:47]")
        unpack_lo(a, u_, T+2); unpack_hi(a, u_+1, T+2)
        for i in range(4):
            a(f"v_exp_f32 v{T+4+i}, v{T+4+i}")
        unpack_lo(a, u_+2, T+3); unpack_hi(a, u_+3, T+3)
        a(f"v_pk_add_f32 v[{T+4}:{T+5}], v[{T+4}:{T+5}], s[48:49]")
        a(f"v_pk_add_f32 v[{T+6}:{T+7}], v[{T+6}:{T+7}], s[48:49]")
        for i in range(4):
            a(f"v_rcp_f32 v{T+4+i}, v{T+4+i}")
        a("s_nop 0")
        a(f"v_pk_mul_f32 v[{T+4}:{T+5}], v[{T+4}:{T+5}], v[{g}:{g+1}]")
        a(f"v_pk_mul_f32 v[{T+6}:{T+7}], v[{T+6}:{T+7}], v[{g+2}:{g+3}]")
        a(f"v_cvt_pk_bf16_f32 v{T}, v{T+4}, v{T+5}")
        a(f"v_cvt_pk_bf16_f32 v{T+1}, v{T+6}, v{T+7}")
        unpack_lo(a, T+4, T); unpack_hi(a, T+5, T); unpack_lo(a, T+6, T+1); unpack_hi(a, T+7, T+1)
        a(f"v_pk_mul_f32 v[{T+4}:{T+5}], v[{T+4}:{T+5}], v[{u_}:{u_+1}]")
        a(f"v_pk_mul_f32 v[{T+6}:{T+7}], v[{T+6}:{T+7}], v[{u_+2}:{u_+3}]")
        a(f"v_cvt_pk_bf16_f32 v{O}, v{T+4}, v{T+5}")
        a(f"v_cvt_pk_bf16_f32 v{O+1}, v{T+6}, v{T+7}")
    for par in range(2):
        if par == 1: a.label("L_g1_epi_odd")
        n = 0
        for t in range(2):
            for c in range(9):
                T2 = c + par
                m, hi = T2 >> 1, T2 & 1
                O = 52 + 4 * ((t*5 + m) & 3)
                group(t, c, 20 + 8*(n & 3), O + 2*hi); n += 1
                so, imm = ("0", m*1024) if m < 4 else ("s45", 0)
                if hi == 1 and c > 0:
                    a(f"buffer_store_dwordx4 v[{O}:{O+3}], v{2+t}, s[20:23], {so} offen offset:{imm}")
                elif hi == 1 and c == 0:
                    a(f"buffer_store_dwordx2 v[{O+2}:{O+3}], v{2+t}, s[20:23], {so} offen offset:{imm+8}")
                elif hi == 0 and c == 8:
                    a(f"buffer_store_dwordx2 v[{O}:{O+1}], v{2+t}, s[20:23], {so} offen offset:{imm}")
        if par == 0: a("s_branch L_g1_epi_done")
    a.label("L_g1_epi_done")
    a.stamp(5)
    a.stamp_flush(6, 8, 0x8000000)
    a.label("L_g1_end")
    a("s_endpgm")
    return desc("gemm1_kernel", 252, 100)

G2_WST = 6144
G2_WV = 3 * G2_WST
G2_Y = 8 * G2_WV
G2_LDS = G2_Y + 12288
def gen_gemm2(a):
    a.kernel_begin("gemm2_kernel")
    a("s_cmp_ge_u32 s2, 256")
    a("s_cbranch_scc1 L_g2_end")
    a("s_cmp_lt_u32 s2, 64")
    a("s_cbranch_scc1 L_g2_pf")
    a("s_sub_u32 s2, s2, 64")
    a.stamp(0)
    a("s_load_dwordx2 s[4:5], s[0:1], 72")
    a("s_load_dwordx2 s[6:7], s[0:1], 0")
    a("s_load_dwordx2 s[8:9], s[0:1], 96")
    a("s_load_dwordx2 s[10:11], s[0:1], 80")
    a("s_load_dwordx2 s[80:81], s[0:1], 88")
    a("v_and_b32 v1, 63, v0")
    a("v_lshrrev_b32 v2, 6, v0")
    a("s_nop 0")
    a("v_readfirstlane_b32 s40, v2")
    a("s_and_b32 s30, s2, 7")
    a("s_lshr_b32 s31, s2, 3")
    a("s_mul_i32 s32, s31, 43")
    a("s_lshr_b32 s32, s32, 8")
    a("s_mul_i32 s33, s32, 6")
    a("s_sub_u32 s31, s31, s33")
    a("s_lshl_b32 s30, s30, 2")
    a("s_add_u32 s32, s32, s30")
    a(f"s_mul_i32 s33, s40, {576*1152}")
    a("s_mul_i32 s34, s31, 192")
    a("s_add_u32 s33, s33, s34")
    a(f"s_mul_i32 s36, s40, {G2_WV}")
    vD, vA, vBa, vBb = 2, 8, 12, 13
    AB, WB, ACC = 20, 84, 108
    NAB, PD2 = 4, 3
    a("s_movk_i32 s45, 5462")
    for i in range(6):
        a(f"v_add_u32 v17, {64*i}, v1")
        a("v_mul_lo_u32 v18, v17, s45")
        a("v_lshrrev_b32 v18, 16, v18")
        a("v_mul_u32_u24 v19, 12, v18")
        a("v_sub_u32 v19, v17, v19")
        a("v_lshrrev_b32 v17, 1, v19")
        a("v_bfe_u32 v16, v18, 2, 1")
        a("v_sub_u32 v17, v17, v16")
        a("v_cmp_gt_i32 vcc, 0, v17")
        a("v_and_b32 v19, 1, v19")
        a("v_lshlrev_b32 v19, 4, v19")
        a("v_cndmask_b32 v17, v17, 5, vcc")
        a("v_lshlrev_b32 v17, 5, v17")
        a("v_mul_u32_u24 v18, 1152, v18")
        a("v_add3_u32 v17, v17, v18, v19")
        a(f"v_mov_b32 v{vD+i}, v17")
    a(f"s_mul_i32 s34, s32, {4*147456}")
    a(f"s_mul_i32 s35, s40, {18*1024}")
    a("s_add_u32 s34, s34, s35")
    a("v_lshlrev_b32 v17, 4, v1")
    a(f"v_add_u32 v{vA}, s34, v17")
    for t in range(1, 4):
        a(f"v_add_u32 v{vA+t}, {147456*t}, v{vA}")
    a("s_waitcnt lgkmcnt(0)")
    a("s_add_u32 s12, s4, s33")
    a("s_addc_u32 s13, s5, 0")
    a(f"s_sub_u32 s14, {SZ_W}, s33")
    a("s_mov_b32 s15, 0x00020000")
    a.srd(16, 8, SZ_H, WS_H)
    a.srd(20, 8, SZ_SD, WS_Y2T)
    a.srd(24, 8, SZ_SD, WS_XN)
    a.srd(72, 6, SZ_SD)
    a.srd(76, 10, SZ_SD)
    def a_loads(j):
        b = AB + 16 * (j % NAB)
        a(f"s_mov_b32 s47, {1024*j}")
        for t in range(4):
            a.vmem(f"buffer_load_dwordx4 v[{b+4*t}:{b+4*t+3}], v{vA+t}, s[16:19], s47 offen", f"A{j}")
    def dma(j):
        st = j % 3
        a(f"s_mov_b32 s46, {j*32*1152}")
        for i in range(6):
            a(f"s_add_u32 m0, s36, {st*G2_WST + 1024*i}")
            a("s_nop 0")
            a.vmem(f"buffer_load_dwordx4 v{vD+i}, s[12:15], s46 offen lds", f"D{j}")
    dma(0); a_loads(0); dma(1); a_loads(1); a_loads(2)
    a("v_lshrrev_b32 v17, 2, v1")
    a("v_mul_u32_u24 v17, 192, v17")
    a("v_and_b32 v18, 3, v1")
    a("v_lshlrev_b32 v18, 3, v18")
    a("v_add3_u32 v17, v17, v18, s36")
    a("v_bfe_u32 v18, v1, 4, 1")
    a("v_lshlrev_b32 v19, 5, v18")
    a(f"v_add_u32 v{vBa}, v17, v19")
    a("v_xor_b32 v18, 1, v18")
    a("v_mul_u32_u24 v18, 160, v18")
    a(f"v_add_u32 v{vBb}, v17, v18")
    for i in range(96):
        a(f"v_mov_b32 v{ACC+i}, 0")
    a.stamp(1)
    units = [(j, ct) for j in range(18) for ct in range(6)]
    def w_reads(U):
        j, ct = units[U]
        r = WB + 4 * (U % (PD2 + 1))
        base = vBa if ct < 5 else vBb
        off = (j % 3)*G2_WST + (32*ct if ct < 5 else 0)
        a.lds(f"ds_read_b64_tr_b16 v[{r}:{r+1}], v{base} offset:{off}", f"W{U}")
        a.lds(f"ds_read_b64_tr_b16 v[{r+2}:{r+3}], v{base} offset:{off+3072}", f"W{U}")
    a.wait_vm("A0")
    a.stamp(2)
    for U in range(PD2):
        w_reads(U)
    for U, (j, ct) in enumerate(units):
        if U == 6*8: a.stamp(3)
        if ct == 0:
            a.wait_vm(f"A{j}")
        if ct == 1:
            if j + 2 < 18: dma(j + 2)
            if j + 3 < 18: a_loads(j + 3)
        if ct == 6 - PD2 and j < 17:
            a.wait_vm(f"D{j+1}")
        if U + PD2 < len(units):
            w_reads(U + PD2)
        a.wait_lg(f"W{U}")
        r = WB + 4 * (U % (PD2 + 1))
        for t in range(4):
            ac = ACC + 4 * (t*6 + ct)
            ar = AB + 16*(j % NAB) + 4*t
            a(f"v_mfma_f32_16x16x32_bf16 v[{ac}:{ac+3}], v[{r}:{r+3}], v[{ar}:{ar+3}], v[{ac}:{ac+3}]")
    a.stamp(4)
    a("v_and_b32 v14, 15, v1")
    a("v_lshrrev_b32 v15, 4, v1")
    XO = 20
    for rho in range(3):
        a(f"s_add_u32 s41, s40, {8*rho}")
        a("s_mul_i32 s42, s41, 43")
        a("s_lshr_b32 s42, s42, 8")
        a("s_mul_i32 s43, s42, 6")
        a("s_sub_u32 s43, s41, s43")
        a("s_lshl_b32 s44, s32, 2")
        a("s_add_u32 s44, s44, s42")
        a("s_mul_i32 s45, s31, 96")
        a("s_lshl_b32 s46, s43, 4")
        a("s_add_u32 s45, s45, s46")
        a("s_mul_i32 s46, s44, 18432")
        a("s_lshl_b32 s47, s45, 1")
        a("s_add_u32 s47, s47, s46")
        a("v_mul_u32_u24 v16, 1152, v14")
        a("v_lshlrev_b32 v17, 3, v15")
        a(f"v_add3_u32 v{XO+rho}, v16, v17, s47")
        a("s_lshr_b32 s47, s45, 6")
        a("s_lshl_b32 s47, s47, 11")
        a("s_add_u32 s46, s46, s47")
        a("s_bfe_u32 s47, s45, 0x20004")
        a("s_lshl_b32 s47, s47, 8")
        a("s_add_u32 s46, s46, s47")
        a("v_lshrrev_b32 v16, 1, v15")
        a("v_lshlrev_b32 v16, 10, v16")
        a("v_lshlrev_b32 v17, 4, v14")
        a("v_add3_u32 v16, v16, v17, s46")
        a("v_and_b32 v17, 1, v15")
        a("v_lshlrev_b32 v17, 3, v17")
        a(f"v_add_u32 v{XO+3+rho}, v16, v17")
        a("s_lshl_b32 s46, s43, 11")
        a("s_lshl_b32 s47, s42, 5")
        a("s_add_u32 s46, s46, s47")
        a(f"s_add_u32 s46, s46, {G2_Y}")
        a("v_lshrrev_b32 v16, 2, v1")
        a("v_lshlrev_b32 v16, 7, v16")
        a("v_and_b32 v17, 3, v1")
        a("v_lshlrev_b32 v17, 3, v17")
        a(f"v_add3_u32 v{XO+6+rho}, v16, v17, s46")
        a(f"buffer_load_dwordx2 v[{30+2*rho}:{31+2*rho}], v{XO+rho}, s[72:75], 0 offen")
        a(f"buffer_load_dwordx2 v[{36+2*rho}:{37+2*rho}], v{XO+3+rho}, s[24:27], 0 offen")
    a.keepbar = True
    a("v_lshlrev_b32 v16, 4, v1")
    a("s_lshl_b32 s41, s40, 13")
    a("v_add_u32 v17, s41, v16")
    a("s_lshl_b32 s41, s40, 10")
    a("v_add_u32 v18, s41, v16")
    a("v_add_u32 v19, 0x10000, v18")
    a("v_add_u32 v16, 0x10000, v17")
    a("s_mov_b32 s82, 256")
    a("s_mov_b32 s83, 0x00020000")
    a("s_lshl_b32 s41, s31, 2")
    a("v_mov_b32 v92, s41")
    a("s_barrier")
    a("s_cmp_lg_u32 s40, 0")
    a("s_cbranch_scc1 L_g2_go")
    a.label("L_g2_poll")
    a("buffer_load_dword v93, v92, s[80:83], 0 offen sc1")
    a("s_waitcnt vmcnt(0)")
    a("v_readfirstlane_b32 s41, v93")
    a("s_nop 3")
    a("s_cmp_ge_u32 s41, 96")
    a("s_cbranch_scc1 L_g2_go")
    a("s_sleep 16")
    a("s_branch L_g2_poll")
    a.label("L_g2_go")
    a("s_barrier")
    a("v_lshrrev_b32 v92, 3, v1")
    a("v_lshlrev_b32 v92, 12, v92")
    a("v_and_b32 v93, 7, v1")
    a("v_lshlrev_b32 v93, 4, v93")
    a("v_add_u32 v92, v92, v93")
    a("s_mul_i32 s34, s31, 96")
    a("s_lshl_b32 s35, s40, 3")
    a("s_add_u32 s34, s34, s35")
    a("s_lshl_b32 s34, s34, 12")
    a("s_lshl_b32 s35, s32, 7")
    a("s_add_u32 s34, s34, s35")
    a("s_cmp_lt_u32 s40, 4")
    a(f"s_cselect_b32 s42, {64*4096}, 0")
    a("s_cselect_b32 s43, 8192, 0")
    a("s_add_u32 s42, s42, s34")
    a("buffer_load_dwordx4 v[96:99], v92, s[20:23], s34 offen sc1")
    a("buffer_load_dwordx4 v[100:103], v92, s[20:23], s42 offen sc1")
    a("s_lshl_b32 s35, s40, 10")
    a(f"s_add_u32 s35, s35, {G2_Y}")
    a("v_lshlrev_b32 v93, 4, v1")
    a("v_add_u32 v93, s35, v93")
    a("v_add_u32 v94, s43, v93")
    RS = 48
    for rho in range(3):
        wb = 17 if rho != 1 else 16
        rb = 18 if rho != 1 else 19
        for zz in range(8):
            z = 8*rho + zz
            a(f"ds_write_b128 v{wb}, v[{ACC+4*z}:{ACC+4*z+3}] offset:{1024*zz}")
        if rho == 2:
            a("s_waitcnt vmcnt(0)")
            a("ds_write_b128 v93, v[96:99]")
            a("ds_write_b128 v94, v[100:103]")
        a("s_waitcnt lgkmcnt(0)")
        a("s_barrier")
        for src in range(8):
            a(f"ds_read_b128 v[{60+4*src}:{63+4*src}], v{rb} offset:{8192*src}")
        if rho == 2:
            for r2 in range(3):
                a(f"ds_read_b64_tr_b16 v[{42+2*r2}:{43+2*r2}], v{XO+6+r2}")
        a("s_waitcnt lgkmcnt(0)")
        for e in range(4):
            a(f"v_add_f32 v{60+e}, v{60+e}, v{64+e}")
            a(f"v_add_f32 v{68+e}, v{68+e}, v{72+e}")
            a(f"v_add_f32 v{76+e}, v{76+e}, v{80+e}")
            a(f"v_add_f32 v{84+e}, v{84+e}, v{88+e}")
        for e in range(4):
            a(f"v_add_f32 v{60+e}, v{60+e}, v{68+e}")
            a(f"v_add_f32 v{76+e}, v{76+e}, v{84+e}")
        for e in range(4):
            a(f"v_add_f32 v{RS+4*rho+e}, v{60+e}, v{76+e}")
    a("s_waitcnt vmcnt(0)")
    for rho in range(3):
        T = 60
        for w in range(2):
            xr, xnr, yr, br = 30+2*rho+w, 36+2*rho+w, 42+2*rho+w, RS+4*rho+2*w
            unpack_lo(a, T, xnr); unpack_hi(a, T+1, xnr)
            unpack_lo(a, T+2, yr); unpack_hi(a, T+3, yr)
            a(f"v_mul_f32 v{T}, v{T}, v{T+2}")
            a(f"v_mul_f32 v{T+1}, v{T+1}, v{T+3}")
            a(f"v_cvt_pk_bf16_f32 v{T+2}, v{T}, v{T+1}")
            unpack_lo(a, T, T+2); unpack_hi(a, T+1, T+2)
            unpack_lo(a, T+3, xr); unpack_hi(a, T+4, xr)
            a(f"v_add_f32 v{T}, v{T}, v{T+3}")
            a(f"v_add_f32 v{T+1}, v{T+1}, v{T+4}")
            a(f"v_cvt_pk_bf16_f32 v{T+2}, v{T}, v{T+1}")
            unpack_lo(a, T, T+2); unpack_hi(a, T+1, T+2)
            a(f"v_cvt_pk_bf16_f32 v{T+2}, v{br}, v{br+1}")
            unpack_lo(a, T+3, T+2); unpack_hi(a, T+4, T+2)
            a(f"v_add_f32 v{T}, v{T}, v{T+3}")
            a(f"v_add_f32 v{T+1}, v{T+1}, v{T+4}")
            a(f"v_cvt_pk_bf16_f32 v{xr}, v{T}, v{T+1}")
        a(f"buffer_store_dwordx2 v[{30+2*rho}:{31+2*rho}], v{XO+rho}, s[76:79], 0 offen")
    a.stamp(5)
    a.stamp_flush(6, 8, 0x8100000)
    a("s_endpgm")
    a.label("L_g2_pf")
    a("s_load_dwordx2 s[44:45], s[0:1], 72")
    a("s_load_dwordx2 s[8:9], s[0:1], 96")
    a("s_load_dwordx4 s[4:7], s[0:1], 32")
    a("s_load_dwordx2 s[36:37], s[0:1], 88")
    a("v_and_b32 v1, 63, v0")
    a("v_lshrrev_b32 v2, 6, v0")
    a("s_nop 0")
    a("v_readfirstlane_b32 s40, v2")
    a("s_lshl_b32 s31, s40, 6")
    a("s_add_u32 s30, s2, s31")
    a(f"s_mul_i32 s31, s40, {CV_SZ}")
    a("s_lshl_b32 s32, s30, 12")
    a("v_lshlrev_b32 v2, 4, v1")
    a("s_waitcnt lgkmcnt(0)")
    a.srd(12, 4, SZ_SD)
    a.srd(16, 6, D*2)
    a.srd(20, 8, SZ_SD, WS_KVT)
    a.srd(24, 8, SZ_SD, WS_Y2T)
    a("s_mov_b32 s38, 256")
    a("s_mov_b32 s39, 0x00020000")
    def cloads(kb, dreg, sd, sdb, slds):
        for i in range(4):
            a(f"buffer_load_dwordx4 v[{kb+6*i}:{kb+3+6*i}], v2, s[12:15], s{sdb} offen offset:{1024*i}")
            a(f"buffer_load_dword v{kb+4+6*i}, v2, s[12:15], s{sdb} offen offset:{1024*i+16}")
        for i in range(4):
            a(f"s_add_u32 m0, s{slds}, {CV_U + 1024*i}")
            a(f"s_add_u32 s33, s{sdb}, {1024*i}")
            a("buffer_load_dwordx4 v2, s[20:23], s33 offen lds")
        a(f"s_lshl_b32 s33, s{sd}, 1")
        a(f"v_mov_b32 v{dreg}, s33")
        a(f"buffer_load_ushort v{dreg}, v{dreg}, s[16:19], 0 offen")
    cloads(48, 3, 30, 32, 31)
    a("s_add_u32 s46, s30, 512")
    a("s_lshl_b32 s47, s46, 12")
    a(f"s_mov_b32 s48, {8*CV_SZ}")
    a("s_cmp_lg_u32 s40, 0")
    a("s_cbranch_scc1 L_g2_pf2")
    cloads(176, 200, 46, 47, 48)
    a.label("L_g2_pf2")
    a("s_and_b32 s50, s2, 7")
    a("s_lshr_b32 s51, s2, 3")
    a("v_lshlrev_b32 v4, 7, v1")
    a(f"s_mul_i32 s52, s40, {576*1152}")
    a("s_lshl_b32 s53, s51, 13")
    a("v_lshrrev_b32 v5, 4, v1")
    a("v_mul_u32_u24 v5, 147456, v5")
    a("v_and_b32 v6, 15, v1")
    a("v_lshlrev_b32 v6, 7, v6")
    a("v_add_u32 v5, v5, v6")
    a("s_lshl_b32 s54, s50, 4")
    a("s_and_b32 s55, s51, 3")
    a("s_lshl_b32 s55, s55, 2")
    a("s_add_u32 s54, s54, s55")
    a("s_mul_i32 s54, s54, 147456")
    a("s_mul_i32 s55, s40, 18432")
    a("s_add_u32 s54, s54, s55")
    a("s_lshr_b32 s55, s51, 2")
    a("s_lshl_b32 s55, s55, 11")
    a("s_add_u32 s54, s54, s55")
    a("s_add_u32 s56, s44, s52")
    a("s_addc_u32 s57, s45, 0")
    a(f"s_mov_b32 s58, {576*1152}")
    a("s_mov_b32 s59, 0x00020000")
    a.srd(60, 8, SZ_H, WS_H)
    a("v_mov_b32 v199, v4")
    a("v_mov_b32 v181, v5")
    def pf(rs):
        for r in rs:
            a(f"buffer_load_dword v201, v199, s[56:59], s53 offen")
            a("s_add_u32 s53, s53, 65536")
            if r % 2 == 0 and r // 2 < 5:
                if r // 2 == 4:
                    a("s_cmp_ge_u32 s51, 4")
                    a("s_cselect_b32 s54, 0x7f000000, s54")
                a(f"buffer_load_dword v201, v181, s[60:63], s54 offen")
                a("s_add_u32 s54, s54, 4096")
    pf(range(0, 4))
    a("s_mov_b32 s49, 0")
    a("v_and_b32 v9, 15, v1")
    a("v_lshrrev_b32 v10, 4, v1")
    a("v_lshlrev_b32 v12, 4, v10")
    a("s_waitcnt vmcnt(6)")
    a.label("L_g2_cv")
    a("v_add_u32 v8, s31, v2")
    a("v_lshlrev_b32 v11, 1, v9")
    a("v_add_u32 v11, v11, v12")
    a("v_and_b32 v14, 1, v9")
    a("v_cmp_eq_u32 vcc, 1, v14")
    a(f"v_mov_b32 v14, {CV_O}")
    a("s_nop 1")
    a("v_cndmask_b32 v14, v14, 2, vcc")
    a("v_add_u32 v11, v11, v14")
    a("v_add_u32 v11, s31, v11")
    a("v_lshlrev_b32 v13, 5, v9")
    a("v_sub_u32 v13, v12, v13")
    a(f"v_add_u32 v13, {CV_U+480}, v13")
    a("v_add_u32 v13, s31, v13")
    KA = [11, 14, 15, 202, 203]
    for i in range(1, 5):
        a(f"v_add_u32 v{KA[i]}, {960*i}, v11")
    a("v_mov_b32 v4, 0"); a("v_mov_b32 v5, 0"); a("v_mov_b32 v6, 0"); a("v_mov_b32 v7, 0")
    a("s_mov_b32 exec_hi, 0")
    a(f"ds_write_b128 v8, v[4:7] offset:{CV_U+4096}")
    a("s_mov_b32 exec_lo, 3")
    a("ds_write_b128 v8, v[4:7]")
    a("s_mov_b32 exec_lo, 1")
    a(f"ds_write_b128 v8, v[4:7] offset:{CV_O}")
    a("s_mov_b64 exec, -1")
    CA = 16; FA = 48; FB = 80
    for i in range(32):
        a(f"v_mov_b32 v{CA+i}, 0")
    for i in range(4):
        b = 48 + 6*i
        a(f"ds_write_b128 v8, v[{b}:{b+3}] offset:{32+1024*i}")
        for t in range(4):
            a(f"v_alignbit_b32 v{112+4*(i&1)+t}, v{b+t+1}, v{b+t}, 16")
        a(f"ds_write_b128 v8, v[{112+4*(i&1)}:{115+4*(i&1)}] offset:{CV_O+32+1024*i}")
        if i == 0:
            a("v_lshlrev_b32 v7, 16, v48")
            a("s_mov_b64 exec, 1")
            a(f"ds_write_b128 v8, v[4:7] offset:{CV_O+16}")
            a("s_mov_b64 exec, -1")
    a("s_waitcnt lgkmcnt(0)")
    def creads(rho):
        o = 64 * (rho & 1)
        for pi in range(8):
            p = 8*pi + rho
            r = FA+o+4*pi
            a(f"ds_read2_b32 v[{r}:{r+1}], v{KA[p//15]} offset0:{16*(p%15)} offset1:{16*(p%15)+1}")
            a(f"ds_read2_b32 v[{r+2}:{r+3}], v{KA[p//15]} offset0:{16*(p%15)+2} offset1:{16*(p%15)+3}")
            w = 8*pi - rho
            a(f"ds_read_b128 v[{FB+o+4*pi}:{FB+o+4*pi+3}], v13 offset:{64*(56-w)}")
    creads(0)
    for rho in range(8):
        a("s_waitcnt lgkmcnt(0)")
        if rho < 7:
            creads(rho + 1)
        o = 64 * (rho & 1)
        for t in range(8):
            for pi in range(t + 1):
                tau = t - pi
                a(f"v_mfma_f32_16x16x32_bf16 v[{CA+4*t}:{CA+4*t+3}], v[{FA+o+4*pi}:{FA+o+4*pi+3}], v[{FB+o+4*tau}:{FB+o+4*tau+3}], v[{CA+4*t}:{CA+4*t+3}]")
    a("v_lshlrev_b32 v3, 16, v3")
    a("v_lshlrev_b32 v14, 5, v9")
    a("v_lshlrev_b32 v15, 3, v10")
    a("v_add_u32 v14, v14, v15")
    a(f"v_sub_u32 v15, {CV_U+504}, v14")
    a("v_add_u32 v15, s31, v15")
    a("v_add_u32 v14, s32, v14")
    for t in range(8):
        a(f"ds_read_b64 v[{48+2*t}:{49+2*t}], v15 offset:{512*(7-t)}")
    a("s_waitcnt lgkmcnt(0)")
    for t in range(8):
        y = CA + 4*t; kq = 48 + 2*t; T = 64 + 8*(t & 1)
        unpack_hi(a, T, kq+1); unpack_lo(a, T+1, kq+1); unpack_hi(a, T+2, kq); unpack_lo(a, T+3, kq)
        for i in range(4):
            a(f"v_mul_f32 v{T+i}, v{T+i}, v3")
        a(f"v_cvt_pk_bf16_f32 v{T+4}, v{T}, v{T+1}")
        a(f"v_cvt_pk_bf16_f32 v{T+5}, v{T+2}, v{T+3}")
        a(f"v_cvt_pk_bf16_f32 v{T+6}, v{y}, v{y+1}")
        a(f"v_cvt_pk_bf16_f32 v{T+7}, v{y+2}, v{y+3}")
        unpack_lo(a, T, T+4); unpack_hi(a, T+1, T+4); unpack_lo(a, T+2, T+5); unpack_hi(a, T+3, T+5)
        unpack_lo(a, y, T+6); unpack_hi(a, y+1, T+6); unpack_lo(a, y+2, T+7); unpack_hi(a, y+3, T+7)
        for i in range(4):
            a(f"v_add_f32 v{T+i}, v{T+i}, v{y+i}")
        a(f"v_cvt_pk_bf16_f32 v{y}, v{T}, v{T+1}")
        a(f"v_cvt_pk_bf16_f32 v{y+1}, v{T+2}, v{T+3}")
        a(f"buffer_store_dwordx2 v[{y}:{y+1}], v14, s[24:27], 0 offen offset:{512*t} sc1")
    a("s_mul_i32 s33, s30, 683")
    a("s_lshr_b32 s33, s33, 16")
    a("s_lshl_b32 s33, s33, 2")
    a("s_cmp_lg_u32 s40, 0")
    a("s_cbranch_scc1 L_g2_pub")
    a("s_cmp_ge_u32 s30, 512")
    a("s_cbranch_scc1 L_g2_pub2")
    a("s_mov_b32 s49, s33")
    a("s_mov_b32 s30, s46")
    a("s_mov_b32 s32, s47")
    a("s_mov_b32 s31, s48")
    for i in range(24):
        a(f"v_mov_b32 v{48+i}, v{176+i}")
    a("v_mov_b32 v3, v200")
    a("s_branch L_g2_cv")
    a.label("L_g2_pub2")
    a("v_mov_b32 v14, s49")
    a("v_mov_b32 v15, 1")
    a("s_waitcnt vmcnt(0)")
    a("s_mov_b64 exec, 1")
    a("buffer_atomic_add v15, v14, s[36:39], 0 offen")
    a("s_mov_b64 exec, -1")
    a.label("L_g2_pub")
    a("v_mov_b32 v14, s33")
    a("v_mov_b32 v15, 1")
    a("s_waitcnt vmcnt(0)")
    a("s_mov_b64 exec, 1")
    a("buffer_atomic_add v15, v14, s[36:39], 0 offen")
    a("s_mov_b64 exec, -1")
    pf(range(4, 11))
    a.label("L_g2_end")
    a("s_endpgm")
    return desc("gemm2_kernel", 204, 84)

def gen_final(a):
    a.kernel_begin("final_kernel")
    a("s_cmp_ge_u32 s2, 288")
    a("s_cbranch_scc1 L_fin_end")
    a("s_load_dwordx2 s[4:5], s[0:1], 0")
    a("s_load_dwordx2 s[6:7], s[0:1], 80")
    a("s_load_dwordx2 s[8:9], s[0:1], 96")
    a("s_and_b32 s32, s2, 31")
    a("s_lshr_b32 s33, s2, 5")
    a("s_waitcnt lgkmcnt(0)")
    a.srd(12, 4, SZ_SD)
    a.srd(16, 6, SZ_SD)
    a.srd(20, 8, SZ_SD, WS_XN)
    a.srd(24, 8, SZ_SD, WS_Y2T)
    a.srd(28, 8, SZ_P, WS_P)
    a("v_lshrrev_b32 v1, 2, v0")
    a("v_and_b32 v2, 3, v0")
    a("v_lshlrev_b32 v3, 12, v1")
    a("v_lshlrev_b32 v4, 5, v2")
    a("v_add_u32 v3, v3, v4")
    a("s_lshl_b32 s34, s33, 18")
    a("s_lshl_b32 s35, s32, 7")
    a("s_add_u32 s34, s34, s35")
    a("v_add_u32 v3, s34, v3")
    a("buffer_load_dwordx4 v[8:11], v3, s[24:27], 0 offen")
    a("buffer_load_dwordx4 v[12:15], v3, s[24:27], 0 offen offset:16")
    a("v_mul_u32_u24 v5, 136, v1")
    a("v_add_u32 v5, v5, v4")
    a("v_lshrrev_b32 v6, 3, v0")
    a("v_and_b32 v7, 7, v0")
    a("s_lshl_b32 s34, s32, 6")
    a("v_add_u32 v16, s34, v6")
    a("v_lshrrev_b32 v20, 4, v16")
    a("v_mul_u32_u24 v20, 18432, v20")
    a("v_and_b32 v21, 15, v16")
    a("v_lshlrev_b32 v21, 4, v21")
    a("v_add_u32 v20, v20, v21")
    a("v_and_b32 v21, 1, v7")
    a("v_lshlrev_b32 v21, 10, v21")
    a("v_add_u32 v20, v20, v21")
    a("v_lshrrev_b32 v21, 1, v7")
    a("v_lshlrev_b32 v21, 8, v21")
    a("v_add_u32 v20, v20, v21")
    a("s_lshl_b32 s35, s33, 11")
    a("v_add_u32 v22, s35, v20")
    a(f"v_add_u32 v23, {2*18432}, v22")
    a("v_mul_u32_u24 v16, 1152, v16")
    a("v_lshlrev_b32 v17, 4, v7")
    a("s_lshl_b32 s35, s33, 7")
    a("v_add_u32 v17, s35, v17")
    a("v_add_u32 v16, v16, v17")
    a(f"v_add_u32 v17, {32*1152}, v16")
    a("v_lshlrev_b32 v18, 1, v16")
    a("v_lshlrev_b32 v19, 1, v17")
    for it in range(2):
        b = 24 + 40*it
        a(f"buffer_load_dwordx4 v[{b}:{b+3}], v{16+it}, s[12:15], 0 offen")
        a(f"buffer_load_dwordx4 v[{b+4}:{b+7}], v{22+it}, s[20:23], 0 offen")
        for ks in range(4):
            a(f"s_mov_b32 s36, {ks*S*D*4}")
            a(f"buffer_load_dwordx4 v[{b+8+8*ks}:{b+11+8*ks}], v{18+it}, s[28:31], s36 offen")
            a(f"buffer_load_dwordx4 v[{b+12+8*ks}:{b+15+8*ks}], v{18+it}, s[28:31], s36 offen offset:16")
    a("s_waitcnt vmcnt(20)")
    for m in range(4):
        a(f"ds_write_b64 v5, v[{8+2*m}:{9+2*m}] offset:{8*m}")
    a("s_waitcnt lgkmcnt(0)")
    a("s_barrier")
    a("v_mul_u32_u24 v20, 1088, v7")
    a("v_lshlrev_b32 v21, 1, v6")
    a("v_add_u32 v20, v20, v21")
    for it in range(2):
        for c in range(8):
            a(f"ds_read_u16 v{104+8*it+c}, v20 offset:{136*c + 64*it}")
    a("s_waitcnt vmcnt(0) lgkmcnt(0)")
    for it in range(2):
        b = 24 + 40*it
        for w in range(4):
            T = 120
            y0, y1 = 104 + 8*it + 2*w, 104 + 8*it + 2*w + 1
            unpack_lo(a, y0, y0); unpack_lo(a, y1, y1)
            unpack_lo(a, T, b+4+w); unpack_hi(a, T+1, b+4+w)
            a(f"v_mul_f32 v{T}, v{T}, v{y0}")
            a(f"v_mul_f32 v{T+1}, v{T+1}, v{y1}")
            a(f"v_cvt_pk_bf16_f32 v{T+2}, v{T}, v{T+1}")
            unpack_lo(a, T, T+2); unpack_hi(a, T+1, T+2)
            unpack_lo(a, T+3, b+w); unpack_hi(a, T+4, b+w)
            a(f"v_add_f32 v{T}, v{T}, v{T+3}")
            a(f"v_add_f32 v{T+1}, v{T+1}, v{T+4}")
            a(f"v_cvt_pk_bf16_f32 v{T+2}, v{T}, v{T+1}")
            unpack_lo(a, T, T+2); unpack_hi(a, T+1, T+2)
            p = b + 8 + 2*w
            a(f"v_add_f32 v{T+3}, v{p}, v{p+8}")
            a(f"v_add_f32 v{T+4}, v{p+1}, v{p+9}")
            a(f"v_add_f32 v{T+5}, v{p+16}, v{p+24}")
            a(f"v_add_f32 v{T+6}, v{p+17}, v{p+25}")
            a(f"v_add_f32 v{T+3}, v{T+3}, v{T+5}")
            a(f"v_add_f32 v{T+4}, v{T+4}, v{T+6}")
            a(f"v_cvt_pk_bf16_f32 v{T+2}, v{T+3}, v{T+4}")
            unpack_lo(a, T+3, T+2); unpack_hi(a, T+4, T+2)
            a(f"v_add_f32 v{T}, v{T}, v{T+3}")
            a(f"v_add_f32 v{T+1}, v{T+1}, v{T+4}")
            a(f"v_cvt_pk_bf16_f32 v{b+w}, v{T}, v{T+1}")
        a(f"buffer_store_dwordx4 v[{b}:{b+3}], v{16+it}, s[16:19], 0 offen")
    a.label("L_fin_end")
    a("s_endpgm")
    return desc("final_kernel", 128)

def main(path):
    hdr = open("parallel_sum__ssm_conv_h3__glu_gated_swiglu__prompt.s.ref").read().split("\n")
    head = [l for l in hdr if l.startswith(";") and "@launch" not in l and "Override launch" not in l and "grid=ceil" not in l]
    launches = [
        "; @launch kernel=front_kernel grid=(480,1,1) block=(256,1,1) lds=8704",
        f"; @launch kernel=gemm1_kernel grid=(256,1,1) block=(512,1,1) lds={NST*STAGE}",
        f"; @launch kernel=gemm2_kernel grid=(256,1,1) block=(512,1,1) lds={G2_LDS}",
    ]
    a = Asm()
    descs = [gen_front(a), gen_gemm1(a), gen_gemm2(a)]
    out = "\n".join(head + launches) + "\n"
    out += '.amdgcn_target "amdgcn-amd-amdhsa--gfx950"\n.text\n'
    out += "\n".join(a.l) + "\n"
    out += '.section .rodata,"a"\n'
    for d in descs:
        out += ".p2align 6\n" + d
    open(path, "w").write(out)

if __name__ == "__main__":
    main(sys.argv[1] if len(sys.argv) > 1 else "parallel_sum__ssm_conv_h3__glu_gated_swiglu__prompt.s")
```

```python
import sys, os
FL = set(os.environ.get('FL','').split(','))

S, D, F = 2048, 576, 4608
WS_XN, WS_KVT, WS_Y2T, WS_H, WS_P = 0x0, 0x400000, 0x800000, 0x1000000, 0x3000000
WS_FL = 0x3800000
SZ_SD = S * D * 2
SZ_W = D * F * 2
SZ_H = S * F * 2
SZ_P = 4 * S * D * 4

class Asm:
    def __init__(self):
        self.l = []
        self.gemm = False
        self.keepbar = False
        self.vm = []
        self.lg = []
    def __call__(self, s):
        if self.gemm:
            if 'nomfma' in FL and s.startswith('v_mfma'): return
            if 'nolds' in FL and s.startswith('ds_read_b64_tr'): return
            if 'nodma' in FL and s.endswith('offen lds'): return
            if 'noa' in FL and s.startswith('buffer_load_dwordx4 v['): return
            if 'nobar' in FL and s.startswith('s_barrier') and not self.keepbar: return
            if 'nostore' in FL and s.startswith('buffer_store'): return
        self.l.append("    " + s)
    def label(self, s):
        self.l.append(s + ":")
    def c(self, s):
        self.l.append("    ; " + s)
    def vmem(self, s, tag):
        self(s); self.vm.append(tag)
    def lds(self, s, tag):
        self(s); self.lg.append(tag)
    def wait_vm(self, tag):
        if tag not in self.vm: return
        idx = max(i for i, t in enumerate(self.vm) if t == tag)
        n = len(self.vm) - 1 - idx
        assert n <= 63
        self(f"s_waitcnt vmcnt({n})")
        self.vm = self.vm[idx + 1:]
    def wait_lg(self, tag):
        if tag not in self.lg: return
        idx = max(i for i, t in enumerate(self.lg) if t == tag)
        n = len(self.lg) - 1 - idx
        assert n <= 15, n
        self(f"s_waitcnt lgkmcnt({n})")
        self.lg = self.lg[idx + 1:]
    def wait_all(self):
        self("s_waitcnt vmcnt(0) lgkmcnt(0)")
        self.vm = []; self.lg = []
    def srd(self, d, base, size, off=0):
        if off:
            self(f"s_add_u32 s{d}, s{base}, {off}")
            self(f"s_addc_u32 s{d+1}, s{base+1}, 0")
        else:
            self(f"s_mov_b32 s{d}, s{base}")
            self(f"s_mov_b32 s{d+1}, s{base+1}")
        self(f"s_mov_b32 s{d+2}, {size}")
        self(f"s_mov_b32 s{d+3}, 0x00020000")
    def stamp(self, i):
        if 'stamp' not in FL: return
        self(f"s_memtime s[{50+2*i}:{51+2*i}]")
        if i == 0: self("s_memrealtime s[62:63]")
    def stamp_flush(self, n, wsb, base):
        if 'stamp' not in FL: return
        self("s_memrealtime s[64:65]")
        self("s_waitcnt lgkmcnt(0)")
        self(f"s_add_u32 s68, s{wsb}, {base}")
        self(f"s_addc_u32 s69, s{wsb+1}, 0")
        self("s_mov_b32 s70, 0x100000")
        self("s_mov_b32 s71, 0x00020000")
        self("s_lshl_b32 s66, s2, 9")
        self("s_lshl_b32 s67, s40, 6")
        self("s_add_u32 s66, s66, s67")
        self("v_mov_b32 v5, s66")
        for i in range(8):
            self(f"v_mov_b32 v6, s{50+2*i}")
            self(f"v_mov_b32 v7, s{51+2*i}")
            self(f"buffer_store_dwordx2 v[6:7], v5, s[68:71], 0 offen offset:{8*i}")
            self("s_nop 1")
    def kernel_begin(self, name):
        self.l.append(f".globl {name}")
        self.l.append(".p2align 8")
        self.l.append(f".type {name},@function")
        self.label(name)
        self.gemm = name.startswith('gemm'); self.keepbar = False
        self.vm = []; self.lg = []

def vr(b, n=1):
    return f"v{b}" if n == 1 else f"v[{b}:{b+n-1}]"

def desc(name, vgpr, sgpr=80):
    acc = (vgpr + 3) // 4 * 4
    return f""".amdhsa_kernel {name}
  .amdhsa_next_free_vgpr {vgpr}
  .amdhsa_next_free_sgpr {sgpr}
  .amdhsa_accum_offset {acc}
  .amdhsa_group_segment_fixed_size 0
  .amdhsa_kernarg_size 104
  .amdhsa_user_sgpr_count 2
  .amdhsa_user_sgpr_kernarg_segment_ptr 1
  .amdhsa_system_sgpr_workgroup_id_x 1
  .amdhsa_float_denorm_mode_32 3
.end_amdhsa_kernel
"""

def unpack_lo(a, d, s): a(f"v_lshlrev_b32 v{d}, 16, v{s}")
def unpack_hi(a, d, s): a(f"v_and_b32 v{d}, 0xffff0000, v{s}")

CV_O, CV_U, CV_SZ = 4224, 8448, 13056
def gen_front(a):
    a.kernel_begin("front_kernel")
    a("s_cmp_ge_u32 s2, 480")
    a("s_cbranch_scc1 L_fr_end")
    a("s_cmp_lt_u32 s2, 64")
    a("s_cbranch_scc1 L_fr_pf")
    a("s_cmp_ge_u32 s2, 192")
    a("s_cbranch_scc1 L_fr_kv")
    a("s_load_dwordx2 s[4:5], s[0:1], 0")
    a("s_load_dwordx2 s[14:15], s[0:1], 96")
    a("s_waitcnt lgkmcnt(0)")
    a.srd(16, 4, SZ_SD)
    a.srd(20, 14, SZ_SD, WS_XN)
    a("s_sub_u32 s3, s2, 64")
    a("s_lshl_b32 s3, s3, 4")
    a("v_lshrrev_b32 v1, 4, v0")
    a("v_add_u32 v1, s3, v1")
    a("v_and_b32 v2, 15, v0")
    a("v_mul_u32_u24 v3, 1152, v1")
    a("v_lshlrev_b32 v4, 3, v2")
    a("v_add_u32 v3, v3, v4")
    for i in range(9):
        a(f"buffer_load_dwordx2 v[{8+2*i}:{9+2*i}], v3, s[16:19], 0 offen offset:{128*i}")
    a("v_lshrrev_b32 v4, 4, v1")
    a("v_mul_u32_u24 v4, 18432, v4")
    a("v_and_b32 v5, 15, v1")
    a("v_lshlrev_b32 v5, 4, v5")
    a("v_add_u32 v4, v4, v5")
    a("v_lshrrev_b32 v5, 2, v2")
    a("v_lshlrev_b32 v5, 8, v5")
    a("v_add_u32 v4, v4, v5")
    a("v_lshrrev_b32 v5, 1, v2")
    a("v_and_b32 v5, 1, v5")
    a("v_lshlrev_b32 v5, 10, v5")
    a("v_add_u32 v4, v4, v5")
    a("v_and_b32 v5, 1, v2")
    a("v_lshlrev_b32 v5, 3, v5")
    a("v_add_u32 v1, v4, v5")
    a("s_waitcnt vmcnt(0)")
    X = 32
    for i in range(18):
        unpack_lo(a, X + 2*i, 8 + i)
        unpack_hi(a, X + 2*i + 1, 8 + i)
    a(f"v_add_f32 v2, v{X}, v{X+1}")
    a(f"v_add_f32 v3, v{X+2}, v{X+3}")
    for i in range(4, 36, 2):
        a(f"v_add_f32 v2, v2, v{X+i}")
        a(f"v_add_f32 v3, v3, v{X+i+1}")
    a("v_add_f32 v2, v2, v3")
    def red16(r, t):
        a("s_nop 1")
        a(f"v_add_f32_dpp v{t}, v{r}, v{r} quad_perm:[1,0,3,2] row_mask:0xf bank_mask:0xf")
        a("s_nop 1")
        a(f"v_add_f32_dpp v{r}, v{t}, v{t} quad_perm:[2,3,0,1] row_mask:0xf bank_mask:0xf")
        a("s_nop 1")
        a(f"v_add_f32_dpp v{t}, v{r}, v{r} row_half_mirror row_mask:0xf bank_mask:0xf")
        a("s_nop 1")
        a(f"v_add_f32_dpp v{r}, v{t}, v{t} row_mirror row_mask:0xf bank_mask:0xf")
    red16(2, 3)
    a("s_mov_b32 s24, 0x3ae38e39")
    a("v_mul_f32 v2, s24, v2")
    a("v_mov_b32 v4, 0")
    a("v_mov_b32 v5, 0")
    for i in range(0, 36, 2):
        a(f"v_sub_f32 v6, v{X+i}, v2")
        a(f"v_sub_f32 v7, v{X+i+1}, v2")
        a("v_fmac_f32 v4, v6, v6")
        a("v_fmac_f32 v5, v7, v7")
    a("v_add_f32 v4, v4, v5")
    red16(4, 5)
    a("v_mul_f32 v4, s24, v4")
    a("v_cvt_pk_bf16_f32 v5, v2, v4")
    unpack_lo(a, 2, 5)
    unpack_hi(a, 4, 5)
    a("v_add_f32 v4, 0x3727c5ac, v4")
    a("v_cvt_pk_bf16_f32 v4, v4, v4")
    unpack_hi(a, 4, 4)
    a("v_sqrt_f32 v4, v4")
    a("s_nop 0")
    a("v_cvt_pk_bf16_f32 v4, v4, v4")
    unpack_hi(a, 4, 4)
    a("v_rcp_f32 v5, v4")
    a("s_nop 0")
    for i in range(18):
        x0, x1 = X + 2*i, X + 2*i + 1
        a(f"v_sub_f32 v{x0}, v{x0}, v2")
        a(f"v_sub_f32 v{x1}, v{x1}, v2")
        a(f"v_cvt_pk_bf16_f32 v6, v{x0}, v{x1}")
        unpack_lo(a, x0, 6)
        unpack_hi(a, x1, 6)
        a(f"v_mul_f32 v6, v{x0}, v5")
        a(f"v_mul_f32 v7, v{x1}, v5")
        a(f"v_fma_f32 v{x0}, -v6, v4, v{x0}")
        a(f"v_fma_f32 v{x1}, -v7, v4, v{x1}")
        a(f"v_fma_f32 v6, v{x0}, v5, v6")
        a(f"v_fma_f32 v7, v{x1}, v5, v7")
        a(f"v_cvt_pk_bf16_f32 v{8+i}, v6, v7")
    for i in range(9):
        a(f"s_mov_b32 s25, {2048*i}")
        a(f"buffer_store_dwordx2 v[{8+2*i}:{9+2*i}], v1, s[20:23], s25 offen")
    a("s_endpgm")
    a.label("L_fr_pf")
    a("s_load_dwordx4 s[4:7], s[0:1], 56")
    a("s_load_dwordx2 s[8:9], s[0:1], 32")
    a("s_load_dwordx2 s[10:11], s[0:1], 96")
    a("v_and_b32 v1, 63, v0")
    a("v_lshrrev_b32 v2, 6, v0")
    a("s_nop 0")
    a("v_readfirstlane_b32 s40, v2")
    a("s_and_b32 s30, s2, 7")
    a("s_mul_i32 s30, s30, 1152")
    a("s_mov_b32 s31, s2")
    a("s_lshr_b32 s31, s31, 3")
    a("s_lshl_b32 s31, s31, 2")
    a("s_add_u32 s31, s31, s40")
    a(f"s_mul_i32 s31, s31, {7*9216}")
    a("v_mul_u32_u24 v2, 57, v1")
    a("v_lshrrev_b32 v2, 9, v2")
    a("v_mul_u32_u24 v3, 9, v2")
    a("v_sub_u32 v3, v1, v3")
    a("v_mul_u32_u24 v2, 9216, v2")
    a("v_lshlrev_b32 v3, 7, v3")
    a("v_add_u32 v2, v2, v3")
    a("s_waitcnt lgkmcnt(0)")
    a.srd(24, 10, 128*128, WS_FL)
    a("s_cmp_lg_u32 s2, 0")
    a("s_cbranch_scc1 L_fr_pf1")
    a("v_lshlrev_b32 v4, 7, v0")
    a("v_mov_b32 v5, 0")
    a("buffer_store_dword v5, v4, s[24:27], 0 offen")
    a.label("L_fr_pf1")
    for m in range(2):
        a(f"s_add_u32 s{12+4*m}, s{4+2*m}, s30")
        a(f"s_addc_u32 s{13+4*m}, s{5+2*m}, 0")
        a(f"s_sub_u32 s{14+4*m}, {SZ_W}, s30")
        a(f"s_mov_b32 s{15+4*m}, 0x00020000")
    for r in range(0 if 'nofpf' in FL else (1 if 'fpf1' in FL else 3)):
        a(f"buffer_load_dword v{8+2*r}, v2, s[12:15], s31 offen")
        a(f"buffer_load_dword v{9+2*r}, v2, s[16:19], s31 offen")
        a(f"s_add_u32 s31, s31, {32*7*9216}")
    a.srd(20, 8, SZ_SD)
    a("s_mov_b32 s31, s2")
    a("s_lshl_b32 s31, s31, 2")
    a("s_add_u32 s31, s31, s40")
    a("s_lshl_b32 s31, s31, 13")
    a("v_lshlrev_b32 v3, 7, v1")
    a("buffer_load_dword v16, v3, s[20:23], s31 offen")
    a(f"s_add_u32 s31, s31, {256*8192}")
    a("buffer_load_dword v17, v3, s[20:23], s31 offen")
    a("s_endpgm")
    a.label("L_fr_kv")
    a("s_load_dwordx4 s[8:11], s[0:1], 8")
    a("s_load_dwordx2 s[12:13], s[0:1], 24")
    a("s_load_dwordx2 s[14:15], s[0:1], 96")
    a("s_waitcnt lgkmcnt(0)")
    a.srd(16, 8, SZ_SD)
    a.srd(20, 10, SZ_SD)
    a.srd(24, 12, D * 8)
    a.srd(28, 14, SZ_SD, WS_KVT)
    a("s_sub_u32 s3, s2, 192")
    a("s_and_b32 s32, s3, 31")
    a("s_lshr_b32 s33, s3, 5")
    a("v_lshrrev_b32 v1, 3, v0")
    a("v_and_b32 v2, 7, v0")
    a("s_lshl_b32 s34, s32, 6")
    a("v_lshlrev_b32 v3, 1, v1")
    a("v_add_u32 v3, s34, v3")
    a("s_lshl_b32 s35, s33, 7")
    a("v_lshlrev_b32 v4, 4, v2")
    a("v_add_u32 v4, s35, v4")
    a("v_mul_u32_u24 v5, 1152, v3")
    a("v_add_u32 v5, v5, v4")
    for r in range(5):
        a(f"v_add_u32 v{6+r}, {(r-3)*1152 & 0xffffffff}, v5")
    for r in range(5):
        a(f"buffer_load_dwordx4 v[{12+4*r}:{15+4*r}], v{6+r}, s[16:19], 0 offen")
    a("buffer_load_dwordx4 v[32:35], v5, s[20:23], 0 offen")
    a("buffer_load_dwordx4 v[36:39], v5, s[20:23], 0 offen offset:1152")
    a("v_lshlrev_b32 v11, 2, v4")
    for i in range(4):
        a(f"buffer_load_dwordx4 v[{40+4*i}:{43+4*i}], v11, s[24:27], 0 offen offset:{16*i}")
    a("v_mul_u32_u24 v56, 1088, v2")
    a("v_sub_u32 v57, 31, v1")
    a("v_lshlrev_b32 v57, 2, v57")
    a("v_add_u32 v56, v56, v57")
    a("s_waitcnt vmcnt(0)")
    for c in range(8):
        w, hi = c >> 1, c & 1
        up = unpack_hi if hi else unpack_lo
        for r in range(5):
            up(a, 60 + r, 12 + 4*r + w)
        up(a, 65, 32 + w); up(a, 66, 36 + w)
        unpack_lo(a, 67, 40 + 2*c); unpack_hi(a, 68, 40 + 2*c)
        unpack_lo(a, 69, 41 + 2*c); unpack_hi(a, 70, 41 + 2*c)
        for step, j in enumerate([3, 2, 1, 0]):
            kk0 = 60 + (3 - j); kk1 = kk0 + 1
            a(f"v_mul_f32 v71, v{kk0}, v{67+j}")
            a(f"v_mul_f32 v72, v{kk1}, v{67+j}")
            a("v_cvt_pk_bf16_f32 v73, v71, v72")
            if step == 0:
                unpack_lo(a, 74, 73); unpack_hi(a, 75, 73)
            else:
                unpack_lo(a, 71, 73); unpack_hi(a, 72, 73)
                a("v_add_f32 v74, v74, v71")
                a("v_add_f32 v75, v75, v72")
                a("v_cvt_pk_bf16_f32 v73, v74, v75")
                unpack_lo(a, 74, 73); unpack_hi(a, 75, 73)
        a("v_mul_f32 v74, v74, v65")
        a("v_mul_f32 v75, v75, v66")
        a("v_cvt_pk_bf16_f32 v73, v75, v74")
        a(f"ds_write_b32 v56, v73 offset:{136*c}")
    a("s_waitcnt lgkmcnt(0)")
    a("s_barrier")
    a("v_lshrrev_b32 v1, 2, v0")
    a("v_and_b32 v2, 3, v0")
    a("v_mul_u32_u24 v3, 136, v1")
    a("v_lshlrev_b32 v4, 5, v2")
    a("v_add_u32 v3, v3, v4")
    for m in range(4):
        a(f"ds_read_b64 v[{8+2*m}:{9+2*m}], v3 offset:{8*m}")
    a("s_lshl_b32 s36, s33, 18")
    a("s_lshl_b32 s37, s32, 7")
    a("s_sub_u32 s36, s36, s37")
    a("s_add_u32 s36, s36, 3968")
    a("v_lshlrev_b32 v5, 12, v1")
    a("v_add_u32 v5, v5, v4")
    a("v_add_u32 v5, s36, v5")
    a("s_waitcnt lgkmcnt(0)")
    a("buffer_store_dwordx4 v[8:11], v5, s[28:31], 0 offen")
    a("buffer_store_dwordx4 v[12:15], v5, s[28:31], 0 offen offset:16")
    a.label("L_fr_end")
    a("s_endpgm")
    return desc("front_kernel", 128)

STAGE = 36864
NST = 4
PD = 5

def gemm_setup_dma(a, row_bytes, vD, sW, sH, perm):
    a("s_and_b32 s41, s40, 3")
    a("s_lshr_b32 s42, s40, 2")
    a("s_mul_i32 s43, s42, 18432")
    a("s_lshl_b32 s44, s41, 12")
    a(f"s_add_u32 s{sW}, s43, s44")
    a("s_lshl_b32 s44, s41, 9")
    a("s_add_u32 s44, s44, 16384")
    a(f"s_add_u32 s{sH}, s43, s44")
    a("s_movk_i32 s45, 3641")
    for i in range(5):
        if i < 4:
            a("s_lshl_b32 s44, s41, 8")
            a(f"s_add_u32 s44, s44, {64*i}")
        else:
            a("s_lshl_b32 s44, s41, 5")
            a("s_add_u32 s44, s44, 1024")
        a("v_add_u32 v17, s44, v1")
        a("v_mul_lo_u32 v18, v17, s45")
        a("v_lshrrev_b32 v18, 16, v18")
        a("v_mul_u32_u24 v19, 18, v18")
        a("v_sub_u32 v19, v17, v19")
        if perm:
            a("v_lshrrev_b32 v17, 4, v18")
            a("v_and_b32 v17, 1, v17")
            a("v_lshlrev_b32 v17, 2, v17")
            a("v_xor_b32 v18, v18, v17")
        a(f"v_mul_u32_u24 v18, {row_bytes}, v18")
        a("v_lshlrev_b32 v19, 4, v19")
        a(f"v_add_u32 v{vD+i}, v18, v19")

def gemm_dma(a, j, vD, sW, sH, srdW, kstep_bytes):
    st = j % NST
    a(f"s_mov_b32 s46, {j*kstep_bytes}")
    for i in range(4):
        a(f"s_add_u32 m0, s{sW}, {st*STAGE + 1024*i}")
        a("s_nop 0")
        a.vmem(f"buffer_load_dwordx4 v{vD+i}, s[{srdW}:{srdW+3}], s46 offen lds", f"D{j}")
    a(f"s_add_u32 m0, s{sH}, {st*STAGE}")
    a("s_mov_b32 exec_hi, 0")
    a.vmem(f"buffer_load_dwordx4 v{vD+4}, s[{srdW}:{srdW+3}], s46 offen lds", f"D{j}")
    a("s_mov_b32 exec_hi, -1")

def gemm_loop(a, units, NU, NAB, w_reads, mfmas, a_loads, dma, early, late=None, NJ=9, NS=4, PD=PD, hooks=None):
    a.wait_vm("A0")
    a("s_barrier")
    a.stamp(2)
    for U in range(PD):
        w_reads(U)
    for U, un in enumerate(units):
        j = un[0]; u = U % NU
        if U == NU*4 and not ('st2' in FL and NJ != 9): a.stamp(3)
        if u == 0 and j > 0:
            a.wait_vm(f"A{j}")
            if j + NAB - 1 <= NJ - 1:
                a_loads(j + NAB - 1)
        if j == 0 and u in early:
            early[u]()
        if j == NJ - 1 and u == 2 and late: late()
        if hooks and (j, u) in hooks: hooks[(j, u)]()
        if u == NU - PD and j < NJ - 1:
            a.wait_vm(f"D{j+1}")
            a("s_barrier")
            if j + NS - 1 <= NJ - 1:
                dma(j + NS - 1)
        if U + PD < len(units):
            w_reads(U + PD)
        a.wait_lg(f"W{U}")
        mfmas(U)

CVB = 3 * 36864
G1_LDS = CVB + 4 * CV_SZ
def conv_head_loads(a):
    a("s_lshr_b32 s80, s40, 1")
    a("s_lshl_b32 s81, s80, 8")
    a("s_add_u32 s81, s81, s2")
    a("s_cmp_lt_u32 s81, 576")
    a("s_cselect_b32 s82, 1, 0")
    a("s_min_u32 s81, s81, 575")
    a(f"s_mul_i32 s83, s80, {CV_SZ}")
    a(f"s_add_u32 s83, s83, {CVB}")
    a("s_lshl_b32 s84, s81, 12")
    a.srd(88, 72, SZ_SD)
    a.srd(92, 74, D*2)
    a.srd(96, 8, SZ_SD, WS_KVT)
    a("v_lshlrev_b32 v212, 4, v1")
    for i in range(4):
        a.vmem(f"buffer_load_dwordx4 v[{84+8*i}:{87+8*i}], v212, s[88:91], s84 offen offset:{1024*i}", "CK")
        a.vmem(f"buffer_load_dword v{88+8*i}, v212, s[88:91], s84 offen offset:{1024*i+16}", "CK")
    for i in range(4):
        a(f"s_add_u32 m0, s83, {CV_U + 1024*i}")
        a(f"s_add_u32 s85, s84, {1024*i}")
        a.vmem("buffer_load_dwordx4 v212, s[96:99], s85 offen lds", "CU")
    a("s_lshl_b32 s85, s81, 1")
    a("v_mov_b32 v213, s85")
    a.vmem("buffer_load_ushort v213, v213, s[92:95], 0 offen", "CU")

def conv_head_compute(a):
    Z = 216
    for i in range(4): a(f"v_mov_b32 v{Z+i}, 0")
    a("v_add_u32 v214, s83, v212")
    a("s_mov_b32 exec_hi, 0")
    a(f"ds_write_b128 v214, v[{Z}:{Z+3}] offset:{CV_U+4096}")
    a("s_mov_b32 exec_lo, 3")
    a(f"ds_write_b128 v214, v[{Z}:{Z+3}]")
    a("s_mov_b32 exec_lo, 1")
    a(f"ds_write_b128 v214, v[{Z}:{Z+3}] offset:{CV_O}")
    a("s_mov_b64 exec, -1")
    a("v_and_b32 v220, 15, v1")
    a("v_lshrrev_b32 v221, 4, v1")
    a("v_lshlrev_b32 v222, 1, v220")
    a("v_lshlrev_b32 v223, 4, v221")
    a("v_add_u32 v222, v222, v223")
    a("v_and_b32 v224, 1, v220")
    a("v_cmp_eq_u32 vcc, 1, v224")
    a(f"v_mov_b32 v224, {CV_O}")
    a("s_nop 1")
    a("v_cndmask_b32 v224, v224, 2, vcc")
    a("v_add3_u32 v222, v222, v224, s83")
    a("v_lshlrev_b32 v225, 5, v220")
    a("v_sub_u32 v225, v223, v225")
    a(f"v_add_u32 v225, {CV_U+480}, v225")
    a("v_add_u32 v225, s83, v225")
    KA = [226, 227, 228, 229, 230]
    for i in range(5):
        a(f"v_add_u32 v{KA[i]}, {960*i}, v222")
    ACC = 52; FA = 84; FB = 116
    for i in range(16):
        a(f"v_mov_b32 v{ACC+i}, 0")
    a.wait_vm("CK")
    for i in range(4):
        b = 84 + 8*i
        a(f"ds_write_b128 v214, v[{b}:{b+3}] offset:{32+1024*i}")
        for t in range(4):
            a(f"v_alignbit_b32 v{232+4*(i&1)+t}, v{b+t+1}, v{b+t}, 16")
        a(f"ds_write_b128 v214, v[{232+4*(i&1)}:{235+4*(i&1)}] offset:{CV_O+32+1024*i}")
        if i == 0:
            a(f"v_lshlrev_b32 v{Z+3}, 16, v84")
            a("s_mov_b64 exec, 1")
            a(f"ds_write_b128 v214, v[{Z}:{Z+3}] offset:{CV_O+16}")
            a("s_mov_b64 exec, -1")
    a.wait_vm("CU")
    a("s_waitcnt lgkmcnt(0)")
    a("s_cmp_eq_u32 s82, 0")
    a("s_cbranch_scc1 L_cvh_epi")
    a("s_and_b32 s85, s40, 1")
    a("s_cmp_eq_u32 s85, 1")
    a("s_cbranch_scc1 L_cvh_p1")
    TS = [[7, 4, 1, 0], [6, 5, 3, 2]]
    for part in range(2):
        if part == 1: a.label("L_cvh_p1")
        ts = TS[part]; mx = max(ts)
        def reads(rho):
            o = 64 * (rho & 1)
            for pi in range(mx + 1):
                p = 8*pi + rho
                r = FA+o+4*pi
                a(f"ds_read2_b32 v[{r}:{r+1}], v{KA[p//15]} offset0:{16*(p%15)} offset1:{16*(p%15)+1}")
                a(f"ds_read2_b32 v[{r+2}:{r+3}], v{KA[p//15]} offset0:{16*(p%15)+2} offset1:{16*(p%15)+3}")
                w = 8*pi - rho
                a(f"ds_read_b128 v[{FB+o+4*pi}:{FB+o+4*pi+3}], v225 offset:{64*(56-w)}")
        reads(0)
        for rho in range(8):
            a("s_waitcnt lgkmcnt(0)")
            if rho < 7:
                reads(rho + 1)
            o = 64 * (rho & 1)
            work = [[(ti, t, pi) for pi in range(t + 1)] for ti, t in enumerate(ts)]
            while any(work):
                for wl in work:
                    if wl:
                        ti, t, pi = wl.pop(0)
                        tau = t - pi
                        a(f"v_mfma_f32_16x16x32_bf16 v[{ACC+4*ti}:{ACC+4*ti+3}], v[{FA+o+4*pi}:{FA+o+4*pi+3}], v[{FB+o+4*tau}:{FB+o+4*tau+3}], v[{ACC+4*ti}:{ACC+4*ti+3}]")
        for ti, t in enumerate(ts):
            a(f"s_mov_b32 s{76+ti}, {512*t}")
        if part == 0: a("s_branch L_cvh_epi")
    a.label("L_cvh_epi")
    a.srd(88, 8, SZ_SD, WS_Y2T)
    a("s_cmp_eq_u32 s82, 0")
    a("s_cselect_b32 s84, 0x7f000000, s84")
    for ti in range(4):
        a(f"s_cselect_b32 s{76+ti}, 0, s{76+ti}")
    a("v_lshlrev_b32 v213, 16, v213")
    a("v_lshlrev_b32 v224, 5, v220")
    a("v_lshlrev_b32 v226, 3, v221")
    a("v_add_u32 v224, v224, v226")
    a(f"v_sub_u32 v226, {CV_U+4088}, v224")
    a("v_add_u32 v226, s83, v226")
    a("v_add_u32 v224, s84, v224")
    for ti in range(4):
        a(f"v_subrev_u32 v227, s{76+ti}, v226")
        a(f"ds_read_b64 v[{84+2*ti}:{85+2*ti}], v227")
    a("s_waitcnt lgkmcnt(0)")
    for ti in range(4):
        y = ACC + 4*ti; kq = 84 + 2*ti; T = 100 + 8*(ti & 1)
        unpack_hi(a, T, kq+1); unpack_lo(a, T+1, kq+1); unpack_hi(a, T+2, kq); unpack_lo(a, T+3, kq)
        for i in range(4):
            a(f"v_mul_f32 v{T+i}, v{T+i}, v213")
        a(f"v_cvt_pk_bf16_f32 v{T+4}, v{T}, v{T+1}")
        a(f"v_cvt_pk_bf16_f32 v{T+5}, v{T+2}, v{T+3}")
        a(f"v_cvt_pk_bf16_f32 v{T+6}, v{y}, v{y+1}")
        a(f"v_cvt_pk_bf16_f32 v{T+7}, v{y+2}, v{y+3}")
        unpack_lo(a, T, T+4); unpack_hi(a, T+1, T+4); unpack_lo(a, T+2, T+5); unpack_hi(a, T+3, T+5)
        unpack_lo(a, y, T+6); unpack_hi(a, y+1, T+6); unpack_lo(a, y+2, T+7); unpack_hi(a, y+3, T+7)
        for i in range(4):
            a(f"v_add_f32 v{T+i}, v{T+i}, v{y+i}")
        a(f"v_cvt_pk_bf16_f32 v{240+2*ti}, v{T}, v{T+1}")
        a(f"v_cvt_pk_bf16_f32 v{241+2*ti}, v{T+2}, v{T+3}")
        a.vmem(f"buffer_store_dwordx2 v[{240+2*ti}:{241+2*ti}], v224, s[88:91], s{76+ti} offen", "CS")

def gen_gemm1(a):
    a.kernel_begin("gemm1_kernel")
    a("s_cmp_ge_u32 s2, 256")
    a("s_cbranch_scc1 L_g1_end")
    a.stamp(0)
    a("s_load_dwordx4 s[4:7], s[0:1], 56")
    a("s_load_dwordx2 s[8:9], s[0:1], 96")
    a("s_load_dwordx4 s[72:75], s[0:1], 32")
    a("s_load_dwordx2 s[86:87], s[0:1], 72")
    a("v_and_b32 v1, 63, v0")
    a("v_lshrrev_b32 v2, 6, v0")
    a("s_nop 0")
    a("v_readfirstlane_b32 s40, v2")
    a("s_and_b32 s30, s2, 7")
    a("s_lshr_b32 s31, s2, 3")
    a("s_lshl_b32 s30, s30, 2")
    a("s_and_b32 s32, s31, 3")
    a("s_add_u32 s30, s30, s32")
    a("s_lshr_b32 s31, s31, 2")
    a("s_mul_i32 s33, s30, 288")
    vD, vA, vB = 2, 7, 9
    AB, WB, ACC = 20, 84, 108
    NAB = 4
    gemm_setup_dma(a, 9216, vD, 34, 35, True)
    a("s_lshl_b32 s36, s31, 4")
    a("s_lshl_b32 s37, s40, 1")
    a("s_add_u32 s36, s36, s37")
    a("s_mul_i32 s37, s36, 18432")
    a("v_lshlrev_b32 v17, 4, v1")
    a(f"v_add_u32 v{vA}, s37, v17")
    a(f"v_add_u32 v{vA+1}, 18432, v{vA}")
    a("s_waitcnt lgkmcnt(0)")
    a("s_cmp_ge_u32 s40, 4")
    a("s_cselect_b32 s10, s6, s4")
    a("s_cselect_b32 s11, s7, s5")
    a("s_add_u32 s12, s10, s33")
    a("s_addc_u32 s13, s11, 0")
    a(f"s_sub_u32 s14, {SZ_W}, s33")
    a("s_mov_b32 s15, 0x00020000")
    a.srd(16, 8, SZ_SD, WS_XN)
    a.srd(20, 8, SZ_H, WS_H)
    def a_loads(j):
        b = AB + 16 * (j % NAB)
        a(f"s_mov_b32 s47, {2048*j}")
        for t in range(2):
            for kh in range(2):
                r = b + 8*t + 4*kh
                a.vmem(f"buffer_load_dwordx4 v[{r}:{r+3}], v{vA+t}, s[16:19], s47 offen offset:{1024*kh}", f"A{j}")
    KB = 64 * 9216
    dma = lambda j: gemm_dma(a, j, vD, 34, 35, 12, KB)
    if 'cvhead' in FL: conv_head_loads(a)
    dma(0); a_loads(0); dma(1); a_loads(1)
    if 'nopf' not in FL:
        a("s_and_b32 s41, s2, 7")
        a("s_mul_i32 s41, s41, 1152")
        a("s_add_u32 s24, s10, s41")
        a("s_addc_u32 s25, s11, 0")
        a(f"s_sub_u32 s26, {SZ_W}, s41")
        a("s_mov_b32 s27, 0x00020000")
        a("s_lshr_b32 s41, s2, 3")
        a("v_mul_u32_u24 v17, 3641, v1")
        a("v_lshrrev_b32 v17, 16, v17")
        a("v_mul_u32_u24 v18, 18, v17")
        a("v_sub_u32 v18, v1, v18")
        a("v_lshlrev_b32 v17, 5, v17")
        a("v_add_u32 v17, s41, v17")
        a("v_mul_u32_u24 v17, 9216, v17")
        a("v_lshlrev_b32 v18, 6, v18")
        a("v_add_u32 v17, v17, v18")
        a("s_and_b32 s42, s40, 3")
        a(f"s_mul_i32 s43, s42, {3*32*9216}")
        a(f"s_add_u32 s43, s43, {4*32*9216}")
        a.vmem("buffer_load_dword v0, v17, s[24:27], s43 offen", "PF")
        a("s_and_b32 s42, s41, 3")
        a("s_lshl_b32 s42, s42, 2")
        a("s_lshl_b32 s44, s31, 4")
        a("s_add_u32 s42, s42, s44")
        a("s_and_b32 s44, s40, 1")
        a("s_lshl_b32 s44, s44, 1")
        a("s_add_u32 s42, s42, s44")
        a("s_mul_i32 s42, s42, 18432")
        a("s_lshr_b32 s44, s40, 1")
        a("s_lshl_b32 s44, s44, 11")
        a("s_add_u32 s42, s42, s44")
        a("s_add_u32 s42, s42, 4096")
        a("v_lshrrev_b32 v18, 5, v1")
        a("v_mul_u32_u24 v18, 18432, v18")
        a("v_and_b32 v19, 31, v1")
        a("v_lshlrev_b32 v19, 6, v19")
        a("v_add_u32 v18, v18, v19")
        a.vmem("buffer_load_dword v0, v18, s[16:19], s42 offen", "PF")
        a(f"s_add_u32 s43, s43, {12*32*9216}")
        a.vmem("buffer_load_dword v0, v17, s[24:27], s43 offen", "PF")
        a("s_add_u32 s42, s42, 8192")
        a("s_cmp_ge_u32 s40, 6")
        a("s_cselect_b32 s42, 0x7f000000, s42")
        a.vmem("buffer_load_dword v0, v18, s[16:19], s42 offen", "PF")
    if 'cvhead' in FL: conv_head_compute(a)
    a("v_lshrrev_b32 v17, 4, v1")
    a("v_lshrrev_b32 v18, 2, v1")
    a("v_and_b32 v18, 3, v18")
    a("v_and_b32 v19, 1, v17")
    a("v_lshlrev_b32 v17, 4, v17")
    a("v_add_u32 v17, v17, v18")
    a("v_lshlrev_b32 v19, 2, v19")
    a("v_add_u32 v18, v17, v19")
    a("v_xor_b32 v19, 4, v19")
    a("v_add_u32 v19, v17, v19")
    a("v_mul_u32_u24 v18, 288, v18")
    a("v_mul_u32_u24 v19, 288, v19")
    a("v_and_b32 v17, 3, v1")
    a("v_lshlrev_b32 v17, 3, v17")
    a(f"v_add_u32 v{vB}, v18, v17")
    a(f"v_add_u32 v{vB+1}, v19, v17")
    for st in range(1, NST):
        a(f"v_add_u32 v{vB+2*st}, {st*STAGE}, v{vB}")
        a(f"v_add_u32 v{vB+2*st+1}, {st*STAGE}, v{vB+1}")
    for i in range(144):
        a(f"v_mov_b32 v{ACC+i}, 0")
    a.stamp(1)
    NU = 36
    units = [(j, kh, mat, c) for j in range(9) for kh in range(2) for mat in range(2) for c in range(9)]
    def w_reads(U):
        j, kh, mat, c = units[U]
        st = j % NST
        r = WB + 4 * (U % (PD + 1))
        off = mat*18432 + 8*kh*288 + c*32
        a.lds(f"ds_read_b64_tr_b16 v[{r}:{r+1}], v{vB+2*st} offset:{off}", f"W{U}")
        a.lds(f"ds_read_b64_tr_b16 v[{r+2}:{r+3}], v{vB+2*st+1} offset:{off}", f"W{U}")
    def mfmas(U):
        j, kh, mat, c = units[U]
        r = WB + 4 * (U % (PD + 1))
        for t in range(2):
            ac = ACC + 4 * (t*18 + mat*9 + c)
            ar = AB + 16*(j % NAB) + 8*t + 4*kh
            a(f"v_mfma_f32_16x16x32_bf16 v[{ac}:{ac+3}], v[{r}:{r+3}], v[{ar}:{ar+3}], v[{ac}:{ac+3}]")
    def w2_pf():
        a("s_bfe_u32 s41, s2, 0x10002")
        a("s_cmp_eq_u32 s41, 0")
        a(f"s_cselect_b32 s41, {128*int(os.environ.get('NJP','14'))*1152}, 0")
        a(f"s_mov_b32 s26, {128*int(os.environ.get('NJP','14'))*1152}")
        a(f"s_cselect_b32 s26, {128*(36-int(os.environ.get('NJP','14')))*1152}, s26")
        a("s_add_u32 s24, s86, s41")
        a("s_addc_u32 s25, s87, 0")
        a("s_mov_b32 s27, 0x00020000")
        a("s_and_b32 s41, s2, 0xf8")
        a("s_add_u32 s41, s41, s40")
        a("s_lshl_b32 s41, s41, 13")
        a(f"s_add_u32 s42, s41, {256*8192}")
        a("v_lshlrev_b32 v17, 7, v1")
        a("buffer_load_dword v0, v17, s[24:27], s41 offen")
        a("buffer_load_dword v0, v17, s[24:27], s42 offen")
    gemm_loop(a, units, NU, NAB, w_reads, mfmas, a_loads, dma,
              {2: lambda: dma(2), 12: lambda: a_loads(2), 22: lambda: a_loads(3)}, late=(None if 'nopf2' in FL else w2_pf))
    a.stamp(4)
    a("s_mul_i32 s37, s36, 147456")
    a("s_mul_i32 s38, s30, 9")
    a("s_and_b32 s39, s38, 1")
    a("s_lshr_b32 s38, s38, 1")
    a("s_lshl_b32 s38, s38, 10")
    a("s_add_u32 s37, s37, s38")
    a("v_lshlrev_b32 v17, 4, v1")
    a("v_add_u32 v2, s37, v17")
    a("v_add_u32 v3, 147456, v2")
    a("s_mov_b32 s46, 0xbfb8aa3b")
    a("s_mov_b32 s47, 0xbfb8aa3b")
    a("s_mov_b32 s48, 1.0")
    a("s_mov_b32 s49, 1.0")
    a("s_movk_i32 s45, 4096")
    a("s_cmp_eq_u32 s39, 0")
    a("s_cbranch_scc0 L_g1_epi_odd")
    def group(t, c, T, O):
        g = ACC + 4*(t*18 + c); u_ = ACC + 4*(t*18 + 9 + c)
        a(f"v_cvt_pk_bf16_f32 v{T}, v{g}, v{g+1}")
        a(f"v_cvt_pk_bf16_f32 v{T+1}, v{g+2}, v{g+3}")
        a(f"v_cvt_pk_bf16_f32 v{T+2}, v{u_}, v{u_+1}")
        a(f"v_cvt_pk_bf16_f32 v{T+3}, v{u_+2}, v{u_+3}")
        unpack_lo(a, g, T); unpack_hi(a, g+1, T); unpack_lo(a, g+2, T+1); unpack_hi(a, g+3, T+1)
        a(f"v_pk_mul_f32 v[{T+4}:{T+5}], v[{g}:{g+1}], s[46:47]")
        a(f"v_pk_mul_f32 v[{T+6}:{T+7}], v[{g+2}:{g+3}], s[46:47]")
        unpack_lo(a, u_, T+2); unpack_hi(a, u_+1, T+2)
        for i in range(4):
            a(f"v_exp_f32 v{T+4+i}, v{T+4+i}")
        unpack_lo(a, u_+2, T+3); unpack_hi(a, u_+3, T+3)
        a(f"v_pk_add_f32 v[{T+4}:{T+5}], v[{T+4}:{T+5}], s[48:49]")
        a(f"v_pk_add_f32 v[{T+6}:{T+7}], v[{T+6}:{T+7}], s[48:49]")
        for i in range(4):
            a(f"v_rcp_f32 v{T+4+i}, v{T+4+i}")
        a("s_nop 0")
        a(f"v_pk_mul_f32 v[{T+4}:{T+5}], v[{T+4}:{T+5}], v[{g}:{g+1}]")
        a(f"v_pk_mul_f32 v[{T+6}:{T+7}], v[{T+6}:{T+7}], v[{g+2}:{g+3}]")
        a(f"v_cvt_pk_bf16_f32 v{T}, v{T+4}, v{T+5}")
        a(f"v_cvt_pk_bf16_f32 v{T+1}, v{T+6}, v{T+7}")
        unpack_lo(a, T+4, T); unpack_hi(a, T+5, T); unpack_lo(a, T+6, T+1); unpack_hi(a, T+7, T+1)
        a(f"v_pk_mul_f32 v[{T+4}:{T+5}], v[{T+4}:{T+5}], v[{u_}:{u_+1}]")
        a(f"v_pk_mul_f32 v[{T+6}:{T+7}], v[{T+6}:{T+7}], v[{u_+2}:{u_+3}]")
        a(f"v_cvt_pk_bf16_f32 v{O}, v{T+4}, v{T+5}")
        a(f"v_cvt_pk_bf16_f32 v{O+1}, v{T+6}, v{T+7}")
    for par in range(2):
        if par == 1: a.label("L_g1_epi_odd")
        n = 0
        for t in range(2):
            for c in range(9):
                T2 = c + par
                m, hi = T2 >> 1, T2 & 1
                O = 52 + 4 * ((t*5 + m) & 3)
                group(t, c, 20 + 8*(n & 3), O + 2*hi); n += 1
                so, imm = ("0", m*1024) if m < 4 else ("s45", 0)
                if hi == 1 and c > 0:
                    a(f"buffer_store_dwordx4 v[{O}:{O+3}], v{2+t}, s[20:23], {so} offen offset:{imm}")
                elif hi == 1 and c == 0:
                    a(f"buffer_store_dwordx2 v[{O+2}:{O+3}], v{2+t}, s[20:23], {so} offen offset:{imm+8}")
                elif hi == 0 and c == 8:
                    a(f"buffer_store_dwordx2 v[{O}:{O+1}], v{2+t}, s[20:23], {so} offen offset:{imm}")
        if par == 0: a("s_branch L_g1_epi_done")
    a.label("L_g1_epi_done")
    a.stamp(5)
    a.stamp_flush(6, 8, 0x8000000)
    a.label("L_g1_end")
    a("s_endpgm")
    return desc("gemm1_kernel", 252, 100)

G2_ST = 24576
G2_NS = 5
G2_NJP = int(os.environ.get('NJP', '14')); G2_NJC = 36 - G2_NJP
G2_HP = int(os.environ.get('HP', '4')); G2_HL = int(os.environ.get('HL', '2'))
G2_Y = G2_NS * G2_ST
G2_LDS = G2_Y + 24576
def gen_gemm2(a):
    a.kernel_begin("gemm2_kernel")
    a("s_cmp_ge_u32 s2, 256")
    a("s_cbranch_scc1 L_g2_end")
    a("s_cmp_lt_u32 s2, 64")
    a("s_cbranch_scc1 L_g2_pf")
    a("s_sub_u32 s2, s2, 64")
    a.stamp(0)
    a("s_load_dwordx2 s[4:5], s[0:1], 72")
    a("s_load_dwordx2 s[6:7], s[0:1], 0")
    a("s_load_dwordx2 s[8:9], s[0:1], 96")
    a("s_load_dwordx2 s[10:11], s[0:1], 80")
    a("v_and_b32 v1, 63, v0")
    a("v_lshrrev_b32 v2, 6, v0")
    a("s_nop 0")
    a("v_readfirstlane_b32 s40, v2")
    a("s_and_b32 s30, s2, 7")
    a("s_lshr_b32 s31, s2, 3")
    a("s_mul_i32 s32, s31, 43")
    a("s_lshr_b32 s32, s32, 8")
    a("s_mul_i32 s33, s32, 6")
    a("s_sub_u32 s31, s31, s33")
    a("s_lshr_b32 s29, s30, 2")
    a("s_and_b32 s30, s30, 3")
    a("s_lshl_b32 s30, s30, 2")
    a("s_add_u32 s32, s32, s30")
    a("s_and_b32 s41, s40, 3")
    a("s_lshr_b32 s42, s40, 2")
    a("s_cmp_eq_u32 s29, 0")
    a(f"s_cselect_b32 s28, {128*G2_NJP}, 0")
    a("s_mul_i32 s33, s28, 1152")
    a("s_mul_i32 s34, s31, 192")
    a("s_add_u32 s33, s33, s34")
    a("s_mul_i32 s36, s40, 3072")
    vD, vA, vB = 2, 5, 8
    AB, WB, ACC = 20, 100, 124
    NAB, PD2 = 5, 5
    a("s_movk_i32 s45, 5462")
    a("s_mul_i32 s44, s40, 192")
    for i in range(3):
        a(f"s_add_u32 s43, s44, {64*i}")
        a("v_add_u32 v17, s43, v1")
        a("v_mul_lo_u32 v18, v17, s45")
        a("v_lshrrev_b32 v18, 16, v18")
        a("v_mul_u32_u24 v19, 12, v18")
        a("v_sub_u32 v19, v17, v19")
        a("v_lshrrev_b32 v17, 1, v19")
        a("v_bfe_u32 v16, v18, 2, 1")
        a("v_sub_u32 v17, v17, v16")
        a("v_cmp_gt_i32 vcc, 0, v17")
        a("v_and_b32 v19, 1, v19")
        a("v_lshlrev_b32 v19, 4, v19")
        a("v_cndmask_b32 v17, v17, 5, vcc")
        a("v_lshlrev_b32 v17, 5, v17")
        a("v_mul_u32_u24 v18, 1152, v18")
        a(f"v_add3_u32 v{vD+i}, v17, v18, v19")
    a("s_lshl_b32 s38, s32, 3")
    a("s_lshl_b32 s39, s41, 1")
    a("s_add_u32 s38, s38, s39")
    a("s_mul_i32 s34, s38, 147456")
    a("s_lshl_b32 s35, s28, 5")
    a("s_add_u32 s34, s34, s35")
    a("s_lshl_b32 s35, s42, 11")
    a("s_add_u32 s34, s34, s35")
    a("v_lshlrev_b32 v17, 4, v1")
    a(f"v_add_u32 v{vA}, s34, v17")
    a(f"v_add_u32 v{vA+1}, 147456, v{vA}")
    a("s_waitcnt lgkmcnt(0)")
    a("s_add_u32 s12, s4, s33")
    a("s_addc_u32 s13, s5, 0")
    a(f"s_sub_u32 s14, {SZ_W}, s33")
    a("s_mov_b32 s15, 0x00020000")
    a.srd(16, 8, SZ_H, WS_H)
    a.srd(20, 8, SZ_SD, WS_Y2T)
    a.srd(24, 8, SZ_SD, WS_XN)
    a.srd(72, 6, SZ_SD)
    a.srd(76, 10, SZ_SD)
    a.srd(84, 8, 96*49152, WS_P)
    a.srd(80, 8, 128*128, WS_FL)
    def a_loads(j):
        b = AB + 16 * (j % NAB)
        a(f"s_mov_b32 s47, {4096*j}")
        for t in range(2):
            for mm in range(2):
                r = b + 8*t + 4*mm
                a.vmem(f"buffer_load_dwordx4 v[{r}:{r+3}], v{vA+t}, s[16:19], s47 offen offset:{1024*mm}", f"A{j}")
    def dma(j):
        st = j % G2_NS
        a(f"s_mov_b32 s46, {j*128*1152}")
        for i in range(3):
            a(f"s_add_u32 m0, s36, {st*G2_ST + 1024*i}")
            a("s_nop 0")
            a.vmem(f"buffer_load_dwordx4 v{vD+i}, s[12:15], s46 offen lds", f"D{j}")
    dma(0); a_loads(0); dma(1); a_loads(1)
    a("v_lshrrev_b32 v17, 2, v1")
    a("v_mul_u32_u24 v17, 192, v17")
    a("v_and_b32 v18, 3, v1")
    a("v_lshlrev_b32 v18, 3, v18")
    a(f"s_mul_i32 s43, s42, {64*192}")
    a("v_add3_u32 v17, v17, v18, s43")
    a("v_bfe_u32 v18, v1, 4, 1")
    a("v_lshlrev_b32 v19, 5, v18")
    a(f"v_add_u32 v{vB}, v17, v19")
    a("v_xor_b32 v18, 1, v18")
    a("v_mul_u32_u24 v18, 160, v18")
    a(f"v_add_u32 v{vB+1}, v17, v18")
    for grp in range(1, 3):
        a(f"v_add_u32 v{vB+2*grp}, {2*grp*G2_ST}, v{vB}")
        a(f"v_add_u32 v{vB+2*grp+1}, {2*grp*G2_ST}, v{vB+1}")
    for i in range(48):
        a(f"v_mov_b32 v{ACC+i}, 0")
    a.stamp(1)
    NU = 12
    PFD = int(os.environ.get('PFD', '8'))
    a("s_lshr_b32 s43, s2, 3")
    a("s_lshl_b32 s43, s43, 2")
    a("s_add_u32 s43, s43, s41")
    a("s_mul_i32 s43, s43, 12")
    a("v_add_u32 v17, s43, v1")
    a("v_lshlrev_b32 v18, 7, v17")
    a("v_lshrrev_b32 v19, 5, v17")
    a("v_mul_u32_u24 v19, 147456, v19")
    a("v_and_b32 v17, 31, v17")
    a("v_lshlrev_b32 v17, 7, v17")
    a("v_add_u32 v19, v19, v17")
    a("s_cmp_eq_u32 s42, 0")
    a("s_cselect_b64 vcc, -1, 0")
    a("s_mul_i32 s43, s28, 1152")
    a("s_add_u32 s92, s4, s43")
    a("s_addc_u32 s93, s5, 0")
    a(f"s_sub_u32 s94, {SZ_W}, s43")
    a("v_cndmask_b32 v247, v19, v18, vcc")
    a("s_and_b32 s44, s2, 3")
    a(f"s_mul_i32 s44, s44, {32*147456}")
    a("s_lshl_b32 s45, s28, 5")
    a("s_add_u32 s44, s44, s45")
    a(f"s_add_u32 s44, s44, {PFD*4096}")
    a("s_cmp_eq_u32 s42, 0")
    a("s_cselect_b32 s92, s92, s16")
    a("s_cselect_b32 s93, s93, s17")
    a("s_cselect_b32 s94, s94, s18")
    a("s_mov_b32 s95, 0x00020000")
    a(f"s_cselect_b32 s90, {PFD*147456}, s44")
    a("s_mov_b32 s91, 4096")
    a("s_cselect_b32 s91, 147456, s91")
    def touch():
        a("s_mov_b32 exec_lo, 0xfff")
        a("s_mov_b32 exec_hi, 0")
        a.vmem("buffer_load_dword v246, v247, s[92:95], s90 offen", "T")
        a("s_mov_b64 exec, -1")
        a("s_add_u32 s90, s90, s91")
    a("s_mul_i32 s43, s40, 6144")
    a("v_lshlrev_b32 v16, 4, v1")
    a("v_add_u32 v14, s43, v16")
    a("s_xor_b32 s44, s40, 4")
    a("s_mul_i32 s44, s44, 6144")
    a("v_add_u32 v7, s44, v16")
    a("s_mul_i32 s44, s32, 6")
    a("s_add_u32 s44, s44, s31")
    a("s_mul_i32 s45, s44, 49152")
    a("v_add_u32 v15, s45, v14")
    a("s_lshl_b32 s48, s44, 7")
    a("s_mov_b32 s49, 1")
    a("s_movk_i32 s88, 4096")
    XR, NR, PR, YL, OF = 172, 184, 196, 220, 232
    a("v_and_b32 v17, 15, v1")
    a("v_lshrrev_b32 v18, 4, v1")
    a("s_add_u32 s43, s38, s42")
    a("s_mul_i32 s43, s43, 18432")
    a("s_mul_i32 s34, s31, 192")
    a("s_add_u32 s34, s34, s43")
    a("v_mul_u32_u24 v19, 1152, v17")
    a(f"v_lshlrev_b32 v{OF}, 3, v18")
    a(f"v_add3_u32 v{OF}, v19, v{OF}, s34")
    a("v_lshrrev_b32 v19, 1, v18")
    a("v_lshlrev_b32 v19, 10, v19")
    a("v_lshlrev_b32 v17, 4, v17")
    a("v_add3_u32 v19, v19, v17, s43")
    a("v_and_b32 v17, 1, v18")
    a("v_lshlrev_b32 v17, 3, v17")
    a(f"v_add_u32 v{OF+1}, v19, v17")
    def run_loop(NJ, hooks):
        units = [(j, mm, ct) for j in range(NJ) for mm in range(2) for ct in range(6)]
        def w_reads(U):
            j, mm, ct = units[U]
            st = j % G2_NS
            r = WB + 4 * (U % (PD2 + 1))
            base = vB + 2*(st >> 1) + (0 if ct < 5 else 1)
            off = (st & 1)*G2_ST + 32*mm*192 + (32*ct if ct < 5 else 0)
            a.lds(f"ds_read_b64_tr_b16 v[{r}:{r+1}], v{base} offset:{off}", f"W{U}")
            a.lds(f"ds_read_b64_tr_b16 v[{r+2}:{r+3}], v{base} offset:{off+3072}", f"W{U}")
        def mfmas(U):
            j, mm, ct = units[U]
            r = WB + 4 * (U % (PD2 + 1))
            for t in range(2):
                ac = ACC + 4 * (t*6 + ct)
                ar = AB + 16*(j % NAB) + 8*t + 4*mm
                a(f"v_mfma_f32_16x16x32_bf16 v[{ac}:{ac+3}], v[{r}:{r+3}], v[{ar}:{ar+3}], v[{ac}:{ac+3}]")
        hk = dict(hooks or {})
        if 'nocoop' not in FL:
            for j in range(NJ - PFD):
                hk[(j, 9)] = touch
        gemm_loop(a, units, NU, NAB, w_reads, mfmas, a_loads, dma,
                  {1: lambda: dma(2), 3: lambda: a_loads(2), 4: lambda: dma(3), 5: lambda: a_loads(3), 6: lambda: a_loads(4)},
                  NJ=NJ, NS=G2_NS, PD=PD2, hooks=hk)
    def pofs(i):
        return ("0", 1024*i) if i < 4 else ("s88", 1024*(i-4))
    def exchange():
        a("s_barrier")
        a("s_cmp_lt_u32 s40, 4")
        a(f"s_cbranch_scc1 L_g2_x{exchange.n}a")
        a("s_nop 4")
        for i in range(6):
            a(f"ds_write_b128 v14, v[{ACC+4*i}:{ACC+4*i+3}] offset:{1024*i}")
        for i in range(24):
            a(f"v_mov_b32 v{20+i}, v{ACC+24+i}")
        a(f"s_branch L_g2_x{exchange.n}b")
        a.label(f"L_g2_x{exchange.n}a")
        a("s_nop 4")
        for i in range(6):
            a(f"ds_write_b128 v14, v[{ACC+24+4*i}:{ACC+24+4*i+3}] offset:{1024*i}")
        for i in range(24):
            a(f"v_mov_b32 v{20+i}, v{ACC+i}")
        a.label(f"L_g2_x{exchange.n}b")
        exchange.n += 1
    exchange.n = 0
    a("s_cmp_eq_u32 s29, 0")
    a("s_cbranch_scc1 L_g2_consumer")
    vm_save = list(a.vm)
    run_loop(G2_NJP, None)
    a.stamp(4)
    a.keepbar = True
    exchange()
    a("s_waitcnt lgkmcnt(0)")
    a("s_barrier")
    for i in range(6):
        a(f"ds_read_b128 v[{44+4*i}:{47+4*i}], v7 offset:{1024*i}")
    for i in range(6):
        a(f"s_waitcnt lgkmcnt({5-i})")
        for e in range(4):
            a(f"v_add_f32 v{20+4*i+e}, v{20+4*i+e}, v{44+4*i+e}")
        so, imm = pofs(i)
        a(f"buffer_store_dwordx4 v[{20+4*i}:{23+4*i}], v15, s[84:87], {so} offen offset:{imm} sc1")
    a("s_waitcnt vmcnt(0)")
    a("s_barrier")
    a("s_cmp_lg_u32 s40, 0")
    a("s_cbranch_scc1 L_g2_fin")
    a("v_mov_b32 v20, s48")
    a("v_mov_b32 v21, s49")
    a("s_mov_b64 exec, 1")
    a("buffer_store_dword v21, v20, s[80:83], 0 offen sc1")
    a("s_mov_b64 exec, -1")
    a("s_branch L_g2_fin")
    a.label("L_g2_consumer")
    a.vm = vm_save; a.lg = []; a.keepbar = False
    def x_loads():
        for ct in range(6):
            a("s_mul_i32 s34, s31, 96")
            a(f"s_add_u32 s34, s34, {16*ct}")
            a("s_lshr_b32 s35, s34, 6")
            a("s_lshl_b32 s35, s35, 11")
            a("s_bfe_u32 s34, s34, 0x20004")
            a("s_lshl_b32 s34, s34, 8")
            a("s_add_u32 s34, s34, s35")
            a.vmem(f"buffer_load_dwordx2 v[{XR+2*ct}:{XR+2*ct+1}], v{OF}, s[72:75], 0 offen offset:{32*ct}", "X")
            a.vmem(f"buffer_load_dwordx2 v[{NR+2*ct}:{NR+2*ct+1}], v{OF+1}, s[24:27], s34 offen", "X")
    def early_polls():
        a("v_mov_b32 v17, s48")
        a.vmem("buffer_load_dword v244, v17, s[80:83], 0 offen sc1", "F")
    def early_loads():
        if 'st2' in FL: a.stamp(1)
        a.wait_vm("F")
        a("v_readfirstlane_b32 s43, v244")
        a("v_mov_b32 v17, s48")
        a("s_nop 2")
        a("s_and_b32 s43, s43, s49")
        a("s_cbranch_scc1 L_g2_go2")
        a.label("L_g2_poll2")
        a("s_sleep 8")
        a("buffer_load_dword v18, v17, s[80:83], 0 offen sc1")
        a("s_waitcnt vmcnt(0)")
        a("v_readfirstlane_b32 s43, v18")
        a("s_nop 3")
        a("s_and_b32 s43, s43, s49")
        a("s_cbranch_scc0 L_g2_poll2")
        a.label("L_g2_go2")
        for i in range(6):
            so, imm = pofs(i)
            a.vmem(f"buffer_load_dwordx4 v[{PR+4*i}:{PR+4*i+3}], v15, s[84:87], {so} offen offset:{imm} sc1", "E")
        if 'st2' in FL: a.stamp(3)
    def late_poll():
        a("s_cmp_lg_u32 s40, 4")
        a("s_cbranch_scc1 L_g2_lp")
        a("s_lshl_b32 s43, s31, 7")
        a(f"s_add_u32 s43, s43, {96*128}")
        a("v_mov_b32 v17, s43")
        a("buffer_load_dword v245, v17, s[80:83], 0 offen sc1")
        a.label("L_g2_lp")
    run_loop(G2_NJC, {(6, 1): x_loads, (G2_NJC - G2_HP, 1): early_polls, (G2_NJC - G2_HL, 1): early_loads, (G2_NJC - 1, 2): late_poll})
    a.stamp(4)
    a.keepbar = True
    a("s_cmp_lg_u32 s40, 4")
    a("s_cbranch_scc1 L_g2_go")
    a("s_waitcnt vmcnt(0)")
    a("v_readfirstlane_b32 s44, v245")
    a("s_nop 3")
    a("s_cmp_ge_u32 s44, 384")
    a("s_cbranch_scc1 L_g2_go")
    a.label("L_g2_poll")
    a("s_sleep 16")
    a("buffer_load_dword v18, v17, s[80:83], 0 offen sc1")
    a("s_waitcnt vmcnt(0)")
    a("v_readfirstlane_b32 s44, v18")
    a("s_nop 3")
    a("s_cmp_ge_u32 s44, 384")
    a("s_cbranch_scc0 L_g2_poll")
    a.label("L_g2_go")
    a("v_lshrrev_b32 v17, 4, v1")
    a("v_lshlrev_b32 v17, 12, v17")
    a("v_and_b32 v18, 15, v1")
    a("v_lshlrev_b32 v18, 4, v18")
    a("v_add_u32 v17, v17, v18")
    a("s_mul_i32 s34, s31, 96")
    a("s_mul_i32 s35, s40, 12")
    a("s_add_u32 s34, s34, s35")
    a("s_lshl_b32 s34, s34, 12")
    a("s_lshl_b32 s35, s32, 8")
    a("s_add_u32 s34, s34, s35")
    a("s_mul_i32 s35, s40, 3072")
    a(f"s_add_u32 s35, s35, {G2_Y}")
    a("v_add_u32 v19, s35, v16")
    exchange()
    for p in range(3):
        a(f"buffer_load_dwordx4 v[{YL+4*p}:{YL+4*p+3}], v17, s[20:23], s34 offen sc1")
        a("s_add_u32 s34, s34, 16384")
    a("v_lshrrev_b32 v16, 2, v1")
    a("v_lshlrev_b32 v16, 8, v16")
    a("v_and_b32 v17, 3, v1")
    a("v_lshlrev_b32 v17, 3, v17")
    a("s_lshl_b32 s43, s41, 6")
    a("s_lshl_b32 s44, s42, 5")
    a("s_add_u32 s43, s43, s44")
    a(f"s_add_u32 s43, s43, {G2_Y}")
    a("v_add3_u32 v16, v16, v17, s43")
    a("s_waitcnt vmcnt(3)")
    for i in range(24):
        a(f"v_add_f32 v{20+i}, v{20+i}, v{PR+i}")
    a("s_waitcnt vmcnt(0)")
    for p in range(3):
        a(f"ds_write_b128 v19, v[{YL+4*p}:{YL+4*p+3}] offset:{1024*p}")
    a("s_waitcnt lgkmcnt(0)")
    a("s_barrier")
    YR = 68
    for i in range(6):
        a(f"ds_read_b128 v[{44+4*i}:{47+4*i}], v7 offset:{1024*i}")
    for ct in range(6):
        a(f"ds_read_b64_tr_b16 v[{YR+2*ct}:{YR+2*ct+1}], v16 offset:{4096*ct}")
    a("s_waitcnt lgkmcnt(0)")
    for z in range(6):
        T = 92 + 6*(z & 1)
        for e in range(4):
            a(f"v_add_f32 v{20+4*z+e}, v{20+4*z+e}, v{44+4*z+e}")
        for w in range(2):
            xr, xnr, yr, br = XR+2*z+w, NR+2*z+w, YR+2*z+w, 20+4*z+2*w
            unpack_lo(a, T, xnr); unpack_hi(a, T+1, xnr)
            unpack_lo(a, T+2, yr); unpack_hi(a, T+3, yr)
            a(f"v_mul_f32 v{T}, v{T}, v{T+2}")
            a(f"v_mul_f32 v{T+1}, v{T+1}, v{T+3}")
            a(f"v_cvt_pk_bf16_f32 v{T+2}, v{T}, v{T+1}")
            unpack_lo(a, T, T+2); unpack_hi(a, T+1, T+2)
            unpack_lo(a, T+3, xr); unpack_hi(a, T+4, xr)
            a(f"v_add_f32 v{T}, v{T}, v{T+3}")
            a(f"v_add_f32 v{T+1}, v{T+1}, v{T+4}")
            a(f"v_cvt_pk_bf16_f32 v{T+2}, v{T}, v{T+1}")
            unpack_lo(a, T, T+2); unpack_hi(a, T+1, T+2)
            a(f"v_cvt_pk_bf16_f32 v{T+2}, v{br}, v{br+1}")
            unpack_lo(a, T+3, T+2); unpack_hi(a, T+4, T+2)
            a(f"v_add_f32 v{T}, v{T}, v{T+3}")
            a(f"v_add_f32 v{T+1}, v{T+1}, v{T+4}")
            a(f"v_cvt_pk_bf16_f32 v{xr}, v{T}, v{T+1}")
        a(f"buffer_store_dwordx2 v[{XR+2*z}:{XR+2*z+1}], v{OF}, s[76:79], 0 offen offset:{32*z}")
    a.label("L_g2_fin")
    a.stamp(5)
    a.stamp_flush(6, 8, 0x8100000)
    a("s_endpgm")
    a.label("L_g2_pf")
    if 'stamp' in FL: a("s_memtime s[64:65]")
    a("s_load_dwordx2 s[44:45], s[0:1], 72")
    a("s_load_dwordx2 s[8:9], s[0:1], 96")
    a("s_load_dwordx4 s[4:7], s[0:1], 32")
    a("v_and_b32 v1, 63, v0")
    a("v_lshrrev_b32 v2, 6, v0")
    a("s_nop 0")
    a("v_readfirstlane_b32 s40, v2")
    a("s_lshl_b32 s31, s40, 6")
    a("s_add_u32 s30, s2, s31")
    a(f"s_mul_i32 s31, s40, {CV_SZ}")
    a("s_lshl_b32 s32, s30, 12")
    a("v_lshlrev_b32 v2, 4, v1")
    a("s_waitcnt lgkmcnt(0)")
    a.srd(12, 4, SZ_SD)
    a.srd(16, 6, D*2)
    a.srd(20, 8, SZ_SD, WS_KVT)
    a.srd(24, 8, SZ_SD, WS_Y2T)
    a.srd(36, 8, 128*128, WS_FL)
    def cloads(kb, dreg, sd, sdb, slds):
        for i in range(4):
            a(f"buffer_load_dwordx4 v[{kb+6*i}:{kb+3+6*i}], v2, s[12:15], s{sdb} offen offset:{1024*i}")
            a(f"buffer_load_dword v{kb+4+6*i}, v2, s[12:15], s{sdb} offen offset:{1024*i+16}")
        for i in range(4):
            a(f"s_add_u32 m0, s{slds}, {CV_U + 1024*i}")
            a(f"s_add_u32 s33, s{sdb}, {1024*i}")
            a("buffer_load_dwordx4 v2, s[20:23], s33 offen lds")
        a(f"s_lshl_b32 s33, s{sd}, 1")
        a(f"v_mov_b32 v{dreg}, s33")
        a(f"buffer_load_ushort v{dreg}, v{dreg}, s[16:19], 0 offen")
    cloads(48, 3, 30, 32, 31)
    a("s_add_u32 s46, s2, 512")
    a("s_lshl_b32 s47, s46, 12")
    a(f"s_mov_b32 s48, {8*CV_SZ}")
    a("s_cmp_ge_u32 s40, 4")
    a("s_cbranch_scc1 L_g2_pf2")
    cloads(176, 200, 46, 47, 48)
    a.label("L_g2_pf2")
    a("s_barrier")
    a("s_and_b32 s50, s2, 7")
    a("s_and_b32 s51, s2, 56")
    a("s_add_u32 s51, s51, s40")
    a("s_lshr_b32 s52, s50, 2")
    a("v_lshlrev_b32 v199, 7, v1")
    a("s_lshl_b32 s53, s51, 13")
    a("v_lshrrev_b32 v5, 4, v1")
    a("v_mul_u32_u24 v5, 147456, v5")
    a("v_and_b32 v6, 15, v1")
    a("v_lshlrev_b32 v6, 7, v6")
    a("v_add_u32 v181, v5, v6")
    a("s_and_b32 s54, s50, 3")
    a("s_lshl_b32 s54, s54, 5")
    a("s_and_b32 s55, s51, 7")
    a("s_lshl_b32 s55, s55, 2")
    a("s_add_u32 s54, s54, s55")
    a("s_mul_i32 s54, s54, 147456")
    a("s_cmp_eq_u32 s52, 0")
    a(f"s_cselect_b32 s55, {128*G2_NJP*32}, 0")
    a(f"s_cselect_b32 s52, {128*G2_NJP*1152}, 0")
    a(f"s_mov_b32 s58, {128*G2_NJP*1152}")
    a(f"s_cselect_b32 s58, {128*G2_NJC*1152}, s58")
    a(f"s_cselect_b32 s43, {2*G2_NJC}, {2*G2_NJP}")
    a("s_add_u32 s54, s54, s55")
    a("s_lshr_b32 s50, s51, 3")
    a("s_lshl_b32 s55, s50, 11")
    a("s_add_u32 s54, s54, s55")
    a("s_add_u32 s56, s44, s52")
    a("s_addc_u32 s57, s45, 0")
    a("s_mov_b32 s59, 0x00020000")
    a.srd(60, 8, SZ_H, WS_H)
    def pf(rs):
        for r in rs:
            a(f"buffer_load_dword v201, v199, s[56:59], s53 offen")
            a(f"s_add_u32 s53, s53, {64*8192}")
            a("s_cmp_ge_u32 s50, s43")
            a("s_cselect_b32 s55, 0x7f000000, s54")
            a(f"buffer_load_dword v201, v181, s[60:63], s55 offen")
            a("s_add_u32 s54, s54, 16384")
            a("s_add_u32 s50, s50, 8")
    pf(range(0, 3))
    a("s_mov_b32 s49, 0")
    a("v_and_b32 v9, 15, v1")
    a("v_lshrrev_b32 v10, 4, v1")
    a("v_lshlrev_b32 v12, 4, v10")
    a("s_waitcnt vmcnt(6)")
    if 'stamp' in FL: a("s_memtime s[66:67]")
    def conv_body(ts):
        a("v_add_u32 v8, s31, v2")
        a("v_lshlrev_b32 v11, 1, v9")
        a("v_add_u32 v11, v11, v12")
        a("v_and_b32 v14, 1, v9")
        a("v_cmp_eq_u32 vcc, 1, v14")
        a(f"v_mov_b32 v14, {CV_O}")
        a("s_nop 1")
        a("v_cndmask_b32 v14, v14, 2, vcc")
        a("v_add_u32 v11, v11, v14")
        a("v_add_u32 v11, s31, v11")
        a("v_lshlrev_b32 v13, 5, v9")
        a("v_sub_u32 v13, v12, v13")
        a(f"v_add_u32 v13, {CV_U+480}, v13")
        a("v_add_u32 v13, s31, v13")
        KA = [11, 14, 15, 202, 203]
        for i in range(1, 5):
            a(f"v_add_u32 v{KA[i]}, {960*i}, v11")
        a("v_mov_b32 v4, 0"); a("v_mov_b32 v5, 0"); a("v_mov_b32 v6, 0"); a("v_mov_b32 v7, 0")
        a("s_mov_b32 exec_hi, 0")
        a(f"ds_write_b128 v8, v[4:7] offset:{CV_U+4096}")
        a("s_mov_b32 exec_lo, 3")
        a("ds_write_b128 v8, v[4:7]")
        a("s_mov_b32 exec_lo, 1")
        a(f"ds_write_b128 v8, v[4:7] offset:{CV_O}")
        a("s_mov_b64 exec, -1")
        CA = 16; FA = 48; FB = 80
        mx = max(ts)
        for t in ts:
            for i in range(4): a(f"v_mov_b32 v{CA+4*t+i}, 0")
        for i in range(4):
            b = 48 + 6*i
            a(f"ds_write_b128 v8, v[{b}:{b+3}] offset:{32+1024*i}")
            for t in range(4):
                a(f"v_alignbit_b32 v{112+4*(i&1)+t}, v{b+t+1}, v{b+t}, 16")
            a(f"ds_write_b128 v8, v[{112+4*(i&1)}:{115+4*(i&1)}] offset:{CV_O+32+1024*i}")
            if i == 0:
                a("v_lshlrev_b32 v7, 16, v48")
                a("s_mov_b64 exec, 1")
                a(f"ds_write_b128 v8, v[4:7] offset:{CV_O+16}")
                a("s_mov_b64 exec, -1")
        a("s_waitcnt lgkmcnt(0)")
        def creads(rho):
            o = 64 * (rho & 1)
            for pi in range(mx + 1):
                p = 8*pi + rho
                r = FA+o+4*pi
                a(f"ds_read2_b32 v[{r}:{r+1}], v{KA[p//15]} offset0:{16*(p%15)} offset1:{16*(p%15)+1}")
                a(f"ds_read2_b32 v[{r+2}:{r+3}], v{KA[p//15]} offset0:{16*(p%15)+2} offset1:{16*(p%15)+3}")
                w = 8*pi - rho
                a(f"ds_read_b128 v[{FB+o+4*pi}:{FB+o+4*pi+3}], v13 offset:{64*(56-w)}")
        creads(0)
        for rho in range(8):
            a("s_waitcnt lgkmcnt(0)")
            if rho < 7:
                creads(rho + 1)
            o = 64 * (rho & 1)
            for t in ts:
                for pi in range(t + 1):
                    tau = t - pi
                    a(f"v_mfma_f32_16x16x32_bf16 v[{CA+4*t}:{CA+4*t+3}], v[{FA+o+4*pi}:{FA+o+4*pi+3}], v[{FB+o+4*tau}:{FB+o+4*tau+3}], v[{CA+4*t}:{CA+4*t+3}]")
        a("v_lshlrev_b32 v3, 16, v3")
        a("v_lshlrev_b32 v14, 5, v9")
        a("v_lshlrev_b32 v15, 3, v10")
        a("v_add_u32 v14, v14, v15")
        a(f"v_sub_u32 v15, {CV_U+504}, v14")
        a("v_add_u32 v15, s31, v15")
        a("v_add_u32 v14, s32, v14")
        for t in ts:
            a(f"ds_read_b64 v[{48+2*t}:{49+2*t}], v15 offset:{512*(7-t)}")
        a("s_waitcnt lgkmcnt(0)")
        for n_, t in enumerate(ts):
            y = CA + 4*t; kq = 48 + 2*t; T = 64 + 8*(n_ & 1)
            unpack_hi(a, T, kq+1); unpack_lo(a, T+1, kq+1); unpack_hi(a, T+2, kq); unpack_lo(a, T+3, kq)
            for i in range(4):
                a(f"v_mul_f32 v{T+i}, v{T+i}, v3")
            a(f"v_cvt_pk_bf16_f32 v{T+4}, v{T}, v{T+1}")
            a(f"v_cvt_pk_bf16_f32 v{T+5}, v{T+2}, v{T+3}")
            a(f"v_cvt_pk_bf16_f32 v{T+6}, v{y}, v{y+1}")
            a(f"v_cvt_pk_bf16_f32 v{T+7}, v{y+2}, v{y+3}")
            unpack_lo(a, T, T+4); unpack_hi(a, T+1, T+4); unpack_lo(a, T+2, T+5); unpack_hi(a, T+3, T+5)
            unpack_lo(a, y, T+6); unpack_hi(a, y+1, T+6); unpack_lo(a, y+2, T+7); unpack_hi(a, y+3, T+7)
            for i in range(4):
                a(f"v_add_f32 v{T+i}, v{T+i}, v{y+i}")
            a(f"v_cvt_pk_bf16_f32 v{y}, v{T}, v{T+1}")
            a(f"v_cvt_pk_bf16_f32 v{y+1}, v{T+2}, v{T+3}")
            a(f"buffer_store_dwordx2 v[{y}:{y+1}], v14, s[24:27], 0 offen offset:{512*t} sc1")
    conv_body(list(range(8)))
    a("s_mul_i32 s33, s30, 683")
    a("s_lshr_b32 s33, s33, 16")
    a("s_lshl_b32 s33, s33, 7")
    a(f"s_add_u32 s33, s33, {96*128}")
    a("s_cmp_ge_u32 s40, 4")
    a("s_cbranch_scc1 L_g2_pub")
    a("s_mov_b32 s32, s47")
    a("s_mov_b32 s31, s48")
    for i in range(24):
        a(f"v_mov_b32 v{48+i}, v{176+i}")
    a("v_mov_b32 v3, v200")
    for q in range(4):
        if q < 3:
            a(f"s_cmp_lg_u32 s40, {q}")
            a(f"s_cbranch_scc1 L_g2_q{q+1}")
        conv_body([7 - q, q])
        if q < 3:
            a("s_branch L_g2_pub2")
            a.label(f"L_g2_q{q+1}")
    a.label("L_g2_pub2")
    a(f"v_mov_b32 v14, {101*128}")
    a("v_mov_b32 v15, 1")
    a("s_waitcnt vmcnt(0)")
    a("s_mov_b64 exec, 1")
    a("buffer_atomic_add v15, v14, s[36:39], 0 offen")
    a("s_mov_b64 exec, -1")
    a.label("L_g2_pub")
    if 'stamp' in FL: a("s_memtime s[68:69]")
    a("v_mov_b32 v14, s33")
    a("v_mov_b32 v15, 4")
    a("s_waitcnt vmcnt(0)")
    if 'stamp' in FL: a("s_memtime s[70:71]")
    a("s_mov_b64 exec, 1")
    a("buffer_atomic_add v15, v14, s[36:39], 0 offen")
    a("s_mov_b64 exec, -1")
    if 'hpf2' in FL: pf(range(3, 6))
    if 'stamp' in FL:
        a("s_waitcnt vmcnt(0)")
        a("s_memtime s[72:73]")
        a("s_waitcnt lgkmcnt(0)")
        a("s_add_u32 s76, s8, 0x8200000")
        a("s_addc_u32 s77, s9, 0")
        a("s_mov_b32 s78, 0x100000")
        a("s_mov_b32 s79, 0x00020000")
        a("s_lshl_b32 s74, s2, 9")
        a("s_lshl_b32 s75, s40, 6")
        a("s_add_u32 s74, s74, s75")
        a("v_mov_b32 v5, s74")
        for i in range(8):
            ii = min(i, 4)
            a(f"v_mov_b32 v6, s{64+2*ii}")
            a(f"v_mov_b32 v7, s{65+2*ii}")
            a(f"buffer_store_dwordx2 v[6:7], v5, s[76:79], 0 offen offset:{8*i}")
            a("s_nop 1")
    a.label("L_g2_end")
    a("s_endpgm")
    return desc("gemm2_kernel", 248, 96)

def gen_final(a):
    a.kernel_begin("final_kernel")
    a("s_cmp_ge_u32 s2, 288")
    a("s_cbranch_scc1 L_fin_end")
    a("s_load_dwordx2 s[4:5], s[0:1], 0")
    a("s_load_dwordx2 s[6:7], s[0:1], 80")
    a("s_load_dwordx2 s[8:9], s[0:1], 96")
    a("s_and_b32 s32, s2, 31")
    a("s_lshr_b32 s33, s2, 5")
    a("s_waitcnt lgkmcnt(0)")
    a.srd(12, 4, SZ_SD)
    a.srd(16, 6, SZ_SD)
    a.srd(20, 8, SZ_SD, WS_XN)
    a.srd(24, 8, SZ_SD, WS_Y2T)
    a.srd(28, 8, SZ_P, WS_P)
    a("v_lshrrev_b32 v1, 2, v0")
    a("v_and_b32 v2, 3, v0")
    a("v_lshlrev_b32 v3, 12, v1")
    a("v_lshlrev_b32 v4, 5, v2")
    a("v_add_u32 v3, v3, v4")
    a("s_lshl_b32 s34, s33, 18")
    a("s_lshl_b32 s35, s32, 7")
    a("s_add_u32 s34, s34, s35")
    a("v_add_u32 v3, s34, v3")
    a("buffer_load_dwordx4 v[8:11], v3, s[24:27], 0 offen")
    a("buffer_load_dwordx4 v[12:15], v3, s[24:27], 0 offen offset:16")
    a("v_mul_u32_u24 v5, 136, v1")
    a("v_add_u32 v5, v5, v4")
    a("v_lshrrev_b32 v6, 3, v0")
    a("v_and_b32 v7, 7, v0")
    a("s_lshl_b32 s34, s32, 6")
    a("v_add_u32 v16, s34, v6")
    a("v_lshrrev_b32 v20, 4, v16")
    a("v_mul_u32_u24 v20, 18432, v20")
    a("v_and_b32 v21, 15, v16")
    a("v_lshlrev_b32 v21, 4, v21")
    a("v_add_u32 v20, v20, v21")
    a("v_and_b32 v21, 1, v7")
    a("v_lshlrev_b32 v21, 10, v21")
    a("v_add_u32 v20, v20, v21")
    a("v_lshrrev_b32 v21, 1, v7")
    a("v_lshlrev_b32 v21, 8, v21")
    a("v_add_u32 v20, v20, v21")
    a("s_lshl_b32 s35, s33, 11")
    a("v_add_u32 v22, s35, v20")
    a(f"v_add_u32 v23, {2*18432}, v22")
    a("v_mul_u32_u24 v16, 1152, v16")
    a("v_lshlrev_b32 v17, 4, v7")
    a("s_lshl_b32 s35, s33, 7")
    a("v_add_u32 v17, s35, v17")
    a("v_add_u32 v16, v16, v17")
    a(f"v_add_u32 v17, {32*1152}, v16")
    a("v_lshlrev_b32 v18, 1, v16")
    a("v_lshlrev_b32 v19, 1, v17")
    for it in range(2):
        b = 24 + 40*it
        a(f"buffer_load_dwordx4 v[{b}:{b+3}], v{16+it}, s[12:15], 0 offen")
        a(f"buffer_load_dwordx4 v[{b+4}:{b+7}], v{22+it}, s[20:23], 0 offen")
        for ks in range(4):
            a(f"s_mov_b32 s36, {ks*S*D*4}")
            a(f"buffer_load_dwordx4 v[{b+8+8*ks}:{b+11+8*ks}], v{18+it}, s[28:31], s36 offen")
            a(f"buffer_load_dwordx4 v[{b+12+8*ks}:{b+15+8*ks}], v{18+it}, s[28:31], s36 offen offset:16")
    a("s_waitcnt vmcnt(20)")
    for m in range(4):
        a(f"ds_write_b64 v5, v[{8+2*m}:{9+2*m}] offset:{8*m}")
    a("s_waitcnt lgkmcnt(0)")
    a("s_barrier")
    a("v_mul_u32_u24 v20, 1088, v7")
    a("v_lshlrev_b32 v21, 1, v6")
    a("v_add_u32 v20, v20, v21")
    for it in range(2):
        for c in range(8):
            a(f"ds_read_u16 v{104+8*it+c}, v20 offset:{136*c + 64*it}")
    a("s_waitcnt vmcnt(0) lgkmcnt(0)")
    for it in range(2):
        b = 24 + 40*it
        for w in range(4):
            T = 120
            y0, y1 = 104 + 8*it + 2*w, 104 + 8*it + 2*w + 1
            unpack_lo(a, y0, y0); unpack_lo(a, y1, y1)
            unpack_lo(a, T, b+4+w); unpack_hi(a, T+1, b+4+w)
            a(f"v_mul_f32 v{T}, v{T}, v{y0}")
            a(f"v_mul_f32 v{T+1}, v{T+1}, v{y1}")
            a(f"v_cvt_pk_bf16_f32 v{T+2}, v{T}, v{T+1}")
            unpack_lo(a, T, T+2); unpack_hi(a, T+1, T+2)
            unpack_lo(a, T+3, b+w); unpack_hi(a, T+4, b+w)
            a(f"v_add_f32 v{T}, v{T}, v{T+3}")
            a(f"v_add_f32 v{T+1}, v{T+1}, v{T+4}")
            a(f"v_cvt_pk_bf16_f32 v{T+2}, v{T}, v{T+1}")
            unpack_lo(a, T, T+2); unpack_hi(a, T+1, T+2)
            p = b + 8 + 2*w
            a(f"v_add_f32 v{T+3}, v{p}, v{p+8}")
            a(f"v_add_f32 v{T+4}, v{p+1}, v{p+9}")
            a(f"v_add_f32 v{T+5}, v{p+16}, v{p+24}")
            a(f"v_add_f32 v{T+6}, v{p+17}, v{p+25}")
            a(f"v_add_f32 v{T+3}, v{T+3}, v{T+5}")
            a(f"v_add_f32 v{T+4}, v{T+4}, v{T+6}")
            a(f"v_cvt_pk_bf16_f32 v{T+2}, v{T+3}, v{T+4}")
            unpack_lo(a, T+3, T+2); unpack_hi(a, T+4, T+2)
            a(f"v_add_f32 v{T}, v{T}, v{T+3}")
            a(f"v_add_f32 v{T+1}, v{T+1}, v{T+4}")
            a(f"v_cvt_pk_bf16_f32 v{b+w}, v{T}, v{T+1}")
        a(f"buffer_store_dwordx4 v[{b}:{b+3}], v{16+it}, s[16:19], 0 offen")
    a.label("L_fin_end")
    a("s_endpgm")
    return desc("final_kernel", 128)

def main(path):
    hdr = open("parallel_sum__ssm_conv_h3__glu_gated_swiglu__prompt.s.ref").read().split("\n")
    head = [l for l in hdr if l.startswith(";") and "@launch" not in l and "Override launch" not in l and "grid=ceil" not in l]
    launches = [
        "; @launch kernel=front_kernel grid=(480,1,1) block=(256,1,1) lds=8704",
        f"; @launch kernel=gemm1_kernel grid=(256,1,1) block=(512,1,1) lds={NST*STAGE}",
        f"; @launch kernel=gemm2_kernel grid=(256,1,1) block=(512,1,1) lds={G2_LDS}",
    ]
    a = Asm()
    descs = [gen_front(a), gen_gemm1(a), gen_gemm2(a)]
    out = "\n".join(head + launches) + "\n"
    out += '.amdgcn_target "amdgcn-amd-amdhsa--gfx950"\n.text\n'
    out += "\n".join(a.l) + "\n"
    out += '.section .rodata,"a"\n'
    for d in descs:
        out += ".p2align 6\n" + d
    open(path, "w").write(out)

if __name__ == "__main__":
    main(sys.argv[1] if len(sys.argv) > 1 else "parallel_sum__ssm_conv_h3__glu_gated_swiglu__prompt.s")
```

```python
import sys, os
FL = set(os.environ.get('FL','').split(','))

S, D, F = 2048, 576, 4608
WS_XN, WS_KVT, WS_Y2T, WS_H, WS_P = 0x0, 0x400000, 0x800000, 0x1000000, 0x3000000
WS_XP = 0x2400000
WS_FL = 0x3800000
SZ_SD = S * D * 2
SZ_W = D * F * 2
SZ_H = S * F * 2
SZ_P = 4 * S * D * 4

class Asm:
    def __init__(self):
        self.l = []
        self.gemm = False
        self.keepbar = False
        self.vm = []
        self.lg = []
    def __call__(self, s):
        if self.gemm:
            if 'nomfma' in FL and s.startswith('v_mfma'): return
            if 'nolds' in FL and s.startswith('ds_read_b64_tr'): return
            if 'nodma' in FL and s.endswith('offen lds'): return
            if 'noa' in FL and s.startswith('buffer_load_dwordx4 v['): return
            if 'nobar' in FL and s.startswith('s_barrier') and not self.keepbar: return
            if 'nostore' in FL and s.startswith('buffer_store'): return
        self.l.append("    " + s)
    def label(self, s):
        self.l.append(s + ":")
    def c(self, s):
        self.l.append("    ; " + s)
    def vmem(self, s, tag):
        self(s); self.vm.append(tag)
    def lds(self, s, tag):
        self(s); self.lg.append(tag)
    def wait_vm(self, tag):
        if tag not in self.vm: return
        idx = max(i for i, t in enumerate(self.vm) if t == tag)
        n = len(self.vm) - 1 - idx
        assert n <= 63
        self(f"s_waitcnt vmcnt({n})")
        self.vm = self.vm[idx + 1:]
    def wait_lg(self, tag):
        if tag not in self.lg: return
        idx = max(i for i, t in enumerate(self.lg) if t == tag)
        n = len(self.lg) - 1 - idx
        assert n <= 15, n
        self(f"s_waitcnt lgkmcnt({n})")
        self.lg = self.lg[idx + 1:]
    def wait_all(self):
        self("s_waitcnt vmcnt(0) lgkmcnt(0)")
        self.vm = []; self.lg = []
    def srd(self, d, base, size, off=0):
        if off:
            self(f"s_add_u32 s{d}, s{base}, {off}")
            self(f"s_addc_u32 s{d+1}, s{base+1}, 0")
        else:
            self(f"s_mov_b32 s{d}, s{base}")
            self(f"s_mov_b32 s{d+1}, s{base+1}")
        self(f"s_mov_b32 s{d+2}, {size}")
        self(f"s_mov_b32 s{d+3}, 0x00020000")
    def stamp(self, i):
        if 'stamp' not in FL: return
        self(f"s_memtime s[{50+2*i}:{51+2*i}]")
        if i == 0: self("s_memrealtime s[62:63]")
    def stamp_flush(self, n, wsb, base):
        if 'stamp' not in FL: return
        self("s_memrealtime s[64:65]")
        self("s_waitcnt lgkmcnt(0)")
        self(f"s_add_u32 s68, s{wsb}, {base}")
        self(f"s_addc_u32 s69, s{wsb+1}, 0")
        self("s_mov_b32 s70, 0x100000")
        self("s_mov_b32 s71, 0x00020000")
        self("s_lshl_b32 s66, s2, 9")
        self("s_lshl_b32 s67, s40, 6")
        self("s_add_u32 s66, s66, s67")
        self("v_mov_b32 v5, s66")
        for i in range(8):
            self(f"v_mov_b32 v6, s{50+2*i}")
            self(f"v_mov_b32 v7, s{51+2*i}")
            self(f"buffer_store_dwordx2 v[6:7], v5, s[68:71], 0 offen offset:{8*i}")
            self("s_nop 1")
    def kernel_begin(self, name):
        self.l.append(f".globl {name}")
        self.l.append(".p2align 8")
        self.l.append(f".type {name},@function")
        self.label(name)
        self.gemm = name.startswith('gemm'); self.keepbar = False
        self.vm = []; self.lg = []

def vr(b, n=1):
    return f"v{b}" if n == 1 else f"v[{b}:{b+n-1}]"

def desc(name, vgpr, sgpr=80):
    acc = (vgpr + 3) // 4 * 4
    return f""".amdhsa_kernel {name}
  .amdhsa_next_free_vgpr {vgpr}
  .amdhsa_next_free_sgpr {sgpr}
  .amdhsa_accum_offset {acc}
  .amdhsa_group_segment_fixed_size 0
  .amdhsa_kernarg_size 104
  .amdhsa_user_sgpr_count 2
  .amdhsa_user_sgpr_kernarg_segment_ptr 1
  .amdhsa_system_sgpr_workgroup_id_x 1
  .amdhsa_float_denorm_mode_32 3
.end_amdhsa_kernel
"""

def unpack_lo(a, d, s): a(f"v_lshlrev_b32 v{d}, 16, v{s}")
def unpack_hi(a, d, s): a(f"v_and_b32 v{d}, 0xffff0000, v{s}")

CV_O, CV_U, CV_SZ = 4224, 8448, 13056
def gen_front(a):
    a.kernel_begin("front_kernel")
    a("s_cmp_ge_u32 s2, 480")
    a("s_cbranch_scc1 L_fr_end")
    a("s_cmp_lt_u32 s2, 64")
    a("s_cbranch_scc1 L_fr_pf")
    a("s_cmp_ge_u32 s2, 192")
    a("s_cbranch_scc1 L_fr_kv")
    a("s_load_dwordx2 s[4:5], s[0:1], 0")
    a("s_load_dwordx2 s[14:15], s[0:1], 96")
    a("s_waitcnt lgkmcnt(0)")
    a.srd(16, 4, SZ_SD)
    a.srd(20, 14, SZ_SD, WS_XN)
    a("s_sub_u32 s3, s2, 64")
    a("s_lshl_b32 s3, s3, 4")
    a("v_lshrrev_b32 v1, 4, v0")
    a("v_add_u32 v1, s3, v1")
    a("v_and_b32 v2, 15, v0")
    a("v_mul_u32_u24 v3, 1152, v1")
    a("v_lshlrev_b32 v4, 3, v2")
    a("v_add_u32 v3, v3, v4")
    for i in range(9):
        a(f"buffer_load_dwordx2 v[{8+2*i}:{9+2*i}], v3, s[16:19], 0 offen offset:{128*i}")
    a("v_lshrrev_b32 v4, 4, v1")
    a("v_mul_u32_u24 v4, 18432, v4")
    a("v_and_b32 v5, 15, v1")
    a("v_lshlrev_b32 v5, 4, v5")
    a("v_add_u32 v4, v4, v5")
    a("v_lshrrev_b32 v5, 2, v2")
    a("v_lshlrev_b32 v5, 8, v5")
    a("v_add_u32 v4, v4, v5")
    a("v_lshrrev_b32 v5, 1, v2")
    a("v_and_b32 v5, 1, v5")
    a("v_lshlrev_b32 v5, 10, v5")
    a("v_add_u32 v4, v4, v5")
    a("v_and_b32 v5, 1, v2")
    a("v_lshlrev_b32 v5, 3, v5")
    a("v_add_u32 v1, v4, v5")
    a("s_waitcnt vmcnt(0)")
    X = 32
    for i in range(18):
        unpack_lo(a, X + 2*i, 8 + i)
        unpack_hi(a, X + 2*i + 1, 8 + i)
    for i in range(9):
        a(f"v_mov_b32 v{72+4*i}, v{8+2*i}")
        a(f"v_mov_b32 v{73+4*i}, v{9+2*i}")
    a(f"v_add_f32 v2, v{X}, v{X+1}")
    a(f"v_add_f32 v3, v{X+2}, v{X+3}")
    for i in range(4, 36, 2):
        a(f"v_add_f32 v2, v2, v{X+i}")
        a(f"v_add_f32 v3, v3, v{X+i+1}")
    a("v_add_f32 v2, v2, v3")
    def red16(r, t):
        a("s_nop 1")
        a(f"v_add_f32_dpp v{t}, v{r}, v{r} quad_perm:[1,0,3,2] row_mask:0xf bank_mask:0xf")
        a("s_nop 1")
        a(f"v_add_f32_dpp v{r}, v{t}, v{t} quad_perm:[2,3,0,1] row_mask:0xf bank_mask:0xf")
        a("s_nop 1")
        a(f"v_add_f32_dpp v{t}, v{r}, v{r} row_half_mirror row_mask:0xf bank_mask:0xf")
        a("s_nop 1")
        a(f"v_add_f32_dpp v{r}, v{t}, v{t} row_mirror row_mask:0xf bank_mask:0xf")
    red16(2, 3)
    a("s_mov_b32 s24, 0x3ae38e39")
    a("v_mul_f32 v2, s24, v2")
    a("v_mov_b32 v4, 0")
    a("v_mov_b32 v5, 0")
    for i in range(0, 36, 2):
        a(f"v_sub_f32 v6, v{X+i}, v2")
        a(f"v_sub_f32 v7, v{X+i+1}, v2")
        a("v_fmac_f32 v4, v6, v6")
        a("v_fmac_f32 v5, v7, v7")
    a("v_add_f32 v4, v4, v5")
    red16(4, 5)
    a("v_mul_f32 v4, s24, v4")
    a("v_cvt_pk_bf16_f32 v5, v2, v4")
    unpack_lo(a, 2, 5)
    unpack_hi(a, 4, 5)
    a("v_add_f32 v4, 0x3727c5ac, v4")
    a("v_cvt_pk_bf16_f32 v4, v4, v4")
    unpack_hi(a, 4, 4)
    a("v_sqrt_f32 v4, v4")
    a("s_nop 0")
    a("v_cvt_pk_bf16_f32 v4, v4, v4")
    unpack_hi(a, 4, 4)
    a("v_rcp_f32 v5, v4")
    a("s_nop 0")
    for i in range(18):
        x0, x1 = X + 2*i, X + 2*i + 1
        a(f"v_sub_f32 v{x0}, v{x0}, v2")
        a(f"v_sub_f32 v{x1}, v{x1}, v2")
        a(f"v_cvt_pk_bf16_f32 v6, v{x0}, v{x1}")
        unpack_lo(a, x0, 6)
        unpack_hi(a, x1, 6)
        a(f"v_mul_f32 v6, v{x0}, v5")
        a(f"v_mul_f32 v7, v{x1}, v5")
        a(f"v_fma_f32 v{x0}, -v6, v4, v{x0}")
        a(f"v_fma_f32 v{x1}, -v7, v4, v{x1}")
        a(f"v_fma_f32 v6, v{x0}, v5, v6")
        a(f"v_fma_f32 v7, v{x1}, v5, v7")
        a(f"v_cvt_pk_bf16_f32 v{8+i}, v6, v7")
    for i in range(9):
        a(f"s_mov_b32 s25, {2048*i}")
        a(f"buffer_store_dwordx2 v[{8+2*i}:{9+2*i}], v1, s[20:23], s25 offen")
    a.srd(28, 14, 2*SZ_SD, WS_XP)
    a("v_lshrrev_b32 v2, 4, v0")
    a("v_add_u32 v2, s3, v2")
    a("v_lshrrev_b32 v3, 4, v2")
    a("v_mul_u32_u24 v3, 36864, v3")
    a("v_and_b32 v2, 15, v2")
    a("v_lshlrev_b32 v2, 4, v2")
    a("v_add_u32 v3, v3, v2")
    a("v_bfe_u32 v2, v0, 2, 2")
    a("v_lshlrev_b32 v2, 10, v2")
    a("v_add_u32 v3, v3, v2")
    a("v_and_b32 v2, 3, v0")
    a("v_lshlrev_b32 v2, 8, v2")
    a("v_add_u32 v3, v3, v2")
    for i in range(9):
        a(f"v_mov_b32 v{74+4*i}, v{8+2*i}")
        a(f"v_mov_b32 v{75+4*i}, v{9+2*i}")
        a(f"s_mov_b32 s25, {4096*i}")
        a(f"buffer_store_dwordx4 v[{72+4*i}:{75+4*i}], v3, s[28:31], s25 offen")
    a("s_endpgm")
    a.label("L_fr_pf")
    a("s_load_dwordx4 s[4:7], s[0:1], 56")
    a("s_load_dwordx2 s[8:9], s[0:1], 32")
    a("s_load_dwordx2 s[10:11], s[0:1], 96")
    a("v_and_b32 v1, 63, v0")
    a("v_lshrrev_b32 v2, 6, v0")
    a("s_nop 0")
    a("v_readfirstlane_b32 s40, v2")
    a("s_and_b32 s30, s2, 7")
    a("s_mul_i32 s30, s30, 1152")
    a("s_mov_b32 s31, s2")
    a("s_lshr_b32 s31, s31, 3")
    a("s_lshl_b32 s31, s31, 2")
    a("s_add_u32 s31, s31, s40")
    a(f"s_mul_i32 s31, s31, {7*9216}")
    a("v_mul_u32_u24 v2, 57, v1")
    a("v_lshrrev_b32 v2, 9, v2")
    a("v_mul_u32_u24 v3, 9, v2")
    a("v_sub_u32 v3, v1, v3")
    a("v_mul_u32_u24 v2, 9216, v2")
    a("v_lshlrev_b32 v3, 7, v3")
    a("v_add_u32 v2, v2, v3")
    a("s_waitcnt lgkmcnt(0)")
    a.srd(24, 10, 128*128, WS_FL)
    a("s_cmp_lg_u32 s2, 0")
    a("s_cbranch_scc1 L_fr_pf1")
    a("v_lshlrev_b32 v4, 7, v0")
    a("v_mov_b32 v5, 0")
    a("buffer_store_dword v5, v4, s[24:27], 0 offen")
    a.label("L_fr_pf1")
    for m in range(2):
        a(f"s_add_u32 s{12+4*m}, s{4+2*m}, s30")
        a(f"s_addc_u32 s{13+4*m}, s{5+2*m}, 0")
        a(f"s_sub_u32 s{14+4*m}, {SZ_W}, s30")
        a(f"s_mov_b32 s{15+4*m}, 0x00020000")
    for r in range(0 if 'nofpf' in FL else (3 if 'fpf3' in FL else (2 if 'fpf2' in FL else 1))):
        a(f"buffer_load_dword v{8+2*r}, v2, s[12:15], s31 offen")
        a(f"buffer_load_dword v{9+2*r}, v2, s[16:19], s31 offen")
        a(f"s_add_u32 s31, s31, {32*7*9216}")
    a.srd(20, 8, SZ_SD)
    a("s_mov_b32 s31, s2")
    a("s_lshl_b32 s31, s31, 2")
    a("s_add_u32 s31, s31, s40")
    a("s_lshl_b32 s31, s31, 13")
    a("v_lshlrev_b32 v3, 7, v1")
    a("buffer_load_dword v16, v3, s[20:23], s31 offen")
    a(f"s_add_u32 s31, s31, {256*8192}")
    a("buffer_load_dword v17, v3, s[20:23], s31 offen")
    a("s_endpgm")
    a.label("L_fr_kv")
    a("s_load_dwordx4 s[8:11], s[0:1], 8")
    a("s_load_dwordx2 s[12:13], s[0:1], 24")
    a("s_load_dwordx2 s[14:15], s[0:1], 96")
    a("s_waitcnt lgkmcnt(0)")
    a.srd(16, 8, SZ_SD)
    a.srd(20, 10, SZ_SD)
    a.srd(24, 12, D * 8)
    a.srd(28, 14, SZ_SD, WS_KVT)
    a("s_sub_u32 s3, s2, 192")
    a("s_and_b32 s32, s3, 31")
    a("s_lshr_b32 s33, s3, 5")
    a("v_lshrrev_b32 v1, 3, v0")
    a("v_and_b32 v2, 7, v0")
    a("s_lshl_b32 s34, s32, 6")
    a("v_lshlrev_b32 v3, 1, v1")
    a("v_add_u32 v3, s34, v3")
    a("s_lshl_b32 s35, s33, 7")
    a("v_lshlrev_b32 v4, 4, v2")
    a("v_add_u32 v4, s35, v4")
    a("v_mul_u32_u24 v5, 1152, v3")
    a("v_add_u32 v5, v5, v4")
    for r in range(5):
        a(f"v_add_u32 v{6+r}, {(r-3)*1152 & 0xffffffff}, v5")
    for r in range(5):
        a(f"buffer_load_dwordx4 v[{12+4*r}:{15+4*r}], v{6+r}, s[16:19], 0 offen")
    a("buffer_load_dwordx4 v[32:35], v5, s[20:23], 0 offen")
    a("buffer_load_dwordx4 v[36:39], v5, s[20:23], 0 offen offset:1152")
    a("v_lshlrev_b32 v11, 2, v4")
    for i in range(4):
        a(f"buffer_load_dwordx4 v[{40+4*i}:{43+4*i}], v11, s[24:27], 0 offen offset:{16*i}")
    a("v_mul_u32_u24 v56, 1088, v2")
    a("v_sub_u32 v57, 31, v1")
    a("v_lshlrev_b32 v57, 2, v57")
    a("v_add_u32 v56, v56, v57")
    a("s_waitcnt vmcnt(0)")
    for c in range(8):
        w, hi = c >> 1, c & 1
        up = unpack_hi if hi else unpack_lo
        for r in range(5):
            up(a, 60 + r, 12 + 4*r + w)
        up(a, 65, 32 + w); up(a, 66, 36 + w)
        unpack_lo(a, 67, 40 + 2*c); unpack_hi(a, 68, 40 + 2*c)
        unpack_lo(a, 69, 41 + 2*c); unpack_hi(a, 70, 41 + 2*c)
        for step, j in enumerate([3, 2, 1, 0]):
            kk0 = 60 + (3 - j); kk1 = kk0 + 1
            a(f"v_mul_f32 v71, v{kk0}, v{67+j}")
            a(f"v_mul_f32 v72, v{kk1}, v{67+j}")
            a("v_cvt_pk_bf16_f32 v73, v71, v72")
            if step == 0:
                unpack_lo(a, 74, 73); unpack_hi(a, 75, 73)
            else:
                unpack_lo(a, 71, 73); unpack_hi(a, 72, 73)
                a("v_add_f32 v74, v74, v71")
                a("v_add_f32 v75, v75, v72")
                a("v_cvt_pk_bf16_f32 v73, v74, v75")
                unpack_lo(a, 74, 73); unpack_hi(a, 75, 73)
        a("v_mul_f32 v74, v74, v65")
        a("v_mul_f32 v75, v75, v66")
        a("v_cvt_pk_bf16_f32 v73, v75, v74")
        a(f"ds_write_b32 v56, v73 offset:{136*c}")
    a("s_waitcnt lgkmcnt(0)")
    a("s_barrier")
    a("v_lshrrev_b32 v1, 2, v0")
    a("v_and_b32 v2, 3, v0")
    a("v_mul_u32_u24 v3, 136, v1")
    a("v_lshlrev_b32 v4, 5, v2")
    a("v_add_u32 v3, v3, v4")
    for m in range(4):
        a(f"ds_read_b64 v[{8+2*m}:{9+2*m}], v3 offset:{8*m}")
    a("s_lshl_b32 s36, s33, 18")
    a("s_lshl_b32 s37, s32, 7")
    a("s_sub_u32 s36, s36, s37")
    a("s_add_u32 s36, s36, 3968")
    a("v_lshlrev_b32 v5, 12, v1")
    a("v_add_u32 v5, v5, v4")
    a("v_add_u32 v5, s36, v5")
    a("s_waitcnt lgkmcnt(0)")
    a("buffer_store_dwordx4 v[8:11], v5, s[28:31], 0 offen")
    a("buffer_store_dwordx4 v[12:15], v5, s[28:31], 0 offen offset:16")
    a.label("L_fr_end")
    a("s_endpgm")
    return desc("front_kernel", 128)

STAGE = 36864
NST = 4
PD = 5

def gemm_setup_dma(a, row_bytes, vD, sW, sH, perm):
    a("s_and_b32 s41, s40, 3")
    a("s_lshr_b32 s42, s40, 2")
    a("s_mul_i32 s43, s42, 18432")
    a("s_lshl_b32 s44, s41, 12")
    a(f"s_add_u32 s{sW}, s43, s44")
    a("s_lshl_b32 s44, s41, 9")
    a("s_add_u32 s44, s44, 16384")
    a(f"s_add_u32 s{sH}, s43, s44")
    a("s_movk_i32 s45, 3641")
    for i in range(5):
        if i < 4:
            a("s_lshl_b32 s44, s41, 8")
            a(f"s_add_u32 s44, s44, {64*i}")
        else:
            a("s_lshl_b32 s44, s41, 5")
            a("s_add_u32 s44, s44, 1024")
        a("v_add_u32 v17, s44, v1")
        a("v_mul_lo_u32 v18, v17, s45")
        a("v_lshrrev_b32 v18, 16, v18")
        a("v_mul_u32_u24 v19, 18, v18")
        a("v_sub_u32 v19, v17, v19")
        if perm:
            a("v_lshrrev_b32 v17, 4, v18")
            a("v_and_b32 v17, 1, v17")
            a("v_lshlrev_b32 v17, 2, v17")
            a("v_xor_b32 v18, v18, v17")
        a(f"v_mul_u32_u24 v18, {row_bytes}, v18")
        a("v_lshlrev_b32 v19, 4, v19")
        a(f"v_add_u32 v{vD+i}, v18, v19")

def gemm_dma(a, j, vD, sW, sH, srdW, kstep_bytes):
    st = j % NST
    a(f"s_mov_b32 s46, {j*kstep_bytes}")
    for i in range(4):
        a(f"s_add_u32 m0, s{sW}, {st*STAGE + 1024*i}")
        a("s_nop 0")
        a.vmem(f"buffer_load_dwordx4 v{vD+i}, s[{srdW}:{srdW+3}], s46 offen lds", f"D{j}")
    a(f"s_add_u32 m0, s{sH}, {st*STAGE}")
    a("s_mov_b32 exec_hi, 0")
    a.vmem(f"buffer_load_dwordx4 v{vD+4}, s[{srdW}:{srdW+3}], s46 offen lds", f"D{j}")
    a("s_mov_b32 exec_hi, -1")

def gemm_loop(a, units, NU, NAB, w_reads, mfmas, a_loads, dma, early, late=None, NJ=9, NS=4, PD=PD, hooks=None):
    a.wait_vm("A0")
    a("s_barrier")
    a.stamp(2)
    for U in range(PD):
        w_reads(U)
    for U, un in enumerate(units):
        j = un[0]; u = U % NU
        if U == NU*4 and not ('st2' in FL and NJ != 9): a.stamp(3)
        if u == 0 and j > 0:
            a.wait_vm(f"A{j}")
            if j + NAB - 1 <= NJ - 1:
                a_loads(j + NAB - 1)
        if j == 0 and u in early:
            early[u]()
        if j == NJ - 1 and u == 2 and late: late()
        if hooks and (j, u) in hooks: hooks[(j, u)]()
        if u == NU - PD and j < NJ - 1:
            a.wait_vm(f"D{j+1}")
            a("s_barrier")
            if j + NS - 1 <= NJ - 1:
                dma(j + NS - 1)
        if U + PD < len(units):
            w_reads(U + PD)
        a.wait_lg(f"W{U}")
        mfmas(U)

CVB = 3 * 36864
G1_LDS = CVB + 4 * CV_SZ
def conv_head_loads(a):
    a("s_lshr_b32 s80, s40, 1")
    a("s_lshl_b32 s81, s80, 8")
    a("s_add_u32 s81, s81, s2")
    a("s_cmp_lt_u32 s81, 576")
    a("s_cselect_b32 s82, 1, 0")
    a("s_min_u32 s81, s81, 575")
    a(f"s_mul_i32 s83, s80, {CV_SZ}")
    a(f"s_add_u32 s83, s83, {CVB}")
    a("s_lshl_b32 s84, s81, 12")
    a.srd(88, 72, SZ_SD)
    a.srd(92, 74, D*2)
    a.srd(96, 8, SZ_SD, WS_KVT)
    a("v_lshlrev_b32 v212, 4, v1")
    for i in range(4):
        a.vmem(f"buffer_load_dwordx4 v[{84+8*i}:{87+8*i}], v212, s[88:91], s84 offen offset:{1024*i}", "CK")
        a.vmem(f"buffer_load_dword v{88+8*i}, v212, s[88:91], s84 offen offset:{1024*i+16}", "CK")
    for i in range(4):
        a(f"s_add_u32 m0, s83, {CV_U + 1024*i}")
        a(f"s_add_u32 s85, s84, {1024*i}")
        a.vmem("buffer_load_dwordx4 v212, s[96:99], s85 offen lds", "CU")
    a("s_lshl_b32 s85, s81, 1")
    a("v_mov_b32 v213, s85")
    a.vmem("buffer_load_ushort v213, v213, s[92:95], 0 offen", "CU")

def conv_head_compute(a):
    Z = 216
    for i in range(4): a(f"v_mov_b32 v{Z+i}, 0")
    a("v_add_u32 v214, s83, v212")
    a("s_mov_b32 exec_hi, 0")
    a(f"ds_write_b128 v214, v[{Z}:{Z+3}] offset:{CV_U+4096}")
    a("s_mov_b32 exec_lo, 3")
    a(f"ds_write_b128 v214, v[{Z}:{Z+3}]")
    a("s_mov_b32 exec_lo, 1")
    a(f"ds_write_b128 v214, v[{Z}:{Z+3}] offset:{CV_O}")
    a("s_mov_b64 exec, -1")
    a("v_and_b32 v220, 15, v1")
    a("v_lshrrev_b32 v221, 4, v1")
    a("v_lshlrev_b32 v222, 1, v220")
    a("v_lshlrev_b32 v223, 4, v221")
    a("v_add_u32 v222, v222, v223")
    a("v_and_b32 v224, 1, v220")
    a("v_cmp_eq_u32 vcc, 1, v224")
    a(f"v_mov_b32 v224, {CV_O}")
    a("s_nop 1")
    a("v_cndmask_b32 v224, v224, 2, vcc")
    a("v_add3_u32 v222, v222, v224, s83")
    a("v_lshlrev_b32 v225, 5, v220")
    a("v_sub_u32 v225, v223, v225")
    a(f"v_add_u32 v225, {CV_U+480}, v225")
    a("v_add_u32 v225, s83, v225")
    KA = [226, 227, 228, 229, 230]
    for i in range(5):
        a(f"v_add_u32 v{KA[i]}, {960*i}, v222")
    ACC = 52; FA = 84; FB = 116
    for i in range(16):
        a(f"v_mov_b32 v{ACC+i}, 0")
    a.wait_vm("CK")
    for i in range(4):
        b = 84 + 8*i
        a(f"ds_write_b128 v214, v[{b}:{b+3}] offset:{32+1024*i}")
        for t in range(4):
            a(f"v_alignbit_b32 v{232+4*(i&1)+t}, v{b+t+1}, v{b+t}, 16")
        a(f"ds_write_b128 v214, v[{232+4*(i&1)}:{235+4*(i&1)}] offset:{CV_O+32+1024*i}")
        if i == 0:
            a(f"v_lshlrev_b32 v{Z+3}, 16, v84")
            a("s_mov_b64 exec, 1")
            a(f"ds_write_b128 v214, v[{Z}:{Z+3}] offset:{CV_O+16}")
            a("s_mov_b64 exec, -1")
    a.wait_vm("CU")
    a("s_waitcnt lgkmcnt(0)")
    a("s_cmp_eq_u32 s82, 0")
    a("s_cbranch_scc1 L_cvh_epi")
    a("s_and_b32 s85, s40, 1")
    a("s_cmp_eq_u32 s85, 1")
    a("s_cbranch_scc1 L_cvh_p1")
    TS = [[7, 4, 1, 0], [6, 5, 3, 2]]
    for part in range(2):
        if part == 1: a.label("L_cvh_p1")
        ts = TS[part]; mx = max(ts)
        def reads(rho):
            o = 64 * (rho & 1)
            for pi in range(mx + 1):
                p = 8*pi + rho
                r = FA+o+4*pi
                a(f"ds_read2_b32 v[{r}:{r+1}], v{KA[p//15]} offset0:{16*(p%15)} offset1:{16*(p%15)+1}")
                a(f"ds_read2_b32 v[{r+2}:{r+3}], v{KA[p//15]} offset0:{16*(p%15)+2} offset1:{16*(p%15)+3}")
                w = 8*pi - rho
                a(f"ds_read_b128 v[{FB+o+4*pi}:{FB+o+4*pi+3}], v225 offset:{64*(56-w)}")
        reads(0)
        for rho in range(8):
            a("s_waitcnt lgkmcnt(0)")
            if rho < 7:
                reads(rho + 1)
            o = 64 * (rho & 1)
            work = [[(ti, t, pi) for pi in range(t + 1)] for ti, t in enumerate(ts)]
            while any(work):
                for wl in work:
                    if wl:
                        ti, t, pi = wl.pop(0)
                        tau = t - pi
                        a(f"v_mfma_f32_16x16x32_bf16 v[{ACC+4*ti}:{ACC+4*ti+3}], v[{FA+o+4*pi}:{FA+o+4*pi+3}], v[{FB+o+4*tau}:{FB+o+4*tau+3}], v[{ACC+4*ti}:{ACC+4*ti+3}]")
        for ti, t in enumerate(ts):
            a(f"s_mov_b32 s{76+ti}, {512*t}")
        if part == 0: a("s_branch L_cvh_epi")
    a.label("L_cvh_epi")
    a.srd(88, 8, SZ_SD, WS_Y2T)
    a("s_cmp_eq_u32 s82, 0")
    a("s_cselect_b32 s84, 0x7f000000, s84")
    for ti in range(4):
        a(f"s_cselect_b32 s{76+ti}, 0, s{76+ti}")
    a("v_lshlrev_b32 v213, 16, v213")
    a("v_lshlrev_b32 v224, 5, v220")
    a("v_lshlrev_b32 v226, 3, v221")
    a("v_add_u32 v224, v224, v226")
    a(f"v_sub_u32 v226, {CV_U+4088}, v224")
    a("v_add_u32 v226, s83, v226")
    a("v_add_u32 v224, s84, v224")
    for ti in range(4):
        a(f"v_subrev_u32 v227, s{76+ti}, v226")
        a(f"ds_read_b64 v[{84+2*ti}:{85+2*ti}], v227")
    a("s_waitcnt lgkmcnt(0)")
    for ti in range(4):
        y = ACC + 4*ti; kq = 84 + 2*ti; T = 100 + 8*(ti & 1)
        unpack_hi(a, T, kq+1); unpack_lo(a, T+1, kq+1); unpack_hi(a, T+2, kq); unpack_lo(a, T+3, kq)
        for i in range(4):
            a(f"v_mul_f32 v{T+i}, v{T+i}, v213")
        a(f"v_cvt_pk_bf16_f32 v{T+4}, v{T}, v{T+1}")
        a(f"v_cvt_pk_bf16_f32 v{T+5}, v{T+2}, v{T+3}")
        a(f"v_cvt_pk_bf16_f32 v{T+6}, v{y}, v{y+1}")
        a(f"v_cvt_pk_bf16_f32 v{T+7}, v{y+2}, v{y+3}")
        unpack_lo(a, T, T+4); unpack_hi(a, T+1, T+4); unpack_lo(a, T+2, T+5); unpack_hi(a, T+3, T+5)
        unpack_lo(a, y, T+6); unpack_hi(a, y+1, T+6); unpack_lo(a, y+2, T+7); unpack_hi(a, y+3, T+7)
        for i in range(4):
            a(f"v_add_f32 v{T+i}, v{T+i}, v{y+i}")
        a(f"v_cvt_pk_bf16_f32 v{240+2*ti}, v{T}, v{T+1}")
        a(f"v_cvt_pk_bf16_f32 v{241+2*ti}, v{T+2}, v{T+3}")
        a.vmem(f"buffer_store_dwordx2 v[{240+2*ti}:{241+2*ti}], v224, s[88:91], s{76+ti} offen", "CS")

def gen_gemm1(a):
    a.kernel_begin("gemm1_kernel")
    a("s_cmp_ge_u32 s2, 256")
    a("s_cbranch_scc1 L_g1_end")
    a.stamp(0)
    a("s_load_dwordx4 s[4:7], s[0:1], 56")
    a("s_load_dwordx2 s[8:9], s[0:1], 96")
    a("s_load_dwordx4 s[72:75], s[0:1], 32")
    a("s_load_dwordx2 s[86:87], s[0:1], 72")
    a("v_and_b32 v1, 63, v0")
    a("v_lshrrev_b32 v2, 6, v0")
    a("s_nop 0")
    a("v_readfirstlane_b32 s40, v2")
    a("s_and_b32 s30, s2, 7")
    a("s_lshr_b32 s31, s2, 3")
    a("s_lshl_b32 s30, s30, 2")
    a("s_and_b32 s32, s31, 3")
    a("s_add_u32 s30, s30, s32")
    a("s_lshr_b32 s31, s31, 2")
    a("s_mul_i32 s33, s30, 288")
    vD, vA, vB = 2, 7, 9
    AB, WB, ACC = 20, 84, 108
    NAB = 4
    gemm_setup_dma(a, 9216, vD, 34, 35, True)
    a("s_lshl_b32 s36, s31, 4")
    a("s_lshl_b32 s37, s40, 1")
    a("s_add_u32 s36, s36, s37")
    a("s_mul_i32 s37, s36, 18432")
    a("v_lshlrev_b32 v17, 4, v1")
    a(f"v_add_u32 v{vA}, s37, v17")
    a(f"v_add_u32 v{vA+1}, 18432, v{vA}")
    a("s_waitcnt lgkmcnt(0)")
    a("s_cmp_ge_u32 s40, 4")
    a("s_cselect_b32 s10, s6, s4")
    a("s_cselect_b32 s11, s7, s5")
    a("s_add_u32 s12, s10, s33")
    a("s_addc_u32 s13, s11, 0")
    a(f"s_sub_u32 s14, {SZ_W}, s33")
    a("s_mov_b32 s15, 0x00020000")
    a.srd(16, 8, SZ_SD, WS_XN)
    a.srd(20, 8, SZ_H, WS_H)
    def a_loads(j):
        b = AB + 16 * (j % NAB)
        a(f"s_mov_b32 s47, {2048*j}")
        for t in range(2):
            for kh in range(2):
                r = b + 8*t + 4*kh
                a.vmem(f"buffer_load_dwordx4 v[{r}:{r+3}], v{vA+t}, s[16:19], s47 offen offset:{1024*kh}", f"A{j}")
    KB = 64 * 9216
    dma = lambda j: gemm_dma(a, j, vD, 34, 35, 12, KB)
    if 'cvhead' in FL: conv_head_loads(a)
    dma(0); a_loads(0); dma(1); a_loads(1)
    if 'nopf' not in FL:
        a("s_and_b32 s41, s2, 7")
        a("s_mul_i32 s41, s41, 1152")
        a("s_add_u32 s24, s10, s41")
        a("s_addc_u32 s25, s11, 0")
        a(f"s_sub_u32 s26, {SZ_W}, s41")
        a("s_mov_b32 s27, 0x00020000")
        a("s_lshr_b32 s41, s2, 3")
        a("v_mul_u32_u24 v17, 3641, v1")
        a("v_lshrrev_b32 v17, 16, v17")
        a("v_mul_u32_u24 v18, 18, v17")
        a("v_sub_u32 v18, v1, v18")
        a("v_lshlrev_b32 v17, 5, v17")
        a("v_add_u32 v17, s41, v17")
        a("v_mul_u32_u24 v17, 9216, v17")
        a("v_lshlrev_b32 v18, 6, v18")
        a("v_add_u32 v17, v17, v18")
        a("s_and_b32 s42, s40, 3")
        a(f"s_mul_i32 s43, s42, {3*32*9216}")
        a(f"s_add_u32 s43, s43, {4*32*9216}")
        a.vmem("buffer_load_dword v0, v17, s[24:27], s43 offen", "PF")
        a("s_and_b32 s42, s41, 3")
        a("s_lshl_b32 s42, s42, 2")
        a("s_lshl_b32 s44, s31, 4")
        a("s_add_u32 s42, s42, s44")
        a("s_and_b32 s44, s40, 1")
        a("s_lshl_b32 s44, s44, 1")
        a("s_add_u32 s42, s42, s44")
        a("s_mul_i32 s42, s42, 18432")
        a("s_lshr_b32 s44, s40, 1")
        a("s_lshl_b32 s44, s44, 11")
        a("s_add_u32 s42, s42, s44")
        a("s_add_u32 s42, s42, 4096")
        a("v_lshrrev_b32 v18, 5, v1")
        a("v_mul_u32_u24 v18, 18432, v18")
        a("v_and_b32 v19, 31, v1")
        a("v_lshlrev_b32 v19, 6, v19")
        a("v_add_u32 v18, v18, v19")
        a.vmem("buffer_load_dword v0, v18, s[16:19], s42 offen", "PF")
        a(f"s_add_u32 s43, s43, {12*32*9216}")
        a.vmem("buffer_load_dword v0, v17, s[24:27], s43 offen", "PF")
        a("s_add_u32 s42, s42, 8192")
        a("s_cmp_ge_u32 s40, 6")
        a("s_cselect_b32 s42, 0x7f000000, s42")
        a.vmem("buffer_load_dword v0, v18, s[16:19], s42 offen", "PF")
    if 'cvhead' in FL: conv_head_compute(a)
    a("v_lshrrev_b32 v17, 4, v1")
    a("v_lshrrev_b32 v18, 2, v1")
    a("v_and_b32 v18, 3, v18")
    a("v_and_b32 v19, 1, v17")
    a("v_lshlrev_b32 v17, 4, v17")
    a("v_add_u32 v17, v17, v18")
    a("v_lshlrev_b32 v19, 2, v19")
    a("v_add_u32 v18, v17, v19")
    a("v_xor_b32 v19, 4, v19")
    a("v_add_u32 v19, v17, v19")
    a("v_mul_u32_u24 v18, 288, v18")
    a("v_mul_u32_u24 v19, 288, v19")
    a("v_and_b32 v17, 3, v1")
    a("v_lshlrev_b32 v17, 3, v17")
    a(f"v_add_u32 v{vB}, v18, v17")
    a(f"v_add_u32 v{vB+1}, v19, v17")
    for st in range(1, NST):
        a(f"v_add_u32 v{vB+2*st}, {st*STAGE}, v{vB}")
        a(f"v_add_u32 v{vB+2*st+1}, {st*STAGE}, v{vB+1}")
    for i in range(144):
        a(f"v_mov_b32 v{ACC+i}, 0")
    a.stamp(1)
    NU = 36
    units = [(j, kh, mat, c) for j in range(9) for kh in range(2) for mat in range(2) for c in range(9)]
    def w_reads(U):
        j, kh, mat, c = units[U]
        st = j % NST
        r = WB + 4 * (U % (PD + 1))
        off = mat*18432 + 8*kh*288 + c*32
        a.lds(f"ds_read_b64_tr_b16 v[{r}:{r+1}], v{vB+2*st} offset:{off}", f"W{U}")
        a.lds(f"ds_read_b64_tr_b16 v[{r+2}:{r+3}], v{vB+2*st+1} offset:{off}", f"W{U}")
    def mfmas(U):
        j, kh, mat, c = units[U]
        r = WB + 4 * (U % (PD + 1))
        for t in range(2):
            ac = ACC + 4 * (t*18 + mat*9 + c)
            ar = AB + 16*(j % NAB) + 8*t + 4*kh
            a(f"v_mfma_f32_16x16x32_bf16 v[{ac}:{ac+3}], v[{r}:{r+3}], v[{ar}:{ar+3}], v[{ac}:{ac+3}]")
    def w2_pf():
        a("s_bfe_u32 s41, s2, 0x10002")
        if 'swap' in FL: a("s_xor_b32 s41, s41, 1")
        a("s_cmp_eq_u32 s41, 0")
        a(f"s_cselect_b32 s41, {128*int(os.environ.get('NJP','15'))*1152}, 0")
        a(f"s_mov_b32 s26, {128*int(os.environ.get('NJP','15'))*1152}")
        a(f"s_cselect_b32 s26, {128*(36-int(os.environ.get('NJP','15')))*1152}, s26")
        a("s_add_u32 s24, s86, s41")
        a("s_addc_u32 s25, s87, 0")
        a("s_mov_b32 s27, 0x00020000")
        a("s_and_b32 s41, s2, 0xf8")
        a("s_add_u32 s41, s41, s40")
        a("s_lshl_b32 s41, s41, 13")
        a(f"s_add_u32 s42, s41, {256*8192}")
        a("v_lshlrev_b32 v17, 7, v1")
        a("buffer_load_dword v0, v17, s[24:27], s41 offen")
        a("buffer_load_dword v0, v17, s[24:27], s42 offen")
    gemm_loop(a, units, NU, NAB, w_reads, mfmas, a_loads, dma,
              {2: lambda: dma(2), 12: lambda: a_loads(2), 22: lambda: a_loads(3)}, late=(None if 'nopf2' in FL else w2_pf))
    a.stamp(4)
    a("s_mul_i32 s37, s36, 147456")
    a("s_mul_i32 s38, s30, 9")
    a("s_and_b32 s39, s38, 1")
    a("s_lshr_b32 s38, s38, 1")
    a("s_lshl_b32 s38, s38, 10")
    a("s_add_u32 s37, s37, s38")
    a("v_lshlrev_b32 v17, 4, v1")
    a("v_add_u32 v2, s37, v17")
    a("v_add_u32 v3, 147456, v2")
    a("s_mov_b32 s46, 0xbfb8aa3b")
    a("s_mov_b32 s47, 0xbfb8aa3b")
    a("s_mov_b32 s48, 1.0")
    a("s_mov_b32 s49, 1.0")
    a("s_movk_i32 s45, 4096")
    a("s_cmp_eq_u32 s39, 0")
    a("s_cbranch_scc0 L_g1_epi_odd")
    def group(t, c, T, O):
        g = ACC + 4*(t*18 + c); u_ = ACC + 4*(t*18 + 9 + c)
        a(f"v_cvt_pk_bf16_f32 v{T}, v{g}, v{g+1}")
        a(f"v_cvt_pk_bf16_f32 v{T+1}, v{g+2}, v{g+3}")
        a(f"v_cvt_pk_bf16_f32 v{T+2}, v{u_}, v{u_+1}")
        a(f"v_cvt_pk_bf16_f32 v{T+3}, v{u_+2}, v{u_+3}")
        unpack_lo(a, g, T); unpack_hi(a, g+1, T); unpack_lo(a, g+2, T+1); unpack_hi(a, g+3, T+1)
        a(f"v_pk_mul_f32 v[{T+4}:{T+5}], v[{g}:{g+1}], s[46:47]")
        a(f"v_pk_mul_f32 v[{T+6}:{T+7}], v[{g+2}:{g+3}], s[46:47]")
        unpack_lo(a, u_, T+2); unpack_hi(a, u_+1, T+2)
        for i in range(4):
            a(f"v_exp_f32 v{T+4+i}, v{T+4+i}")
        unpack_lo(a, u_+2, T+3); unpack_hi(a, u_+3, T+3)
        a(f"v_pk_add_f32 v[{T+4}:{T+5}], v[{T+4}:{T+5}], s[48:49]")
        a(f"v_pk_add_f32 v[{T+6}:{T+7}], v[{T+6}:{T+7}], s[48:49]")
        for i in range(4):
            a(f"v_rcp_f32 v{T+4+i}, v{T+4+i}")
        a("s_nop 0")
        a(f"v_pk_mul_f32 v[{T+4}:{T+5}], v[{T+4}:{T+5}], v[{g}:{g+1}]")
        a(f"v_pk_mul_f32 v[{T+6}:{T+7}], v[{T+6}:{T+7}], v[{g+2}:{g+3}]")
        a(f"v_cvt_pk_bf16_f32 v{T}, v{T+4}, v{T+5}")
        a(f"v_cvt_pk_bf16_f32 v{T+1}, v{T+6}, v{T+7}")
        unpack_lo(a, T+4, T); unpack_hi(a, T+5, T); unpack_lo(a, T+6, T+1); unpack_hi(a, T+7, T+1)
        a(f"v_pk_mul_f32 v[{T+4}:{T+5}], v[{T+4}:{T+5}], v[{u_}:{u_+1}]")
        a(f"v_pk_mul_f32 v[{T+6}:{T+7}], v[{T+6}:{T+7}], v[{u_+2}:{u_+3}]")
        a(f"v_cvt_pk_bf16_f32 v{O}, v{T+4}, v{T+5}")
        a(f"v_cvt_pk_bf16_f32 v{O+1}, v{T+6}, v{T+7}")
    HF = ' sc1' if 'hsc1' in FL else (' nt' if 'hnt' in FL else (' sc0 sc1' if 'hsc01' in FL else ''))
    for par in range(2):
        if par == 1: a.label("L_g1_epi_odd")
        n = 0
        for t in range(2):
            for c in range(9):
                T2 = c + par
                m, hi = T2 >> 1, T2 & 1
                O = 52 + 4 * ((t*5 + m) & 3)
                group(t, c, 20 + 8*(n & 3), O + 2*hi); n += 1
                so, imm = ("0", m*1024) if m < 4 else ("s45", 0)
                if hi == 1 and c > 0:
                    a(f"buffer_store_dwordx4 v[{O}:{O+3}], v{2+t}, s[20:23], {so} offen offset:{imm}{HF}")
                elif hi == 1 and c == 0:
                    a(f"buffer_store_dwordx2 v[{O+2}:{O+3}], v{2+t}, s[20:23], {so} offen offset:{imm+8}{HF}")
                elif hi == 0 and c == 8:
                    a(f"buffer_store_dwordx2 v[{O}:{O+1}], v{2+t}, s[20:23], {so} offen offset:{imm}{HF}")
        if par == 0: a("s_branch L_g1_epi_done")
    a.label("L_g1_epi_done")
    a.stamp(5)
    a.stamp_flush(6, 8, 0x8000000)
    a.label("L_g1_end")
    a("s_endpgm")
    return desc("gemm1_kernel", 252, 100)

G2_ST = 24576
G2_NS = 5
G2_NJP = int(os.environ.get('NJP', '15')); G2_NJC = 36 - G2_NJP
G2_HP = int(os.environ.get('HP', '3')); G2_HL = int(os.environ.get('HL', '2'))
G2_Y = G2_NS * G2_ST
G2_LDS = G2_Y + 24576
def gen_gemm2(a):
    a.kernel_begin("gemm2_kernel")
    a("s_cmp_ge_u32 s2, 256")
    a("s_cbranch_scc1 L_g2_end")
    a("s_cmp_lt_u32 s2, 64")
    a("s_cbranch_scc1 L_g2_pf")
    a("s_sub_u32 s2, s2, 64")
    a.stamp(0)
    a("s_load_dwordx2 s[4:5], s[0:1], 72")
    a("s_load_dwordx2 s[6:7], s[0:1], 0")
    a("s_load_dwordx2 s[8:9], s[0:1], 96")
    a("s_load_dwordx2 s[10:11], s[0:1], 80")
    a("v_and_b32 v1, 63, v0")
    a("v_lshrrev_b32 v2, 6, v0")
    a("s_nop 0")
    a("v_readfirstlane_b32 s40, v2")
    a("s_and_b32 s30, s2, 7")
    a("s_lshr_b32 s31, s2, 3")
    a("s_mul_i32 s32, s31, 43")
    a("s_lshr_b32 s32, s32, 8")
    a("s_mul_i32 s33, s32, 6")
    a("s_sub_u32 s31, s31, s33")
    a("s_lshr_b32 s29, s30, 2")
    if 'swap' in FL: a("s_xor_b32 s29, s29, 1")
    a("s_and_b32 s30, s30, 3")
    a("s_lshl_b32 s30, s30, 2")
    a("s_add_u32 s32, s32, s30")
    a("s_and_b32 s41, s40, 3")
    a("s_lshr_b32 s42, s40, 2")
    a("s_cmp_eq_u32 s29, 0")
    a(f"s_cselect_b32 s28, {128*G2_NJP}, 0")
    a("s_mul_i32 s33, s28, 1152")
    a("s_mul_i32 s34, s31, 192")
    a("s_add_u32 s33, s33, s34")
    a("s_mul_i32 s36, s40, 3072")
    vD, vA, vB = 2, 5, 8
    AB, WB, ACC = 20, 100, 124
    NAB, PD2 = 5, 5
    a("s_movk_i32 s45, 5462")
    a("s_mul_i32 s44, s40, 192")
    for i in range(3):
        a(f"s_add_u32 s43, s44, {64*i}")
        a("v_add_u32 v17, s43, v1")
        a("v_mul_lo_u32 v18, v17, s45")
        a("v_lshrrev_b32 v18, 16, v18")
        a("v_mul_u32_u24 v19, 12, v18")
        a("v_sub_u32 v19, v17, v19")
        a("v_lshrrev_b32 v17, 1, v19")
        a("v_bfe_u32 v16, v18, 2, 1")
        a("v_sub_u32 v17, v17, v16")
        a("v_cmp_gt_i32 vcc, 0, v17")
        a("v_and_b32 v19, 1, v19")
        a("v_lshlrev_b32 v19, 4, v19")
        a("v_cndmask_b32 v17, v17, 5, vcc")
        a("v_lshlrev_b32 v17, 5, v17")
        a("v_mul_u32_u24 v18, 1152, v18")
        a(f"v_add3_u32 v{vD+i}, v17, v18, v19")
    a("s_lshl_b32 s38, s32, 3")
    a("s_lshl_b32 s39, s41, 1")
    a("s_add_u32 s38, s38, s39")
    a("s_mul_i32 s34, s38, 147456")
    a("s_lshl_b32 s35, s28, 5")
    a("s_add_u32 s34, s34, s35")
    a("s_lshl_b32 s35, s42, 11")
    a("s_add_u32 s34, s34, s35")
    a("v_lshlrev_b32 v17, 4, v1")
    a(f"v_add_u32 v{vA}, s34, v17")
    a(f"v_add_u32 v{vA+1}, 147456, v{vA}")
    a("s_waitcnt lgkmcnt(0)")
    a("s_add_u32 s12, s4, s33")
    a("s_addc_u32 s13, s5, 0")
    a(f"s_sub_u32 s14, {SZ_W}, s33")
    a("s_mov_b32 s15, 0x00020000")
    a.srd(16, 8, SZ_H, WS_H)
    a.srd(20, 8, SZ_SD, WS_Y2T)
    a.srd(24, 8, 2*SZ_SD, WS_XP)
    a.srd(72, 6, SZ_SD)
    a.srd(76, 10, SZ_SD)
    a.srd(84, 8, 96*49152, WS_P)
    a.srd(80, 8, 128*128, WS_FL)
    def a_loads(j):
        b = AB + 16 * (j % NAB)
        a(f"s_mov_b32 s47, {4096*j}")
        for t in range(2):
            for mm in range(2):
                r = b + 8*t + 4*mm
                a.vmem(f"buffer_load_dwordx4 v[{r}:{r+3}], v{vA+t}, s[16:19], s47 offen offset:{1024*mm}", f"A{j}")
    def dma(j):
        st = j % G2_NS
        a(f"s_mov_b32 s46, {j*128*1152}")
        for i in range(3):
            a(f"s_add_u32 m0, s36, {st*G2_ST + 1024*i}")
            a("s_nop 0")
            a.vmem(f"buffer_load_dwordx4 v{vD+i}, s[12:15], s46 offen lds", f"D{j}")
    dma(0); a_loads(0); dma(1); a_loads(1)
    a("v_lshrrev_b32 v17, 2, v1")
    a("v_mul_u32_u24 v17, 192, v17")
    a("v_and_b32 v18, 3, v1")
    a("v_lshlrev_b32 v18, 3, v18")
    a(f"s_mul_i32 s43, s42, {64*192}")
    a("v_add3_u32 v17, v17, v18, s43")
    a("v_bfe_u32 v18, v1, 4, 1")
    a("v_lshlrev_b32 v19, 5, v18")
    a(f"v_add_u32 v{vB}, v17, v19")
    a("v_xor_b32 v18, 1, v18")
    a("v_mul_u32_u24 v18, 160, v18")
    a(f"v_add_u32 v{vB+1}, v17, v18")
    for grp in range(1, 3):
        a(f"v_add_u32 v{vB+2*grp}, {2*grp*G2_ST}, v{vB}")
        a(f"v_add_u32 v{vB+2*grp+1}, {2*grp*G2_ST}, v{vB+1}")
    for i in range(48):
        a(f"v_mov_b32 v{ACC+i}, 0")
    a.stamp(1)
    NU = 12
    PFD = int(os.environ.get('PFD', '8'))
    a("s_lshr_b32 s43, s2, 3")
    a("s_lshl_b32 s43, s43, 2")
    a("s_add_u32 s43, s43, s41")
    a("s_mul_i32 s43, s43, 12")
    a("v_add_u32 v17, s43, v1")
    a("v_lshlrev_b32 v18, 7, v17")
    a("v_lshrrev_b32 v19, 5, v17")
    a("v_mul_u32_u24 v19, 147456, v19")
    a("v_and_b32 v17, 31, v17")
    a("v_lshlrev_b32 v17, 7, v17")
    a("v_add_u32 v19, v19, v17")
    a("s_cmp_eq_u32 s42, 0")
    a("s_cselect_b64 vcc, -1, 0")
    a("s_mul_i32 s43, s28, 1152")
    a("s_add_u32 s92, s4, s43")
    a("s_addc_u32 s93, s5, 0")
    a(f"s_sub_u32 s94, {SZ_W}, s43")
    a("v_cndmask_b32 v247, v19, v18, vcc")
    a("s_and_b32 s44, s2, 3")
    a(f"s_mul_i32 s44, s44, {32*147456}")
    a("s_lshl_b32 s45, s28, 5")
    a("s_add_u32 s44, s44, s45")
    a(f"s_add_u32 s44, s44, {PFD*4096}")
    a("s_cmp_eq_u32 s42, 0")
    a("s_cselect_b32 s92, s92, s16")
    a("s_cselect_b32 s93, s93, s17")
    a("s_cselect_b32 s94, s94, s18")
    a("s_mov_b32 s95, 0x00020000")
    a(f"s_cselect_b32 s90, {PFD*147456}, s44")
    a("s_mov_b32 s91, 4096")
    a("s_cselect_b32 s91, 147456, s91")
    def touch():
        a("s_mov_b32 exec_lo, 0xfff")
        a("s_mov_b32 exec_hi, 0")
        a.vmem("buffer_load_dword v246, v247, s[92:95], s90 offen", "T")
        a("s_mov_b64 exec, -1")
        a("s_add_u32 s90, s90, s91")
    a("s_mul_i32 s43, s40, 6144")
    a("v_lshlrev_b32 v16, 4, v1")
    a("v_add_u32 v14, s43, v16")
    a("s_xor_b32 s44, s40, 4")
    a("s_mul_i32 s44, s44, 6144")
    a("v_add_u32 v7, s44, v16")
    a("s_mul_i32 s44, s32, 6")
    a("s_add_u32 s44, s44, s31")
    a("s_mul_i32 s45, s44, 49152")
    a("v_add_u32 v15, s45, v14")
    a("s_lshl_b32 s48, s44, 7")
    a("s_mov_b32 s49, 1")
    a("s_movk_i32 s88, 4096")
    XR, NR, PR, YL, OF = 172, 184, 196, 220, 232
    a("v_and_b32 v17, 15, v1")
    a("v_lshrrev_b32 v18, 4, v1")
    a("s_add_u32 s43, s38, s42")
    a("s_mul_i32 s43, s43, 18432")
    a("s_mul_i32 s34, s31, 192")
    a("s_add_u32 s34, s34, s43")
    a("v_mul_u32_u24 v19, 1152, v17")
    a(f"v_lshlrev_b32 v{OF}, 3, v18")
    a(f"v_add3_u32 v{OF}, v19, v{OF}, s34")
    a("s_lshl_b32 s43, s43, 1")
    a("s_mul_i32 s34, s31, 6144")
    a("s_add_u32 s43, s43, s34")
    a(f"v_add_u32 v{OF+1}, s43, v16")
    def run_loop(NJ, hooks):
        units = [(j, mm, ct) for j in range(NJ) for mm in range(2) for ct in range(6)]
        def w_reads(U):
            j, mm, ct = units[U]
            st = j % G2_NS
            r = WB + 4 * (U % (PD2 + 1))
            base = vB + 2*(st >> 1) + (0 if ct < 5 else 1)
            off = (st & 1)*G2_ST + 32*mm*192 + (32*ct if ct < 5 else 0)
            a.lds(f"ds_read_b64_tr_b16 v[{r}:{r+1}], v{base} offset:{off}", f"W{U}")
            a.lds(f"ds_read_b64_tr_b16 v[{r+2}:{r+3}], v{base} offset:{off+3072}", f"W{U}")
        def mfmas(U):
            j, mm, ct = units[U]
            r = WB + 4 * (U % (PD2 + 1))
            for t in range(2):
                ac = ACC + 4 * (t*6 + ct)
                ar = AB + 16*(j % NAB) + 8*t + 4*mm
                a(f"v_mfma_f32_16x16x32_bf16 v[{ac}:{ac+3}], v[{r}:{r+3}], v[{ar}:{ar+3}], v[{ac}:{ac+3}]")
        hk = dict(hooks or {})
        if 'coop' in FL:
            for j in range(NJ - PFD):
                hk[(j, 9)] = touch
        gemm_loop(a, units, NU, NAB, w_reads, mfmas, a_loads, dma,
                  {1: lambda: dma(2), 3: lambda: a_loads(2), 4: lambda: dma(3), 5: lambda: a_loads(3), 6: lambda: a_loads(4)},
                  NJ=NJ, NS=G2_NS, PD=PD2, hooks=hk)
    def pofs(i):
        return ("0", 1024*i) if i < 4 else ("s88", 1024*(i-4))
    def exchange():
        a("s_barrier")
        a("s_cmp_lt_u32 s40, 4")
        a(f"s_cbranch_scc1 L_g2_x{exchange.n}a")
        a("s_nop 4")
        for i in range(6):
            a(f"ds_write_b128 v14, v[{ACC+4*i}:{ACC+4*i+3}] offset:{1024*i}")
        for i in range(24):
            a(f"v_mov_b32 v{20+i}, v{ACC+24+i}")
        a(f"s_branch L_g2_x{exchange.n}b")
        a.label(f"L_g2_x{exchange.n}a")
        a("s_nop 4")
        for i in range(6):
            a(f"ds_write_b128 v14, v[{ACC+24+4*i}:{ACC+24+4*i+3}] offset:{1024*i}")
        for i in range(24):
            a(f"v_mov_b32 v{20+i}, v{ACC+i}")
        a.label(f"L_g2_x{exchange.n}b")
        exchange.n += 1
    exchange.n = 0
    a("s_cmp_eq_u32 s29, 0")
    a("s_cbranch_scc1 L_g2_consumer")
    vm_save = list(a.vm)
    run_loop(G2_NJP, None)
    a.stamp(4)
    a.keepbar = True
    exchange()
    a("s_waitcnt lgkmcnt(0)")
    a("s_barrier")
    for i in range(6):
        a(f"ds_read_b128 v[{44+4*i}:{47+4*i}], v7 offset:{1024*i}")
    for i in range(6):
        a(f"s_waitcnt lgkmcnt({5-i})")
        for e in range(4):
            a(f"v_add_f32 v{20+4*i+e}, v{20+4*i+e}, v{44+4*i+e}")
        so, imm = pofs(i)
        a(f"buffer_store_dwordx4 v[{20+4*i}:{23+4*i}], v15, s[84:87], {so} offen offset:{imm} sc1")
    a("s_waitcnt vmcnt(0)")
    a("s_barrier")
    a("s_cmp_lg_u32 s40, 0")
    a("s_cbranch_scc1 L_g2_fin")
    a("v_mov_b32 v20, s48")
    a("v_mov_b32 v21, s49")
    a("s_mov_b64 exec, 1")
    a("buffer_store_dword v21, v20, s[80:83], 0 offen sc1")
    a("s_mov_b64 exec, -1")
    a("s_branch L_g2_fin")
    a.label("L_g2_consumer")
    a.vm = vm_save; a.lg = []; a.keepbar = False
    def x_loads():
        for ct in range(6):
            so, imm = pofs(ct)
            a.vmem(f"buffer_load_dwordx4 v[{XR+4*ct}:{XR+4*ct+3}], v{OF+1}, s[24:27], {so} offen offset:{imm}", "X")
    def early_polls():
        a("v_mov_b32 v17, s48")
        a.vmem("buffer_load_dword v244, v17, s[80:83], 0 offen sc1", "F")
    def early_loads():
        if 'st2' in FL: a.stamp(1)
        a.wait_vm("F")
        a("v_readfirstlane_b32 s43, v244")
        a("v_mov_b32 v17, s48")
        a("s_nop 2")
        a("s_and_b32 s43, s43, s49")
        a("s_cbranch_scc1 L_g2_go2")
        a.label("L_g2_poll2")
        a("s_sleep 8")
        a("buffer_load_dword v18, v17, s[80:83], 0 offen sc1")
        a("s_waitcnt vmcnt(0)")
        a("v_readfirstlane_b32 s43, v18")
        a("s_nop 3")
        a("s_and_b32 s43, s43, s49")
        a("s_cbranch_scc0 L_g2_poll2")
        a.label("L_g2_go2")
        for i in range(6):
            so, imm = pofs(i)
            a.vmem(f"buffer_load_dwordx4 v[{PR+4*i}:{PR+4*i+3}], v15, s[84:87], {so} offen offset:{imm} sc1", "E")
        if 'st2' in FL: a.stamp(3)
    def y_loads():
        for p in range(3):
            a(f"buffer_load_dwordx4 v[{YL+4*p}:{YL+4*p+3}], v{OF+2}, s[20:23], s{96+p} offen sc1")
    def conv_poll():
        a("s_lshl_b32 s43, s31, 7")
        a(f"s_add_u32 s43, s43, {96*128}")
        a(f"v_mov_b32 v{OF+3}, s43")
        a.vmem(f"buffer_load_dword v245, v{OF+3}, s[80:83], 0 offen sc1", "G")
        a("v_lshrrev_b32 v17, 4, v1")
        a("v_lshlrev_b32 v17, 12, v17")
        a("v_and_b32 v18, 15, v1")
        a("v_lshlrev_b32 v18, 4, v18")
        a(f"v_add_u32 v{OF+2}, v17, v18")
        a("s_mul_i32 s96, s31, 96")
        a("s_mul_i32 s35, s40, 12")
        a("s_add_u32 s96, s96, s35")
        a("s_lshl_b32 s96, s96, 12")
        a("s_lshl_b32 s35, s32, 8")
        a("s_add_u32 s96, s96, s35")
        a("s_add_u32 s97, s96, 16384")
        a("s_add_u32 s98, s96, 32768")
    def conv_check():
        a.wait_vm("G")
        a("v_readfirstlane_b32 s89, v245")
        a("s_nop 3")
        a("s_cmp_lt_u32 s89, 384")
        a("s_cbranch_scc1 L_g2_cc")
        y_loads()
        a.label("L_g2_cc")
    run_loop(G2_NJC, {(6, 1): x_loads, (G2_NJC - G2_HP, 1): early_polls, (G2_NJC - G2_HL, 1): early_loads,
                      (G2_NJC - 3, 2): conv_poll, (G2_NJC - 1, 2): conv_check})
    a.stamp(4)
    a.keepbar = True
    a("s_cmp_ge_u32 s89, 384")
    a("s_cbranch_scc1 L_g2_go")
    a.label("L_g2_poll")
    a("s_sleep 24")
    a(f"buffer_load_dword v18, v{OF+3}, s[80:83], 0 offen sc1")
    a("s_waitcnt vmcnt(0)")
    a("v_readfirstlane_b32 s44, v18")
    a("s_nop 3")
    a("s_cmp_ge_u32 s44, 384")
    a("s_cbranch_scc0 L_g2_poll")
    y_loads()
    a.label("L_g2_go")
    a("s_mul_i32 s35, s40, 3072")
    a(f"s_add_u32 s35, s35, {G2_Y}")
    a("v_add_u32 v19, s35, v16")
    exchange()
    a("v_lshrrev_b32 v16, 2, v1")
    a("v_lshlrev_b32 v16, 8, v16")
    a("v_and_b32 v17, 3, v1")
    a("v_lshlrev_b32 v17, 3, v17")
    a("s_lshl_b32 s43, s41, 6")
    a("s_lshl_b32 s44, s42, 5")
    a("s_add_u32 s43, s43, s44")
    a(f"s_add_u32 s43, s43, {G2_Y}")
    a("v_add3_u32 v16, v16, v17, s43")
    a("s_waitcnt vmcnt(3)")
    for i in range(24):
        a(f"v_add_f32 v{20+i}, v{20+i}, v{PR+i}")
    a("s_waitcnt vmcnt(0)")
    for p in range(3):
        a(f"ds_write_b128 v19, v[{YL+4*p}:{YL+4*p+3}] offset:{1024*p}")
    a("s_waitcnt lgkmcnt(0)")
    a("s_barrier")
    YR = 68
    for i in range(6):
        a(f"ds_read_b128 v[{44+4*i}:{47+4*i}], v7 offset:{1024*i}")
    for ct in range(6):
        a(f"ds_read_b64_tr_b16 v[{YR+2*ct}:{YR+2*ct+1}], v16 offset:{4096*ct}")
    a("s_waitcnt lgkmcnt(0)")
    for z in range(6):
        T = 92 + 6*(z & 1)
        for e in range(4):
            a(f"v_add_f32 v{20+4*z+e}, v{20+4*z+e}, v{44+4*z+e}")
        for w in range(2):
            xr, xnr, yr, br = XR+4*z+w, XR+4*z+2+w, YR+2*z+w, 20+4*z+2*w
            unpack_lo(a, T, xnr); unpack_hi(a, T+1, xnr)
            unpack_lo(a, T+2, yr); unpack_hi(a, T+3, yr)
            a(f"v_mul_f32 v{T}, v{T}, v{T+2}")
            a(f"v_mul_f32 v{T+1}, v{T+1}, v{T+3}")
            a(f"v_cvt_pk_bf16_f32 v{T+2}, v{T}, v{T+1}")
            unpack_lo(a, T, T+2); unpack_hi(a, T+1, T+2)
            unpack_lo(a, T+3, xr); unpack_hi(a, T+4, xr)
            a(f"v_add_f32 v{T}, v{T}, v{T+3}")
            a(f"v_add_f32 v{T+1}, v{T+1}, v{T+4}")
            a(f"v_cvt_pk_bf16_f32 v{T+2}, v{T}, v{T+1}")
            unpack_lo(a, T, T+2); unpack_hi(a, T+1, T+2)
            a(f"v_cvt_pk_bf16_f32 v{T+2}, v{br}, v{br+1}")
            unpack_lo(a, T+3, T+2); unpack_hi(a, T+4, T+2)
            a(f"v_add_f32 v{T}, v{T}, v{T+3}")
            a(f"v_add_f32 v{T+1}, v{T+1}, v{T+4}")
            a(f"v_cvt_pk_bf16_f32 v{xr}, v{T}, v{T+1}")
        a(f"buffer_store_dwordx2 v[{XR+4*z}:{XR+4*z+1}], v{OF}, s[76:79], 0 offen offset:{32*z}")
    a.label("L_g2_fin")
    a.stamp(5)
    a.stamp_flush(6, 8, 0x8100000)
    a("s_endpgm")
    a.label("L_g2_pf")
    if 'stamp' in FL: a("s_memtime s[64:65]")
    a("s_load_dwordx2 s[44:45], s[0:1], 72")
    a("s_load_dwordx2 s[8:9], s[0:1], 96")
    a("s_load_dwordx4 s[4:7], s[0:1], 32")
    a("v_and_b32 v1, 63, v0")
    a("v_lshrrev_b32 v2, 6, v0")
    a("s_nop 0")
    a("v_readfirstlane_b32 s40, v2")
    a("s_lshl_b32 s31, s40, 6")
    a("s_add_u32 s30, s2, s31")
    a(f"s_mul_i32 s31, s40, {CV_SZ}")
    a("s_lshl_b32 s32, s30, 12")
    a("v_lshlrev_b32 v2, 4, v1")
    a("s_waitcnt lgkmcnt(0)")
    a.srd(12, 4, SZ_SD)
    a.srd(16, 6, D*2)
    a.srd(20, 8, SZ_SD, WS_KVT)
    a.srd(24, 8, SZ_SD, WS_Y2T)
    a.srd(36, 8, 128*128, WS_FL)
    def cloads(kb, dreg, sd, sdb, slds):
        for i in range(4):
            a(f"buffer_load_dwordx4 v[{kb+6*i}:{kb+3+6*i}], v2, s[12:15], s{sdb} offen offset:{1024*i}")
            a(f"buffer_load_dword v{kb+4+6*i}, v2, s[12:15], s{sdb} offen offset:{1024*i+16}")
        for i in range(4):
            a(f"s_add_u32 m0, s{slds}, {CV_U + 1024*i}")
            a(f"s_add_u32 s33, s{sdb}, {1024*i}")
            a("buffer_load_dwordx4 v2, s[20:23], s33 offen lds")
        a(f"s_lshl_b32 s33, s{sd}, 1")
        a(f"v_mov_b32 v{dreg}, s33")
        a(f"buffer_load_ushort v{dreg}, v{dreg}, s[16:19], 0 offen")
    cloads(48, 3, 30, 32, 31)
    a("s_add_u32 s46, s2, 512")
    a("s_lshl_b32 s47, s46, 12")
    a(f"s_mov_b32 s48, {8*CV_SZ}")
    a("s_cmp_ge_u32 s40, 4")
    a("s_cbranch_scc1 L_g2_pf2")
    cloads(176, 200, 46, 47, 48)
    a.label("L_g2_pf2")
    a("s_barrier")
    a("s_and_b32 s50, s2, 7")
    a("s_and_b32 s51, s2, 56")
    a("s_add_u32 s51, s51, s40")
    a("s_lshr_b32 s52, s50, 2")
    if 'swap' in FL: a("s_xor_b32 s52, s52, 1")
    a("v_lshlrev_b32 v199, 7, v1")
    a("s_lshl_b32 s53, s51, 13")
    a("v_lshrrev_b32 v5, 4, v1")
    a("v_mul_u32_u24 v5, 147456, v5")
    a("v_and_b32 v6, 15, v1")
    a("v_lshlrev_b32 v6, 7, v6")
    a("v_add_u32 v181, v5, v6")
    a("s_and_b32 s54, s50, 3")
    a("s_lshl_b32 s54, s54, 5")
    a("s_and_b32 s55, s51, 7")
    a("s_lshl_b32 s55, s55, 2")
    a("s_add_u32 s54, s54, s55")
    a("s_mul_i32 s54, s54, 147456")
    a("s_cmp_eq_u32 s52, 0")
    a(f"s_cselect_b32 s55, {128*G2_NJP*32}, 0")
    a(f"s_cselect_b32 s52, {128*G2_NJP*1152}, 0")
    a(f"s_mov_b32 s58, {128*G2_NJP*1152}")
    a(f"s_cselect_b32 s58, {128*G2_NJC*1152}, s58")
    a(f"s_cselect_b32 s43, {2*G2_NJC}, {2*G2_NJP}")
    a("s_add_u32 s54, s54, s55")
    a("s_lshr_b32 s50, s51, 3")
    a("s_lshl_b32 s55, s50, 11")
    a("s_add_u32 s54, s54, s55")
    a("s_add_u32 s56, s44, s52")
    a("s_addc_u32 s57, s45, 0")
    a("s_mov_b32 s59, 0x00020000")
    a.srd(60, 8, SZ_H, WS_H)
    def pf(rs):
        for r in rs:
            a(f"buffer_load_dword v201, v199, s[56:59], s53 offen")
            a(f"s_add_u32 s53, s53, {64*8192}")
            a("s_cmp_ge_u32 s50, s43")
            a("s_cselect_b32 s55, 0x7f000000, s54")
            a(f"buffer_load_dword v201, v181, s[60:63], s55 offen")
            a("s_add_u32 s54, s54, 16384")
            a("s_add_u32 s50, s50, 8")
    NPF = int(os.environ.get('NPF', '3'))
    pf(range(0, NPF))
    a("s_mov_b32 s49, 0")
    a("v_and_b32 v9, 15, v1")
    a("v_lshrrev_b32 v10, 4, v1")
    a("v_lshlrev_b32 v12, 4, v10")
    a(f"s_waitcnt vmcnt({2*NPF})")
    if 'stamp' in FL: a("s_memtime s[66:67]")
    def conv_body(ts):
        a("v_add_u32 v8, s31, v2")
        a("v_lshlrev_b32 v11, 1, v9")
        a("v_add_u32 v11, v11, v12")
        a("v_and_b32 v14, 1, v9")
        a("v_cmp_eq_u32 vcc, 1, v14")
        a(f"v_mov_b32 v14, {CV_O}")
        a("s_nop 1")
        a("v_cndmask_b32 v14, v14, 2, vcc")
        a("v_add_u32 v11, v11, v14")
        a("v_add_u32 v11, s31, v11")
        a("v_lshlrev_b32 v13, 5, v9")
        a("v_sub_u32 v13, v12, v13")
        a(f"v_add_u32 v13, {CV_U+480}, v13")
        a("v_add_u32 v13, s31, v13")
        KA = [11, 14, 15, 202, 203]
        for i in range(1, 5):
            a(f"v_add_u32 v{KA[i]}, {960*i}, v11")
        a("v_mov_b32 v4, 0"); a("v_mov_b32 v5, 0"); a("v_mov_b32 v6, 0"); a("v_mov_b32 v7, 0")
        a("s_mov_b32 exec_hi, 0")
        a(f"ds_write_b128 v8, v[4:7] offset:{CV_U+4096}")
        a("s_mov_b32 exec_lo, 3")
        a("ds_write_b128 v8, v[4:7]")
        a("s_mov_b32 exec_lo, 1")
        a(f"ds_write_b128 v8, v[4:7] offset:{CV_O}")
        a("s_mov_b64 exec, -1")
        CA = 16; FA = 48; FB = 80
        mx = max(ts)
        for t in ts:
            for i in range(4): a(f"v_mov_b32 v{CA+4*t+i}, 0")
        for i in range(4):
            b = 48 + 6*i
            a(f"ds_write_b128 v8, v[{b}:{b+3}] offset:{32+1024*i}")
            for t in range(4):
                a(f"v_alignbit_b32 v{112+4*(i&1)+t}, v{b+t+1}, v{b+t}, 16")
            a(f"ds_write_b128 v8, v[{112+4*(i&1)}:{115+4*(i&1)}] offset:{CV_O+32+1024*i}")
            if i == 0:
                a("v_lshlrev_b32 v7, 16, v48")
                a("s_mov_b64 exec, 1")
                a(f"ds_write_b128 v8, v[4:7] offset:{CV_O+16}")
                a("s_mov_b64 exec, -1")
        a("s_waitcnt lgkmcnt(0)")
        def creads(rho):
            o = 64 * (rho & 1)
            for pi in range(mx + 1):
                p = 8*pi + rho
                r = FA+o+4*pi
                a(f"ds_read2_b32 v[{r}:{r+1}], v{KA[p//15]} offset0:{16*(p%15)} offset1:{16*(p%15)+1}")
                a(f"ds_read2_b32 v[{r+2}:{r+3}], v{KA[p//15]} offset0:{16*(p%15)+2} offset1:{16*(p%15)+3}")
                w = 8*pi - rho
                a(f"ds_read_b128 v[{FB+o+4*pi}:{FB+o+4*pi+3}], v13 offset:{64*(56-w)}")
        creads(0)
        for rho in range(8):
            a("s_waitcnt lgkmcnt(0)")
            if rho < 7:
                creads(rho + 1)
            o = 64 * (rho & 1)
            for t in ts:
                for pi in range(t + 1):
                    tau = t - pi
                    a(f"v_mfma_f32_16x16x32_bf16 v[{CA+4*t}:{CA+4*t+3}], v[{FA+o+4*pi}:{FA+o+4*pi+3}], v[{FB+o+4*tau}:{FB+o+4*tau+3}], v[{CA+4*t}:{CA+4*t+3}]")
        a("v_lshlrev_b32 v3, 16, v3")
        a("v_lshlrev_b32 v14, 5, v9")
        a("v_lshlrev_b32 v15, 3, v10")
        a("v_add_u32 v14, v14, v15")
        a(f"v_sub_u32 v15, {CV_U+504}, v14")
        a("v_add_u32 v15, s31, v15")
        a("v_add_u32 v14, s32, v14")
        for t in ts:
            a(f"ds_read_b64 v[{48+2*t}:{49+2*t}], v15 offset:{512*(7-t)}")
        a("s_waitcnt lgkmcnt(0)")
        for n_, t in enumerate(ts):
            y = CA + 4*t; kq = 48 + 2*t; T = 64 + 8*(n_ & 1)
            unpack_hi(a, T, kq+1); unpack_lo(a, T+1, kq+1); unpack_hi(a, T+2, kq); unpack_lo(a, T+3, kq)
            for i in range(4):
                a(f"v_mul_f32 v{T+i}, v{T+i}, v3")
            a(f"v_cvt_pk_bf16_f32 v{T+4}, v{T}, v{T+1}")
            a(f"v_cvt_pk_bf16_f32 v{T+5}, v{T+2}, v{T+3}")
            a(f"v_cvt_pk_bf16_f32 v{T+6}, v{y}, v{y+1}")
            a(f"v_cvt_pk_bf16_f32 v{T+7}, v{y+2}, v{y+3}")
            unpack_lo(a, T, T+4); unpack_hi(a, T+1, T+4); unpack_lo(a, T+2, T+5); unpack_hi(a, T+3, T+5)
            unpack_lo(a, y, T+6); unpack_hi(a, y+1, T+6); unpack_lo(a, y+2, T+7); unpack_hi(a, y+3, T+7)
            for i in range(4):
                a(f"v_add_f32 v{T+i}, v{T+i}, v{y+i}")
            a(f"v_cvt_pk_bf16_f32 v{y}, v{T}, v{T+1}")
            a(f"v_cvt_pk_bf16_f32 v{y+1}, v{T+2}, v{T+3}")
            a(f"buffer_store_dwordx2 v[{y}:{y+1}], v14, s[24:27], 0 offen offset:{512*t} sc1")
    conv_body(list(range(8)))
    a("s_mul_i32 s33, s30, 683")
    a("s_lshr_b32 s33, s33, 16")
    a("s_lshl_b32 s33, s33, 7")
    a(f"s_add_u32 s33, s33, {96*128}")
    a("s_cmp_ge_u32 s40, 4")
    a("s_cbranch_scc1 L_g2_pub")
    a("s_mov_b32 s32, s47")
    a("s_mov_b32 s31, s48")
    for i in range(24):
        a(f"v_mov_b32 v{48+i}, v{176+i}")
    a("v_mov_b32 v3, v200")
    for q in range(4):
        if q < 3:
            a(f"s_cmp_lg_u32 s40, {q}")
            a(f"s_cbranch_scc1 L_g2_q{q+1}")
        conv_body([7 - q, q])
        if q < 3:
            a("s_branch L_g2_pub2")
            a.label(f"L_g2_q{q+1}")
    a.label("L_g2_pub2")
    a(f"v_mov_b32 v14, {101*128}")
    a("v_mov_b32 v15, 1")
    a("s_waitcnt vmcnt(0)")
    a("s_mov_b64 exec, 1")
    a("buffer_atomic_add v15, v14, s[36:39], 0 offen")
    a("s_mov_b64 exec, -1")
    a.label("L_g2_pub")
    if 'stamp' in FL: a("s_memtime s[68:69]")
    a("v_mov_b32 v14, s33")
    a("v_mov_b32 v15, 4")
    a("s_waitcnt vmcnt(0)")
    if 'stamp' in FL: a("s_memtime s[70:71]")
    a("s_mov_b64 exec, 1")
    a("buffer_atomic_add v15, v14, s[36:39], 0 offen")
    a("s_mov_b64 exec, -1")
    if 'hpf2' in FL: pf(range(NPF, 6))
    if 'stamp' in FL:
        a("s_waitcnt vmcnt(0)")
        a("s_memtime s[72:73]")
        a("s_waitcnt lgkmcnt(0)")
        a("s_add_u32 s76, s8, 0x8200000")
        a("s_addc_u32 s77, s9, 0")
        a("s_mov_b32 s78, 0x100000")
        a("s_mov_b32 s79, 0x00020000")
        a("s_lshl_b32 s74, s2, 9")
        a("s_lshl_b32 s75, s40, 6")
        a("s_add_u32 s74, s74, s75")
        a("v_mov_b32 v5, s74")
        for i in range(8):
            ii = min(i, 4)
            a(f"v_mov_b32 v6, s{64+2*ii}")
            a(f"v_mov_b32 v7, s{65+2*ii}")
            a(f"buffer_store_dwordx2 v[6:7], v5, s[76:79], 0 offen offset:{8*i}")
            a("s_nop 1")
    a.label("L_g2_end")
    a("s_endpgm")
    return desc("gemm2_kernel", 248, 100)

def gen_final(a):
    a.kernel_begin("final_kernel")
    a("s_cmp_ge_u32 s2, 288")
    a("s_cbranch_scc1 L_fin_end")
    a("s_load_dwordx2 s[4:5], s[0:1], 0")
    a("s_load_dwordx2 s[6:7], s[0:1], 80")
    a("s_load_dwordx2 s[8:9], s[0:1], 96")
    a("s_and_b32 s32, s2, 31")
    a("s_lshr_b32 s33, s2, 5")
    a("s_waitcnt lgkmcnt(0)")
    a.srd(12, 4, SZ_SD)
    a.srd(16, 6, SZ_SD)
    a.srd(20, 8, SZ_SD, WS_XN)
    a.srd(24, 8, SZ_SD, WS_Y2T)
    a.srd(28, 8, SZ_P, WS_P)
    a("v_lshrrev_b32 v1, 2, v0")
    a("v_and_b32 v2, 3, v0")
    a("v_lshlrev_b32 v3, 12, v1")
    a("v_lshlrev_b32 v4, 5, v2")
    a("v_add_u32 v3, v3, v4")
    a("s_lshl_b32 s34, s33, 18")
    a("s_lshl_b32 s35, s32, 7")
    a("s_add_u32 s34, s34, s35")
    a("v_add_u32 v3, s34, v3")
    a("buffer_load_dwordx4 v[8:11], v3, s[24:27], 0 offen")
    a("buffer_load_dwordx4 v[12:15], v3, s[24:27], 0 offen offset:16")
    a("v_mul_u32_u24 v5, 136, v1")
    a("v_add_u32 v5, v5, v4")
    a("v_lshrrev_b32 v6, 3, v0")
    a("v_and_b32 v7, 7, v0")
    a("s_lshl_b32 s34, s32, 6")
    a("v_add_u32 v16, s34, v6")
    a("v_lshrrev_b32 v20, 4, v16")
    a("v_mul_u32_u24 v20, 18432, v20")
    a("v_and_b32 v21, 15, v16")
    a("v_lshlrev_b32 v21, 4, v21")
    a("v_add_u32 v20, v20, v21")
    a("v_and_b32 v21, 1, v7")
    a("v_lshlrev_b32 v21, 10, v21")
    a("v_add_u32 v20, v20, v21")
    a("v_lshrrev_b32 v21, 1, v7")
    a("v_lshlrev_b32 v21, 8, v21")
    a("v_add_u32 v20, v20, v21")
    a("s_lshl_b32 s35, s33, 11")
    a("v_add_u32 v22, s35, v20")
    a(f"v_add_u32 v23, {2*18432}, v22")
    a("v_mul_u32_u24 v16, 1152, v16")
    a("v_lshlrev_b32 v17, 4, v7")
    a("s_lshl_b32 s35, s33, 7")
    a("v_add_u32 v17, s35, v17")
    a("v_add_u32 v16, v16, v17")
    a(f"v_add_u32 v17, {32*1152}, v16")
    a("v_lshlrev_b32 v18, 1, v16")
    a("v_lshlrev_b32 v19, 1, v17")
    for it in range(2):
        b = 24 + 40*it
        a(f"buffer_load_dwordx4 v[{b}:{b+3}], v{16+it}, s[12:15], 0 offen")
        a(f"buffer_load_dwordx4 v[{b+4}:{b+7}], v{22+it}, s[20:23], 0 offen")
        for ks in range(4):
            a(f"s_mov_b32 s36, {ks*S*D*4}")
            a(f"buffer_load_dwordx4 v[{b+8+8*ks}:{b+11+8*ks}], v{18+it}, s[28:31], s36 offen")
            a(f"buffer_load_dwordx4 v[{b+12+8*ks}:{b+15+8*ks}], v{18+it}, s[28:31], s36 offen offset:16")
    a("s_waitcnt vmcnt(20)")
    for m in range(4):
        a(f"ds_write_b64 v5, v[{8+2*m}:{9+2*m}] offset:{8*m}")
    a("s_waitcnt lgkmcnt(0)")
    a("s_barrier")
    a("v_mul_u32_u24 v20, 1088, v7")
    a("v_lshlrev_b32 v21, 1, v6")
    a("v_add_u32 v20, v20, v21")
    for it in range(2):
        for c in range(8):
            a(f"ds_read_u16 v{104+8*it+c}, v20 offset:{136*c + 64*it}")
    a("s_waitcnt vmcnt(0) lgkmcnt(0)")
    for it in range(2):
        b = 24 + 40*it
        for w in range(4):
            T = 120
            y0, y1 = 104 + 8*it + 2*w, 104 + 8*it + 2*w + 1
            unpack_lo(a, y0, y0); unpack_lo(a, y1, y1)
            unpack_lo(a, T, b+4+w); unpack_hi(a, T+1, b+4+w)
            a(f"v_mul_f32 v{T}, v{T}, v{y0}")
            a(f"v_mul_f32 v{T+1}, v{T+1}, v{y1}")
            a(f"v_cvt_pk_bf16_f32 v{T+2}, v{T}, v{T+1}")
            unpack_lo(a, T, T+2); unpack_hi(a, T+1, T+2)
            unpack_lo(a, T+3, b+w); unpack_hi(a, T+4, b+w)
            a(f"v_add_f32 v{T}, v{T}, v{T+3}")
            a(f"v_add_f32 v{T+1}, v{T+1}, v{T+4}")
            a(f"v_cvt_pk_bf16_f32 v{T+2}, v{T}, v{T+1}")
            unpack_lo(a, T, T+2); unpack_hi(a, T+1, T+2)
            p = b + 8 + 2*w
            a(f"v_add_f32 v{T+3}, v{p}, v{p+8}")
            a(f"v_add_f32 v{T+4}, v{p+1}, v{p+9}")
            a(f"v_add_f32 v{T+5}, v{p+16}, v{p+24}")
            a(f"v_add_f32 v{T+6}, v{p+17}, v{p+25}")
            a(f"v_add_f32 v{T+3}, v{T+3}, v{T+5}")
            a(f"v_add_f32 v{T+4}, v{T+4}, v{T+6}")
            a(f"v_cvt_pk_bf16_f32 v{T+2}, v{T+3}, v{T+4}")
            unpack_lo(a, T+3, T+2); unpack_hi(a, T+4, T+2)
            a(f"v_add_f32 v{T}, v{T}, v{T+3}")
            a(f"v_add_f32 v{T+1}, v{T+1}, v{T+4}")
            a(f"v_cvt_pk_bf16_f32 v{b+w}, v{T}, v{T+1}")
        a(f"buffer_store_dwordx4 v[{b}:{b+3}], v{16+it}, s[16:19], 0 offen")
    a.label("L_fin_end")
    a("s_endpgm")
    return desc("final_kernel", 128)

def main(path):
    hdr = open("parallel_sum__ssm_conv_h3__glu_gated_swiglu__prompt.s.ref").read().split("\n")
    head = [l for l in hdr if l.startswith(";") and "@launch" not in l and "Override launch" not in l and "grid=ceil" not in l]
    launches = [
        "; @launch kernel=front_kernel grid=(480,1,1) block=(256,1,1) lds=8704",
        f"; @launch kernel=gemm1_kernel grid=(256,1,1) block=(512,1,1) lds={NST*STAGE}",
        f"; @launch kernel=gemm2_kernel grid=(256,1,1) block=(512,1,1) lds={G2_LDS}",
    ]
    a = Asm()
    descs = [gen_front(a), gen_gemm1(a), gen_gemm2(a)]
    out = "\n".join(head + launches) + "\n"
    out += '.amdgcn_target "amdgcn-amd-amdhsa--gfx950"\n.text\n'
    out += "\n".join(a.l) + "\n"
    out += '.section .rodata,"a"\n'
    for d in descs:
        out += ".p2align 6\n" + d
    open(path, "w").write(out)

if __name__ == "__main__":
    main(sys.argv[1] if len(sys.argv) > 1 else "parallel_sum__ssm_conv_h3__glu_gated_swiglu__prompt.s")
```

```python
import sys, os
FL = set(os.environ.get('FL','').split(','))

S, D, F = 2048, 576, 4608
WS_XN, WS_KVT, WS_Y2T, WS_H, WS_P = 0x0, 0x400000, 0x800000, 0x1000000, 0x3000000
WS_XP = 0x2400000
WS_FL = 0x3800000
SZ_SD = S * D * 2
SZ_W = D * F * 2
SZ_H = S * F * 2
SZ_P = 4 * S * D * 4

class Asm:
    def __init__(self):
        self.l = []
        self.gemm = False
        self.keepbar = False
        self.vm = []
        self.lg = []
    def __call__(self, s):
        if self.gemm:
            if 'nomfma' in FL and s.startswith('v_mfma'): return
            if 'nolds' in FL and s.startswith('ds_read_b64_tr'): return
            if 'nodma' in FL and s.endswith('offen lds'): return
            if 'noa' in FL and s.startswith('buffer_load_dwordx4 v['): return
            if 'nobar' in FL and s.startswith('s_barrier') and not self.keepbar: return
            if 'nostore' in FL and s.startswith('buffer_store'): return
        self.l.append("    " + s)
    def label(self, s):
        self.l.append(s + ":")
    def c(self, s):
        self.l.append("    ; " + s)
    def vmem(self, s, tag):
        self(s); self.vm.append(tag)
    def lds(self, s, tag):
        self(s); self.lg.append(tag)
    def wait_vm(self, tag):
        if tag not in self.vm: return
        idx = max(i for i, t in enumerate(self.vm) if t == tag)
        n = len(self.vm) - 1 - idx
        assert n <= 63
        self(f"s_waitcnt vmcnt({n})")
        self.vm = self.vm[idx + 1:]
    def wait_lg(self, tag):
        if tag not in self.lg: return
        idx = max(i for i, t in enumerate(self.lg) if t == tag)
        n = len(self.lg) - 1 - idx
        assert n <= 15, n
        self(f"s_waitcnt lgkmcnt({n})")
        self.lg = self.lg[idx + 1:]
    def capture(self, fn):
        l0, vm0 = self.l, self.vm
        self.l, self.vm = [], []
        marks = []
        ov = self.vmem
        def vm2(s_, tag):
            self(s_); marks.append((len(self.l), tag))
        self.vmem = vm2
        fn()
        del self.vmem
        lines = self.l
        self.l, self.vm = l0, vm0
        chunks = []; p = 0
        for k, (e, tag) in enumerate(marks):
            end = e
            if end < len(lines) and 'exec' in lines[end] and '-1' in lines[end]: end += 1
            chunks.append((lines[p:end], tag)); p = end
        if p < len(lines): chunks[-1] = (chunks[-1][0] + lines[p:], chunks[-1][1])
        return chunks
    def emit_chunk(self, ch):
        self.l += ch[0]; self.vm.append(ch[1])
    def wait_all(self):
        self("s_waitcnt vmcnt(0) lgkmcnt(0)")
        self.vm = []; self.lg = []
    def srd(self, d, base, size, off=0):
        if off:
            self(f"s_add_u32 s{d}, s{base}, {off}")
            self(f"s_addc_u32 s{d+1}, s{base+1}, 0")
        else:
            self(f"s_mov_b32 s{d}, s{base}")
            self(f"s_mov_b32 s{d+1}, s{base+1}")
        self(f"s_mov_b32 s{d+2}, {size}")
        self(f"s_mov_b32 s{d+3}, 0x00020000")
    def stamp(self, i):
        if 'stamp' not in FL: return
        self(f"s_memtime s[{50+2*i}:{51+2*i}]")
        if i == 0: self("s_memrealtime s[62:63]")
    def stamp_flush(self, n, wsb, base):
        if 'stamp' not in FL: return
        self("s_memrealtime s[64:65]")
        self("s_waitcnt lgkmcnt(0)")
        self(f"s_add_u32 s68, s{wsb}, {base}")
        self(f"s_addc_u32 s69, s{wsb+1}, 0")
        self("s_mov_b32 s70, 0x100000")
        self("s_mov_b32 s71, 0x00020000")
        self("s_lshl_b32 s66, s2, 9")
        self("s_lshl_b32 s67, s40, 6")
        self("s_add_u32 s66, s66, s67")
        self("v_mov_b32 v5, s66")
        for i in range(8):
            self(f"v_mov_b32 v6, s{50+2*i}")
            self(f"v_mov_b32 v7, s{51+2*i}")
            self(f"buffer_store_dwordx2 v[6:7], v5, s[68:71], 0 offen offset:{8*i}")
            self("s_nop 1")
    def kernel_begin(self, name):
        self.l.append(f".globl {name}")
        self.l.append(".p2align 8")
        self.l.append(f".type {name},@function")
        self.label(name)
        self.gemm = name.startswith('gemm'); self.keepbar = False
        self.vm = []; self.lg = []

def vr(b, n=1):
    return f"v{b}" if n == 1 else f"v[{b}:{b+n-1}]"

def desc(name, vgpr, sgpr=80):
    acc = (vgpr + 3) // 4 * 4
    return f""".amdhsa_kernel {name}
  .amdhsa_next_free_vgpr {vgpr}
  .amdhsa_next_free_sgpr {sgpr}
  .amdhsa_accum_offset {acc}
  .amdhsa_group_segment_fixed_size 0
  .amdhsa_kernarg_size 104
  .amdhsa_user_sgpr_count 2
  .amdhsa_user_sgpr_kernarg_segment_ptr 1
  .amdhsa_system_sgpr_workgroup_id_x 1
  .amdhsa_float_denorm_mode_32 3
.end_amdhsa_kernel
"""

def unpack_lo(a, d, s): a(f"v_lshlrev_b32 v{d}, 16, v{s}")
def unpack_hi(a, d, s): a(f"v_and_b32 v{d}, 0xffff0000, v{s}")

CV_O, CV_U, CV_SZ = 4224, 8448, 13056
def gen_front(a):
    a.kernel_begin("front_kernel")
    a("s_cmp_ge_u32 s2, 480")
    a("s_cbranch_scc1 L_fr_end")
    a("s_cmp_lt_u32 s2, 64")
    a("s_cbranch_scc1 L_fr_pf")
    a("s_cmp_ge_u32 s2, 192")
    a("s_cbranch_scc1 L_fr_kv")
    a("s_load_dwordx2 s[4:5], s[0:1], 0")
    a("s_load_dwordx2 s[14:15], s[0:1], 96")
    a("s_waitcnt lgkmcnt(0)")
    a.srd(16, 4, SZ_SD)
    a.srd(20, 14, SZ_SD, WS_XN)
    a("s_sub_u32 s3, s2, 64")
    a("s_lshl_b32 s3, s3, 4")
    a("v_lshrrev_b32 v1, 4, v0")
    a("v_add_u32 v1, s3, v1")
    a("v_and_b32 v2, 15, v0")
    a("v_mul_u32_u24 v3, 1152, v1")
    a("v_lshlrev_b32 v4, 3, v2")
    a("v_add_u32 v3, v3, v4")
    for i in range(9):
        a(f"buffer_load_dwordx2 v[{8+2*i}:{9+2*i}], v3, s[16:19], 0 offen offset:{128*i}")
    a("v_lshrrev_b32 v4, 4, v1")
    a("v_mul_u32_u24 v4, 18432, v4")
    a("v_and_b32 v5, 15, v1")
    a("v_lshlrev_b32 v5, 4, v5")
    a("v_add_u32 v4, v4, v5")
    a("v_lshrrev_b32 v5, 2, v2")
    a("v_lshlrev_b32 v5, 8, v5")
    a("v_add_u32 v4, v4, v5")
    a("v_lshrrev_b32 v5, 1, v2")
    a("v_and_b32 v5, 1, v5")
    a("v_lshlrev_b32 v5, 10, v5")
    a("v_add_u32 v4, v4, v5")
    a("v_and_b32 v5, 1, v2")
    a("v_lshlrev_b32 v5, 3, v5")
    a("v_add_u32 v1, v4, v5")
    a("s_waitcnt vmcnt(0)")
    X = 32
    for i in range(18):
        unpack_lo(a, X + 2*i, 8 + i)
        unpack_hi(a, X + 2*i + 1, 8 + i)
    for i in range(9):
        a(f"v_mov_b32 v{72+4*i}, v{8+2*i}")
        a(f"v_mov_b32 v{73+4*i}, v{9+2*i}")
    a(f"v_add_f32 v2, v{X}, v{X+1}")
    a(f"v_add_f32 v3, v{X+2}, v{X+3}")
    for i in range(4, 36, 2):
        a(f"v_add_f32 v2, v2, v{X+i}")
        a(f"v_add_f32 v3, v3, v{X+i+1}")
    a("v_add_f32 v2, v2, v3")
    def red16(r, t):
        a("s_nop 1")
        a(f"v_add_f32_dpp v{t}, v{r}, v{r} quad_perm:[1,0,3,2] row_mask:0xf bank_mask:0xf")
        a("s_nop 1")
        a(f"v_add_f32_dpp v{r}, v{t}, v{t} quad_perm:[2,3,0,1] row_mask:0xf bank_mask:0xf")
        a("s_nop 1")
        a(f"v_add_f32_dpp v{t}, v{r}, v{r} row_half_mirror row_mask:0xf bank_mask:0xf")
        a("s_nop 1")
        a(f"v_add_f32_dpp v{r}, v{t}, v{t} row_mirror row_mask:0xf bank_mask:0xf")
    red16(2, 3)
    a("s_mov_b32 s24, 0x3ae38e39")
    a("v_mul_f32 v2, s24, v2")
    a("v_mov_b32 v4, 0")
    a("v_mov_b32 v5, 0")
    for i in range(0, 36, 2):
        a(f"v_sub_f32 v6, v{X+i}, v2")
        a(f"v_sub_f32 v7, v{X+i+1}, v2")
        a("v_fmac_f32 v4, v6, v6")
        a("v_fmac_f32 v5, v7, v7")
    a("v_add_f32 v4, v4, v5")
    red16(4, 5)
    a("v_mul_f32 v4, s24, v4")
    a("v_cvt_pk_bf16_f32 v5, v2, v4")
    unpack_lo(a, 2, 5)
    unpack_hi(a, 4, 5)
    a("v_add_f32 v4, 0x3727c5ac, v4")
    a("v_cvt_pk_bf16_f32 v4, v4, v4")
    unpack_hi(a, 4, 4)
    a("v_sqrt_f32 v4, v4")
    a("s_nop 0")
    a("v_cvt_pk_bf16_f32 v4, v4, v4")
    unpack_hi(a, 4, 4)
    a("v_rcp_f32 v5, v4")
    a("s_nop 0")
    for i in range(18):
        x0, x1 = X + 2*i, X + 2*i + 1
        a(f"v_sub_f32 v{x0}, v{x0}, v2")
        a(f"v_sub_f32 v{x1}, v{x1}, v2")
        a(f"v_cvt_pk_bf16_f32 v6, v{x0}, v{x1}")
        unpack_lo(a, x0, 6)
        unpack_hi(a, x1, 6)
        a(f"v_mul_f32 v6, v{x0}, v5")
        a(f"v_mul_f32 v7, v{x1}, v5")
        a(f"v_fma_f32 v{x0}, -v6, v4, v{x0}")
        a(f"v_fma_f32 v{x1}, -v7, v4, v{x1}")
        a(f"v_fma_f32 v6, v{x0}, v5, v6")
        a(f"v_fma_f32 v7, v{x1}, v5, v7")
        a(f"v_cvt_pk_bf16_f32 v{8+i}, v6, v7")
    for i in range(9):
        a(f"s_mov_b32 s25, {2048*i}")
        a(f"buffer_store_dwordx2 v[{8+2*i}:{9+2*i}], v1, s[20:23], s25 offen")
    a.srd(28, 14, 2*SZ_SD, WS_XP)
    a("v_lshrrev_b32 v2, 4, v0")
    a("v_add_u32 v2, s3, v2")
    a("v_lshrrev_b32 v3, 4, v2")
    a("v_mul_u32_u24 v3, 36864, v3")
    a("v_and_b32 v2, 15, v2")
    a("v_lshlrev_b32 v2, 4, v2")
    a("v_add_u32 v3, v3, v2")
    a("v_bfe_u32 v2, v0, 2, 2")
    a("v_lshlrev_b32 v2, 10, v2")
    a("v_add_u32 v3, v3, v2")
    a("v_and_b32 v2, 3, v0")
    a("v_lshlrev_b32 v2, 8, v2")
    a("v_add_u32 v3, v3, v2")
    for i in range(9):
        a(f"v_mov_b32 v{74+4*i}, v{8+2*i}")
        a(f"v_mov_b32 v{75+4*i}, v{9+2*i}")
        a(f"s_mov_b32 s25, {4096*i}")
        a(f"buffer_store_dwordx4 v[{72+4*i}:{75+4*i}], v3, s[28:31], s25 offen")
    a("s_endpgm")
    a.label("L_fr_pf")
    a("s_load_dwordx4 s[4:7], s[0:1], 56")
    a("s_load_dwordx2 s[8:9], s[0:1], 32")
    a("s_load_dwordx2 s[10:11], s[0:1], 96")
    a("v_and_b32 v1, 63, v0")
    a("v_lshrrev_b32 v2, 6, v0")
    a("s_nop 0")
    a("v_readfirstlane_b32 s40, v2")
    a("s_and_b32 s30, s2, 7")
    a("s_mul_i32 s30, s30, 1152")
    a("s_mov_b32 s31, s2")
    a("s_lshr_b32 s31, s31, 3")
    a("s_lshl_b32 s31, s31, 2")
    a("s_add_u32 s31, s31, s40")
    a(f"s_mul_i32 s31, s31, {7*9216}")
    a("v_mul_u32_u24 v2, 57, v1")
    a("v_lshrrev_b32 v2, 9, v2")
    a("v_mul_u32_u24 v3, 9, v2")
    a("v_sub_u32 v3, v1, v3")
    a("v_mul_u32_u24 v2, 9216, v2")
    a("v_lshlrev_b32 v3, 7, v3")
    a("v_add_u32 v2, v2, v3")
    a("s_waitcnt lgkmcnt(0)")
    a.srd(24, 10, 128*128, WS_FL)
    a("s_cmp_lg_u32 s2, 0")
    a("s_cbranch_scc1 L_fr_pf1")
    a("v_lshlrev_b32 v4, 7, v0")
    a("v_mov_b32 v5, 0")
    a("buffer_store_dword v5, v4, s[24:27], 0 offen")
    a.label("L_fr_pf1")
    for m in range(2):
        a(f"s_add_u32 s{12+4*m}, s{4+2*m}, s30")
        a(f"s_addc_u32 s{13+4*m}, s{5+2*m}, 0")
        a(f"s_sub_u32 s{14+4*m}, {SZ_W}, s30")
        a(f"s_mov_b32 s{15+4*m}, 0x00020000")
    for r in range(0 if 'nofpf' in FL else (3 if 'fpf3' in FL else (2 if 'fpf2' in FL else 1))):
        a(f"buffer_load_dword v{8+2*r}, v2, s[12:15], s31 offen")
        a(f"buffer_load_dword v{9+2*r}, v2, s[16:19], s31 offen")
        a(f"s_add_u32 s31, s31, {32*7*9216}")
    a.srd(20, 8, SZ_SD)
    a("s_mov_b32 s31, s2")
    a("s_lshl_b32 s31, s31, 2")
    a("s_add_u32 s31, s31, s40")
    a("s_lshl_b32 s31, s31, 13")
    a("v_lshlrev_b32 v3, 7, v1")
    a("buffer_load_dword v16, v3, s[20:23], s31 offen")
    a(f"s_add_u32 s31, s31, {256*8192}")
    a("buffer_load_dword v17, v3, s[20:23], s31 offen")
    a("s_endpgm")
    a.label("L_fr_kv")
    a("s_load_dwordx4 s[8:11], s[0:1], 8")
    a("s_load_dwordx2 s[12:13], s[0:1], 24")
    a("s_load_dwordx2 s[14:15], s[0:1], 96")
    a("s_waitcnt lgkmcnt(0)")
    a.srd(16, 8, SZ_SD)
    a.srd(20, 10, SZ_SD)
    a.srd(24, 12, D * 8)
    a.srd(28, 14, SZ_SD, WS_KVT)
    a("s_sub_u32 s3, s2, 192")
    a("s_and_b32 s32, s3, 31")
    a("s_lshr_b32 s33, s3, 5")
    a("v_lshrrev_b32 v1, 3, v0")
    a("v_and_b32 v2, 7, v0")
    a("s_lshl_b32 s34, s32, 6")
    a("v_lshlrev_b32 v3, 1, v1")
    a("v_add_u32 v3, s34, v3")
    a("s_lshl_b32 s35, s33, 7")
    a("v_lshlrev_b32 v4, 4, v2")
    a("v_add_u32 v4, s35, v4")
    a("v_mul_u32_u24 v5, 1152, v3")
    a("v_add_u32 v5, v5, v4")
    for r in range(5):
        a(f"v_add_u32 v{6+r}, {(r-3)*1152 & 0xffffffff}, v5")
    for r in range(5):
        a(f"buffer_load_dwordx4 v[{12+4*r}:{15+4*r}], v{6+r}, s[16:19], 0 offen")
    a("buffer_load_dwordx4 v[32:35], v5, s[20:23], 0 offen")
    a("buffer_load_dwordx4 v[36:39], v5, s[20:23], 0 offen offset:1152")
    a("v_lshlrev_b32 v11, 2, v4")
    for i in range(4):
        a(f"buffer_load_dwordx4 v[{40+4*i}:{43+4*i}], v11, s[24:27], 0 offen offset:{16*i}")
    a("v_mul_u32_u24 v56, 1088, v2")
    a("v_sub_u32 v57, 31, v1")
    a("v_lshlrev_b32 v57, 2, v57")
    a("v_add_u32 v56, v56, v57")
    a("s_waitcnt vmcnt(0)")
    for c in range(8):
        w, hi = c >> 1, c & 1
        up = unpack_hi if hi else unpack_lo
        for r in range(5):
            up(a, 60 + r, 12 + 4*r + w)
        up(a, 65, 32 + w); up(a, 66, 36 + w)
        unpack_lo(a, 67, 40 + 2*c); unpack_hi(a, 68, 40 + 2*c)
        unpack_lo(a, 69, 41 + 2*c); unpack_hi(a, 70, 41 + 2*c)
        for step, j in enumerate([3, 2, 1, 0]):
            kk0 = 60 + (3 - j); kk1 = kk0 + 1
            a(f"v_mul_f32 v71, v{kk0}, v{67+j}")
            a(f"v_mul_f32 v72, v{kk1}, v{67+j}")
            a("v_cvt_pk_bf16_f32 v73, v71, v72")
            if step == 0:
                unpack_lo(a, 74, 73); unpack_hi(a, 75, 73)
            else:
                unpack_lo(a, 71, 73); unpack_hi(a, 72, 73)
                a("v_add_f32 v74, v74, v71")
                a("v_add_f32 v75, v75, v72")
                a("v_cvt_pk_bf16_f32 v73, v74, v75")
                unpack_lo(a, 74, 73); unpack_hi(a, 75, 73)
        a("v_mul_f32 v74, v74, v65")
        a("v_mul_f32 v75, v75, v66")
        a("v_cvt_pk_bf16_f32 v73, v75, v74")
        a(f"ds_write_b32 v56, v73 offset:{136*c}")
    a("s_waitcnt lgkmcnt(0)")
    a("s_barrier")
    a("v_lshrrev_b32 v1, 2, v0")
    a("v_and_b32 v2, 3, v0")
    a("v_mul_u32_u24 v3, 136, v1")
    a("v_lshlrev_b32 v4, 5, v2")
    a("v_add_u32 v3, v3, v4")
    for m in range(4):
        a(f"ds_read_b64 v[{8+2*m}:{9+2*m}], v3 offset:{8*m}")
    a("s_lshl_b32 s36, s33, 18")
    a("s_lshl_b32 s37, s32, 7")
    a("s_sub_u32 s36, s36, s37")
    a("s_add_u32 s36, s36, 3968")
    a("v_lshlrev_b32 v5, 12, v1")
    a("v_add_u32 v5, v5, v4")
    a("v_add_u32 v5, s36, v5")
    a("s_waitcnt lgkmcnt(0)")
    a("buffer_store_dwordx4 v[8:11], v5, s[28:31], 0 offen")
    a("buffer_store_dwordx4 v[12:15], v5, s[28:31], 0 offen offset:16")
    a.label("L_fr_end")
    a("s_endpgm")
    return desc("front_kernel", 128)

STAGE = 36864
NST = 4
PD = 5

def gemm_setup_dma(a, row_bytes, vD, sW, sH, perm):
    a("s_and_b32 s41, s40, 3")
    a("s_lshr_b32 s42, s40, 2")
    a("s_mul_i32 s43, s42, 18432")
    a("s_lshl_b32 s44, s41, 12")
    a(f"s_add_u32 s{sW}, s43, s44")
    a("s_lshl_b32 s44, s41, 9")
    a("s_add_u32 s44, s44, 16384")
    a(f"s_add_u32 s{sH}, s43, s44")
    a("s_movk_i32 s45, 3641")
    for i in range(5):
        if i < 4:
            a("s_lshl_b32 s44, s41, 8")
            a(f"s_add_u32 s44, s44, {64*i}")
        else:
            a("s_lshl_b32 s44, s41, 5")
            a("s_add_u32 s44, s44, 1024")
        a("v_add_u32 v17, s44, v1")
        a("v_mul_lo_u32 v18, v17, s45")
        a("v_lshrrev_b32 v18, 16, v18")
        a("v_mul_u32_u24 v19, 18, v18")
        a("v_sub_u32 v19, v17, v19")
        if perm:
            a("v_lshrrev_b32 v17, 4, v18")
            a("v_and_b32 v17, 1, v17")
            a("v_lshlrev_b32 v17, 2, v17")
            a("v_xor_b32 v18, v18, v17")
        a(f"v_mul_u32_u24 v18, {row_bytes}, v18")
        a("v_lshlrev_b32 v19, 4, v19")
        a(f"v_add_u32 v{vD+i}, v18, v19")

def gemm_dma(a, j, vD, sW, sH, srdW, kstep_bytes):
    st = j % NST
    a(f"s_mov_b32 s46, {j*kstep_bytes}")
    for i in range(4):
        a(f"s_add_u32 m0, s{sW}, {st*STAGE + 1024*i}")
        a("s_nop 0")
        a.vmem(f"buffer_load_dwordx4 v{vD+i}, s[{srdW}:{srdW+3}], s46 offen lds", f"D{j}")
    a(f"s_add_u32 m0, s{sH}, {st*STAGE}")
    a("s_mov_b32 exec_hi, 0")
    a.vmem(f"buffer_load_dwordx4 v{vD+4}, s[{srdW}:{srdW+3}], s46 offen lds", f"D{j}")
    a("s_mov_b32 exec_hi, -1")

def gemm_loop(a, units, NU, NAB, w_reads, mfmas, a_loads, dma, early, late=None, NJ=9, NS=4, PD=PD, hooks=None):
    a.wait_vm("A0")
    a("s_barrier")
    a.stamp(2)
    for U in range(PD):
        w_reads(U)
    bg = []
    spread = 'nospread' not in FL
    every = 2 if NU > 20 else 1
    for U, un in enumerate(units):
        j = un[0]; u = U % NU
        if bg and U % every == 0: a.emit_chunk(bg.pop(0))
        if U == NU*4 and not ('st2' in FL and NJ != 9): a.stamp(3)
        if u == 0 and j > 0:
            a.wait_vm(f"A{j}")
            if j + NAB - 1 <= NJ - 1:
                if spread: bg += a.capture(lambda: a_loads(j + NAB - 1))
                else: a_loads(j + NAB - 1)
        if j == 0 and u in early:
            early[u]()
        if j == NJ - 3 and u == 16 and late: late()
        if hooks and (j, u) in hooks: hooks[(j, u)]()
        if u == NU - PD and j < NJ - 1:
            a.wait_vm(f"D{j+1}")
            a("s_barrier")
            if j + NS - 1 <= NJ - 1:
                if spread: bg += a.capture(lambda: dma(j + NS - 1))
                else: dma(j + NS - 1)
        if U + PD < len(units):
            w_reads(U + PD)
        a.wait_lg(f"W{U}")
        mfmas(U)

CVB = 3 * 36864
G1_LDS = CVB + 4 * CV_SZ
def conv_head_loads(a):
    a("s_lshr_b32 s80, s40, 1")
    a("s_lshl_b32 s81, s80, 8")
    a("s_add_u32 s81, s81, s2")
    a("s_cmp_lt_u32 s81, 576")
    a("s_cselect_b32 s82, 1, 0")
    a("s_min_u32 s81, s81, 575")
    a(f"s_mul_i32 s83, s80, {CV_SZ}")
    a(f"s_add_u32 s83, s83, {CVB}")
    a("s_lshl_b32 s84, s81, 12")
    a.srd(88, 72, SZ_SD)
    a.srd(92, 74, D*2)
    a.srd(96, 8, SZ_SD, WS_KVT)
    a("v_lshlrev_b32 v212, 4, v1")
    for i in range(4):
        a.vmem(f"buffer_load_dwordx4 v[{84+8*i}:{87+8*i}], v212, s[88:91], s84 offen offset:{1024*i}", "CK")
        a.vmem(f"buffer_load_dword v{88+8*i}, v212, s[88:91], s84 offen offset:{1024*i+16}", "CK")
    for i in range(4):
        a(f"s_add_u32 m0, s83, {CV_U + 1024*i}")
        a(f"s_add_u32 s85, s84, {1024*i}")
        a.vmem("buffer_load_dwordx4 v212, s[96:99], s85 offen lds", "CU")
    a("s_lshl_b32 s85, s81, 1")
    a("v_mov_b32 v213, s85")
    a.vmem("buffer_load_ushort v213, v213, s[92:95], 0 offen", "CU")

def conv_head_compute(a):
    Z = 216
    for i in range(4): a(f"v_mov_b32 v{Z+i}, 0")
    a("v_add_u32 v214, s83, v212")
    a("s_mov_b32 exec_hi, 0")
    a(f"ds_write_b128 v214, v[{Z}:{Z+3}] offset:{CV_U+4096}")
    a("s_mov_b32 exec_lo, 3")
    a(f"ds_write_b128 v214, v[{Z}:{Z+3}]")
    a("s_mov_b32 exec_lo, 1")
    a(f"ds_write_b128 v214, v[{Z}:{Z+3}] offset:{CV_O}")
    a("s_mov_b64 exec, -1")
    a("v_and_b32 v220, 15, v1")
    a("v_lshrrev_b32 v221, 4, v1")
    a("v_lshlrev_b32 v222, 1, v220")
    a("v_lshlrev_b32 v223, 4, v221")
    a("v_add_u32 v222, v222, v223")
    a("v_and_b32 v224, 1, v220")
    a("v_cmp_eq_u32 vcc, 1, v224")
    a(f"v_mov_b32 v224, {CV_O}")
    a("s_nop 1")
    a("v_cndmask_b32 v224, v224, 2, vcc")
    a("v_add3_u32 v222, v222, v224, s83")
    a("v_lshlrev_b32 v225, 5, v220")
    a("v_sub_u32 v225, v223, v225")
    a(f"v_add_u32 v225, {CV_U+480}, v225")
    a("v_add_u32 v225, s83, v225")
    KA = [226, 227, 228, 229, 230]
    for i in range(5):
        a(f"v_add_u32 v{KA[i]}, {960*i}, v222")
    ACC = 52; FA = 84; FB = 116
    for i in range(16):
        a(f"v_mov_b32 v{ACC+i}, 0")
    a.wait_vm("CK")
    for i in range(4):
        b = 84 + 8*i
        a(f"ds_write_b128 v214, v[{b}:{b+3}] offset:{32+1024*i}")
        for t in range(4):
            a(f"v_alignbit_b32 v{232+4*(i&1)+t}, v{b+t+1}, v{b+t}, 16")
        a(f"ds_write_b128 v214, v[{232+4*(i&1)}:{235+4*(i&1)}] offset:{CV_O+32+1024*i}")
        if i == 0:
            a(f"v_lshlrev_b32 v{Z+3}, 16, v84")
            a("s_mov_b64 exec, 1")
            a(f"ds_write_b128 v214, v[{Z}:{Z+3}] offset:{CV_O+16}")
            a("s_mov_b64 exec, -1")
    a.wait_vm("CU")
    a("s_waitcnt lgkmcnt(0)")
    a("s_cmp_eq_u32 s82, 0")
    a("s_cbranch_scc1 L_cvh_epi")
    a("s_and_b32 s85, s40, 1")
    a("s_cmp_eq_u32 s85, 1")
    a("s_cbranch_scc1 L_cvh_p1")
    TS = [[7, 4, 1, 0], [6, 5, 3, 2]]
    for part in range(2):
        if part == 1: a.label("L_cvh_p1")
        ts = TS[part]; mx = max(ts)
        def reads(rho):
            o = 64 * (rho & 1)
            for pi in range(mx + 1):
                p = 8*pi + rho
                r = FA+o+4*pi
                a(f"ds_read2_b32 v[{r}:{r+1}], v{KA[p//15]} offset0:{16*(p%15)} offset1:{16*(p%15)+1}")
                a(f"ds_read2_b32 v[{r+2}:{r+3}], v{KA[p//15]} offset0:{16*(p%15)+2} offset1:{16*(p%15)+3}")
                w = 8*pi - rho
                a(f"ds_read_b128 v[{FB+o+4*pi}:{FB+o+4*pi+3}], v225 offset:{64*(56-w)}")
        reads(0)
        for rho in range(8):
            a("s_waitcnt lgkmcnt(0)")
            if rho < 7:
                reads(rho + 1)
            o = 64 * (rho & 1)
            work = [[(ti, t, pi) for pi in range(t + 1)] for ti, t in enumerate(ts)]
            while any(work):
                for wl in work:
                    if wl:
                        ti, t, pi = wl.pop(0)
                        tau = t - pi
                        a(f"v_mfma_f32_16x16x32_bf16 v[{ACC+4*ti}:{ACC+4*ti+3}], v[{FA+o+4*pi}:{FA+o+4*pi+3}], v[{FB+o+4*tau}:{FB+o+4*tau+3}], v[{ACC+4*ti}:{ACC+4*ti+3}]")
        for ti, t in enumerate(ts):
            a(f"s_mov_b32 s{76+ti}, {512*t}")
        if part == 0: a("s_branch L_cvh_epi")
    a.label("L_cvh_epi")
    a.srd(88, 8, SZ_SD, WS_Y2T)
    a("s_cmp_eq_u32 s82, 0")
    a("s_cselect_b32 s84, 0x7f000000, s84")
    for ti in range(4):
        a(f"s_cselect_b32 s{76+ti}, 0, s{76+ti}")
    a("v_lshlrev_b32 v213, 16, v213")
    a("v_lshlrev_b32 v224, 5, v220")
    a("v_lshlrev_b32 v226, 3, v221")
    a("v_add_u32 v224, v224, v226")
    a(f"v_sub_u32 v226, {CV_U+4088}, v224")
    a("v_add_u32 v226, s83, v226")
    a("v_add_u32 v224, s84, v224")
    for ti in range(4):
        a(f"v_subrev_u32 v227, s{76+ti}, v226")
        a(f"ds_read_b64 v[{84+2*ti}:{85+2*ti}], v227")
    a("s_waitcnt lgkmcnt(0)")
    for ti in range(4):
        y = ACC + 4*ti; kq = 84 + 2*ti; T = 100 + 8*(ti & 1)
        unpack_hi(a, T, kq+1); unpack_lo(a, T+1, kq+1); unpack_hi(a, T+2, kq); unpack_lo(a, T+3, kq)
        for i in range(4):
            a(f"v_mul_f32 v{T+i}, v{T+i}, v213")
        a(f"v_cvt_pk_bf16_f32 v{T+4}, v{T}, v{T+1}")
        a(f"v_cvt_pk_bf16_f32 v{T+5}, v{T+2}, v{T+3}")
        a(f"v_cvt_pk_bf16_f32 v{T+6}, v{y}, v{y+1}")
        a(f"v_cvt_pk_bf16_f32 v{T+7}, v{y+2}, v{y+3}")
        unpack_lo(a, T, T+4); unpack_hi(a, T+1, T+4); unpack_lo(a, T+2, T+5); unpack_hi(a, T+3, T+5)
        unpack_lo(a, y, T+6); unpack_hi(a, y+1, T+6); unpack_lo(a, y+2, T+7); unpack_hi(a, y+3, T+7)
        for i in range(4):
            a(f"v_add_f32 v{T+i}, v{T+i}, v{y+i}")
        a(f"v_cvt_pk_bf16_f32 v{240+2*ti}, v{T}, v{T+1}")
        a(f"v_cvt_pk_bf16_f32 v{241+2*ti}, v{T+2}, v{T+3}")
        a.vmem(f"buffer_store_dwordx2 v[{240+2*ti}:{241+2*ti}], v224, s[88:91], s{76+ti} offen", "CS")

def gen_gemm1(a):
    a.kernel_begin("gemm1_kernel")
    a("s_cmp_ge_u32 s2, 256")
    a("s_cbranch_scc1 L_g1_end")
    a.stamp(0)
    a("s_load_dwordx4 s[4:7], s[0:1], 56")
    a("s_load_dwordx2 s[8:9], s[0:1], 96")
    a("s_load_dwordx4 s[72:75], s[0:1], 32")
    a("s_load_dwordx2 s[86:87], s[0:1], 72")
    a("v_and_b32 v1, 63, v0")
    a("v_lshrrev_b32 v2, 6, v0")
    a("s_nop 0")
    a("v_readfirstlane_b32 s40, v2")
    a("s_and_b32 s30, s2, 7")
    a("s_lshr_b32 s31, s2, 3")
    a("s_lshl_b32 s30, s30, 2")
    a("s_and_b32 s32, s31, 3")
    a("s_add_u32 s30, s30, s32")
    a("s_lshr_b32 s31, s31, 2")
    a("s_mul_i32 s33, s30, 288")
    vD, vA, vB = 2, 7, 9
    AB, WB, ACC = 20, 84, 108
    NAB = 4
    gemm_setup_dma(a, 9216, vD, 34, 35, True)
    a("s_lshl_b32 s36, s31, 4")
    a("s_lshl_b32 s37, s40, 1")
    a("s_add_u32 s36, s36, s37")
    a("s_mul_i32 s37, s36, 18432")
    a("v_lshlrev_b32 v17, 4, v1")
    a(f"v_add_u32 v{vA}, s37, v17")
    a(f"v_add_u32 v{vA+1}, 18432, v{vA}")
    a("s_waitcnt lgkmcnt(0)")
    a("s_cmp_ge_u32 s40, 4")
    a("s_cselect_b32 s10, s6, s4")
    a("s_cselect_b32 s11, s7, s5")
    a("s_add_u32 s12, s10, s33")
    a("s_addc_u32 s13, s11, 0")
    a(f"s_sub_u32 s14, {SZ_W}, s33")
    a("s_mov_b32 s15, 0x00020000")
    a.srd(16, 8, SZ_SD, WS_XN)
    a.srd(20, 8, SZ_H, WS_H)
    def a_loads(j):
        b = AB + 16 * (j % NAB)
        a(f"s_mov_b32 s47, {2048*j}")
        for t in range(2):
            for kh in range(2):
                r = b + 8*t + 4*kh
                a.vmem(f"buffer_load_dwordx4 v[{r}:{r+3}], v{vA+t}, s[16:19], s47 offen offset:{1024*kh}", f"A{j}")
    KB = 64 * 9216
    dma = lambda j: gemm_dma(a, j, vD, 34, 35, 12, KB)
    if 'cvhead' in FL: conv_head_loads(a)
    dma(0); a_loads(0); dma(1); a_loads(1)
    def g1_pf():
        a("s_and_b32 s41, s2, 7")
        a("s_mul_i32 s41, s41, 1152")
        a("s_add_u32 s24, s10, s41")
        a("s_addc_u32 s25, s11, 0")
        a(f"s_sub_u32 s26, {SZ_W}, s41")
        a("s_mov_b32 s27, 0x00020000")
        a("s_lshr_b32 s41, s2, 3")
        a("v_mul_u32_u24 v17, 3641, v1")
        a("v_lshrrev_b32 v17, 16, v17")
        a("v_mul_u32_u24 v18, 18, v17")
        a("v_sub_u32 v18, v1, v18")
        a("v_lshlrev_b32 v17, 5, v17")
        a("v_add_u32 v17, s41, v17")
        a("v_mul_u32_u24 v17, 9216, v17")
        a("v_lshlrev_b32 v18, 6, v18")
        a("v_add_u32 v17, v17, v18")
        a("s_and_b32 s42, s40, 3")
        a(f"s_mul_i32 s43, s42, {3*32*9216}")
        a(f"s_add_u32 s43, s43, {4*32*9216}")
        a.vmem("buffer_load_dword v0, v17, s[24:27], s43 offen", "PF")
        a("s_and_b32 s42, s41, 3")
        a("s_lshl_b32 s42, s42, 2")
        a("s_lshl_b32 s44, s31, 4")
        a("s_add_u32 s42, s42, s44")
        a("s_and_b32 s44, s40, 1")
        a("s_lshl_b32 s44, s44, 1")
        a("s_add_u32 s42, s42, s44")
        a("s_mul_i32 s42, s42, 18432")
        a("s_lshr_b32 s44, s40, 1")
        a("s_lshl_b32 s44, s44, 11")
        a("s_add_u32 s42, s42, s44")
        a("s_add_u32 s42, s42, 4096")
        a("v_lshrrev_b32 v18, 5, v1")
        a("v_mul_u32_u24 v18, 18432, v18")
        a("v_and_b32 v19, 31, v1")
        a("v_lshlrev_b32 v19, 6, v19")
        a("v_add_u32 v18, v18, v19")
        a.vmem("buffer_load_dword v0, v18, s[16:19], s42 offen", "PF")
        a(f"s_add_u32 s43, s43, {12*32*9216}")
        a.vmem("buffer_load_dword v0, v17, s[24:27], s43 offen", "PF")
        a("s_add_u32 s42, s42, 8192")
        a("s_cmp_ge_u32 s40, 6")
        a("s_cselect_b32 s42, 0x7f000000, s42")
        a.vmem("buffer_load_dword v0, v18, s[16:19], s42 offen", "PF")
    if 'cvhead' in FL: conv_head_compute(a)
    a("v_lshrrev_b32 v17, 4, v1")
    a("v_lshrrev_b32 v18, 2, v1")
    a("v_and_b32 v18, 3, v18")
    a("v_and_b32 v19, 1, v17")
    a("v_lshlrev_b32 v17, 4, v17")
    a("v_add_u32 v17, v17, v18")
    a("v_lshlrev_b32 v19, 2, v19")
    a("v_add_u32 v18, v17, v19")
    a("v_xor_b32 v19, 4, v19")
    a("v_add_u32 v19, v17, v19")
    a("v_mul_u32_u24 v18, 288, v18")
    a("v_mul_u32_u24 v19, 288, v19")
    a("v_and_b32 v17, 3, v1")
    a("v_lshlrev_b32 v17, 3, v17")
    a(f"v_add_u32 v{vB}, v18, v17")
    a(f"v_add_u32 v{vB+1}, v19, v17")
    for st in range(1, NST):
        a(f"v_add_u32 v{vB+2*st}, {st*STAGE}, v{vB}")
        a(f"v_add_u32 v{vB+2*st+1}, {st*STAGE}, v{vB+1}")
    for i in range(144):
        a(f"v_mov_b32 v{ACC+i}, 0")
    a.stamp(1)
    NU = 36
    units = [(j, kh, mat, c) for j in range(9) for kh in range(2) for mat in range(2) for c in range(9)]
    def w_reads(U):
        j, kh, mat, c = units[U]
        st = j % NST
        r = WB + 4 * (U % (PD + 1))
        off = mat*18432 + 8*kh*288 + c*32
        a.lds(f"ds_read_b64_tr_b16 v[{r}:{r+1}], v{vB+2*st} offset:{off}", f"W{U}")
        a.lds(f"ds_read_b64_tr_b16 v[{r+2}:{r+3}], v{vB+2*st+1} offset:{off}", f"W{U}")
    def mfmas(U):
        j, kh, mat, c = units[U]
        r = WB + 4 * (U % (PD + 1))
        for t in range(2):
            ac = ACC + 4 * (t*18 + mat*9 + c)
            ar = AB + 16*(j % NAB) + 8*t + 4*kh
            a(f"v_mfma_f32_16x16x32_bf16 v[{ac}:{ac+3}], v[{r}:{r+3}], v[{ar}:{ar+3}], v[{ac}:{ac+3}]")
    def w2_pf():
        a("s_bfe_u32 s41, s2, 0x10002")
        if 'swap' in FL: a("s_xor_b32 s41, s41, 1")
        a("s_cmp_eq_u32 s41, 0")
        a(f"s_cselect_b32 s41, {128*int(os.environ.get('NJP','15'))*1152}, 0")
        a(f"s_mov_b32 s26, {128*int(os.environ.get('NJP','15'))*1152}")
        a(f"s_cselect_b32 s26, {128*(36-int(os.environ.get('NJP','15')))*1152}, s26")
        a("s_add_u32 s24, s86, s41")
        a("s_addc_u32 s25, s87, 0")
        a("s_mov_b32 s27, 0x00020000")
        a("s_and_b32 s41, s2, 0xf8")
        a("s_add_u32 s41, s41, s40")
        a("s_lshl_b32 s41, s41, 13")
        a(f"s_add_u32 s42, s41, {256*8192}")
        a("v_lshlrev_b32 v17, 7, v1")
        a.vmem("buffer_load_dword v0, v17, s[24:27], s41 offen", "PF2")
        a.vmem("buffer_load_dword v0, v17, s[24:27], s42 offen", "PF2")
    gemm_loop(a, units, NU, NAB, w_reads, mfmas, a_loads, dma,
              {2: lambda: dma(2), 8: lambda: a_loads(2), 14: (g1_pf if 'g1pf' in FL else (lambda: None)), 22: lambda: a_loads(3)}, late=(None if 'nopf2' in FL else w2_pf))
    a.stamp(4)
    a("s_mul_i32 s37, s36, 147456")
    a("s_mul_i32 s38, s30, 9")
    a("s_and_b32 s39, s38, 1")
    a("s_lshr_b32 s38, s38, 1")
    a("s_lshl_b32 s38, s38, 10")
    a("s_add_u32 s37, s37, s38")
    a("v_lshlrev_b32 v17, 4, v1")
    a("v_add_u32 v2, s37, v17")
    a("v_add_u32 v3, 147456, v2")
    a("s_mov_b32 s46, 0xbfb8aa3b")
    a("s_mov_b32 s47, 0xbfb8aa3b")
    a("s_mov_b32 s48, 1.0")
    a("s_mov_b32 s49, 1.0")
    a("s_movk_i32 s45, 4096")
    a("s_cmp_eq_u32 s39, 0")
    a("s_cbranch_scc0 L_g1_epi_odd")
    def group(t, c, T, O):
        g = ACC + 4*(t*18 + c); u_ = ACC + 4*(t*18 + 9 + c)
        a(f"v_cvt_pk_bf16_f32 v{T}, v{g}, v{g+1}")
        a(f"v_cvt_pk_bf16_f32 v{T+1}, v{g+2}, v{g+3}")
        a(f"v_cvt_pk_bf16_f32 v{T+2}, v{u_}, v{u_+1}")
        a(f"v_cvt_pk_bf16_f32 v{T+3}, v{u_+2}, v{u_+3}")
        unpack_lo(a, g, T); unpack_hi(a, g+1, T); unpack_lo(a, g+2, T+1); unpack_hi(a, g+3, T+1)
        a(f"v_pk_mul_f32 v[{T+4}:{T+5}], v[{g}:{g+1}], s[46:47]")
        a(f"v_pk_mul_f32 v[{T+6}:{T+7}], v[{g+2}:{g+3}], s[46:47]")
        unpack_lo(a, u_, T+2); unpack_hi(a, u_+1, T+2)
        for i in range(4):
            a(f"v_exp_f32 v{T+4+i}, v{T+4+i}")
        unpack_lo(a, u_+2, T+3); unpack_hi(a, u_+3, T+3)
        a(f"v_pk_add_f32 v[{T+4}:{T+5}], v[{T+4}:{T+5}], s[48:49]")
        a(f"v_pk_add_f32 v[{T+6}:{T+7}], v[{T+6}:{T+7}], s[48:49]")
        for i in range(4):
            a(f"v_rcp_f32 v{T+4+i}, v{T+4+i}")
        a("s_nop 0")
        a(f"v_pk_mul_f32 v[{T+4}:{T+5}], v[{T+4}:{T+5}], v[{g}:{g+1}]")
        a(f"v_pk_mul_f32 v[{T+6}:{T+7}], v[{T+6}:{T+7}], v[{g+2}:{g+3}]")
        a(f"v_cvt_pk_bf16_f32 v{T}, v{T+4}, v{T+5}")
        a(f"v_cvt_pk_bf16_f32 v{T+1}, v{T+6}, v{T+7}")
        unpack_lo(a, T+4, T); unpack_hi(a, T+5, T); unpack_lo(a, T+6, T+1); unpack_hi(a, T+7, T+1)
        a(f"v_pk_mul_f32 v[{T+4}:{T+5}], v[{T+4}:{T+5}], v[{u_}:{u_+1}]")
        a(f"v_pk_mul_f32 v[{T+6}:{T+7}], v[{T+6}:{T+7}], v[{u_+2}:{u_+3}]")
        a(f"v_cvt_pk_bf16_f32 v{O}, v{T+4}, v{T+5}")
        a(f"v_cvt_pk_bf16_f32 v{O+1}, v{T+6}, v{T+7}")
    HF = ' sc1' if 'hsc1' in FL else (' nt' if 'hnt' in FL else (' sc0 sc1' if 'hsc01' in FL else ''))
    for par in range(2):
        if par == 1: a.label("L_g1_epi_odd")
        n = 0
        for t in range(2):
            for c in range(9):
                T2 = c + par
                m, hi = T2 >> 1, T2 & 1
                O = 52 + 4 * ((t*5 + m) & 3)
                group(t, c, 20 + 8*(n & 3), O + 2*hi); n += 1
                so, imm = ("0", m*1024) if m < 4 else ("s45", 0)
                if hi == 1 and c > 0:
                    a(f"buffer_store_dwordx4 v[{O}:{O+3}], v{2+t}, s[20:23], {so} offen offset:{imm}{HF}")
                elif hi == 1 and c == 0:
                    a(f"buffer_store_dwordx2 v[{O+2}:{O+3}], v{2+t}, s[20:23], {so} offen offset:{imm+8}{HF}")
                elif hi == 0 and c == 8:
                    a(f"buffer_store_dwordx2 v[{O}:{O+1}], v{2+t}, s[20:23], {so} offen offset:{imm}{HF}")
        if par == 0: a("s_branch L_g1_epi_done")
    a.label("L_g1_epi_done")
    a.stamp(5)
    a.stamp_flush(6, 8, 0x8000000)
    a.label("L_g1_end")
    a("s_endpgm")
    return desc("gemm1_kernel", 252, 100)

G2_ST = 24576
G2_NS = 5
G2_NJP = int(os.environ.get('NJP', '15')); G2_NJC = 36 - G2_NJP
G2_HP = int(os.environ.get('HP', '3')); G2_HL = int(os.environ.get('HL', '2'))
G2_Y = G2_NS * G2_ST
G2_LDS = G2_Y + 24576
def gen_gemm2(a):
    a.kernel_begin("gemm2_kernel")
    a("s_cmp_ge_u32 s2, 256")
    a("s_cbranch_scc1 L_g2_end")
    a("s_cmp_lt_u32 s2, 64")
    a("s_cbranch_scc1 L_g2_pf")
    a("s_sub_u32 s2, s2, 64")
    a.stamp(0)
    a("s_load_dwordx2 s[4:5], s[0:1], 72")
    a("s_load_dwordx2 s[6:7], s[0:1], 0")
    a("s_load_dwordx2 s[8:9], s[0:1], 96")
    a("s_load_dwordx2 s[10:11], s[0:1], 80")
    a("v_and_b32 v1, 63, v0")
    a("v_lshrrev_b32 v2, 6, v0")
    a("s_nop 0")
    a("v_readfirstlane_b32 s40, v2")
    a("s_and_b32 s30, s2, 7")
    a("s_lshr_b32 s31, s2, 3")
    a("s_mul_i32 s32, s31, 43")
    a("s_lshr_b32 s32, s32, 8")
    a("s_mul_i32 s33, s32, 6")
    a("s_sub_u32 s31, s31, s33")
    a("s_lshr_b32 s29, s30, 2")
    if 'swap' in FL: a("s_xor_b32 s29, s29, 1")
    a("s_and_b32 s30, s30, 3")
    a("s_lshl_b32 s30, s30, 2")
    a("s_add_u32 s32, s32, s30")
    a("s_and_b32 s41, s40, 3")
    a("s_lshr_b32 s42, s40, 2")
    a("s_cmp_eq_u32 s29, 0")
    a(f"s_cselect_b32 s28, {128*G2_NJP}, 0")
    a("s_mul_i32 s33, s28, 1152")
    a("s_mul_i32 s34, s31, 192")
    a("s_add_u32 s33, s33, s34")
    a("s_mul_i32 s36, s40, 3072")
    vD, vA, vB = 2, 5, 8
    AB, WB, ACC = 20, 100, 124
    NAB, PD2 = 5, 5
    a("s_movk_i32 s45, 5462")
    a("s_mul_i32 s44, s40, 192")
    for i in range(3):
        a(f"s_add_u32 s43, s44, {64*i}")
        a("v_add_u32 v17, s43, v1")
        a("v_mul_lo_u32 v18, v17, s45")
        a("v_lshrrev_b32 v18, 16, v18")
        a("v_mul_u32_u24 v19, 12, v18")
        a("v_sub_u32 v19, v17, v19")
        a("v_lshrrev_b32 v17, 1, v19")
        a("v_bfe_u32 v16, v18, 2, 1")
        a("v_sub_u32 v17, v17, v16")
        a("v_cmp_gt_i32 vcc, 0, v17")
        a("v_and_b32 v19, 1, v19")
        a("v_lshlrev_b32 v19, 4, v19")
        a("v_cndmask_b32 v17, v17, 5, vcc")
        a("v_lshlrev_b32 v17, 5, v17")
        a("v_mul_u32_u24 v18, 1152, v18")
        a(f"v_add3_u32 v{vD+i}, v17, v18, v19")
    a("s_lshl_b32 s38, s32, 3")
    a("s_lshl_b32 s39, s41, 1")
    a("s_add_u32 s38, s38, s39")
    a("s_mul_i32 s34, s38, 147456")
    a("s_lshl_b32 s35, s28, 5")
    a("s_add_u32 s34, s34, s35")
    a("s_lshl_b32 s35, s42, 11")
    a("s_add_u32 s34, s34, s35")
    a("v_lshlrev_b32 v17, 4, v1")
    a(f"v_add_u32 v{vA}, s34, v17")
    a(f"v_add_u32 v{vA+1}, 147456, v{vA}")
    a("s_waitcnt lgkmcnt(0)")
    a("s_add_u32 s12, s4, s33")
    a("s_addc_u32 s13, s5, 0")
    a(f"s_sub_u32 s14, {SZ_W}, s33")
    a("s_mov_b32 s15, 0x00020000")
    a.srd(16, 8, SZ_H, WS_H)
    a.srd(20, 8, SZ_SD, WS_Y2T)
    a.srd(24, 8, 2*SZ_SD, WS_XP)
    a.srd(72, 6, SZ_SD)
    a.srd(76, 10, SZ_SD)
    a.srd(84, 8, 96*49152, WS_P)
    a.srd(80, 8, 128*128, WS_FL)
    def a_loads(j):
        b = AB + 16 * (j % NAB)
        a(f"s_mov_b32 s47, {4096*j}")
        for t in range(2):
            for mm in range(2):
                r = b + 8*t + 4*mm
                a.vmem(f"buffer_load_dwordx4 v[{r}:{r+3}], v{vA+t}, s[16:19], s47 offen offset:{1024*mm}", f"A{j}")
    def dma(j):
        st = j % G2_NS
        a(f"s_mov_b32 s46, {j*128*1152}")
        for i in range(3):
            a(f"s_add_u32 m0, s36, {st*G2_ST + 1024*i}")
            a("s_nop 0")
            a.vmem(f"buffer_load_dwordx4 v{vD+i}, s[12:15], s46 offen lds", f"D{j}")
    dma(0); a_loads(0); dma(1); a_loads(1)
    a("v_lshrrev_b32 v17, 2, v1")
    a("v_mul_u32_u24 v17, 192, v17")
    a("v_and_b32 v18, 3, v1")
    a("v_lshlrev_b32 v18, 3, v18")
    a(f"s_mul_i32 s43, s42, {64*192}")
    a("v_add3_u32 v17, v17, v18, s43")
    a("v_bfe_u32 v18, v1, 4, 1")
    a("v_lshlrev_b32 v19, 5, v18")
    a(f"v_add_u32 v{vB}, v17, v19")
    a("v_xor_b32 v18, 1, v18")
    a("v_mul_u32_u24 v18, 160, v18")
    a(f"v_add_u32 v{vB+1}, v17, v18")
    for grp in range(1, 3):
        a(f"v_add_u32 v{vB+2*grp}, {2*grp*G2_ST}, v{vB}")
        a(f"v_add_u32 v{vB+2*grp+1}, {2*grp*G2_ST}, v{vB+1}")
    for i in range(48):
        a(f"v_mov_b32 v{ACC+i}, 0")
    a.stamp(1)
    NU = 12
    PFD = int(os.environ.get('PFD', '8'))
    a("s_lshr_b32 s43, s2, 3")
    a("s_lshl_b32 s43, s43, 2")
    a("s_add_u32 s43, s43, s41")
    a("s_mul_i32 s43, s43, 12")
    a("v_add_u32 v17, s43, v1")
    a("v_lshlrev_b32 v18, 7, v17")
    a("v_lshrrev_b32 v19, 5, v17")
    a("v_mul_u32_u24 v19, 147456, v19")
    a("v_and_b32 v17, 31, v17")
    a("v_lshlrev_b32 v17, 7, v17")
    a("v_add_u32 v19, v19, v17")
    a("s_cmp_eq_u32 s42, 0")
    a("s_cselect_b64 vcc, -1, 0")
    a("s_mul_i32 s43, s28, 1152")
    a("s_add_u32 s92, s4, s43")
    a("s_addc_u32 s93, s5, 0")
    a(f"s_sub_u32 s94, {SZ_W}, s43")
    a("v_cndmask_b32 v247, v19, v18, vcc")
    a("s_and_b32 s44, s2, 3")
    a(f"s_mul_i32 s44, s44, {32*147456}")
    a("s_lshl_b32 s45, s28, 5")
    a("s_add_u32 s44, s44, s45")
    a(f"s_add_u32 s44, s44, {PFD*4096}")
    a("s_cmp_eq_u32 s42, 0")
    a("s_cselect_b32 s92, s92, s16")
    a("s_cselect_b32 s93, s93, s17")
    a("s_cselect_b32 s94, s94, s18")
    a("s_mov_b32 s95, 0x00020000")
    a(f"s_cselect_b32 s90, {PFD*147456}, s44")
    a("s_mov_b32 s91, 4096")
    a("s_cselect_b32 s91, 147456, s91")
    def touch():
        a("s_mov_b32 exec_lo, 0xfff")
        a("s_mov_b32 exec_hi, 0")
        a.vmem("buffer_load_dword v246, v247, s[92:95], s90 offen", "T")
        a("s_mov_b64 exec, -1")
        a("s_add_u32 s90, s90, s91")
    a("s_mul_i32 s43, s40, 6144")
    a("v_lshlrev_b32 v16, 4, v1")
    a("v_add_u32 v14, s43, v16")
    a("s_xor_b32 s44, s40, 4")
    a("s_mul_i32 s44, s44, 6144")
    a("v_add_u32 v7, s44, v16")
    a("s_mul_i32 s44, s32, 6")
    a("s_add_u32 s44, s44, s31")
    a("s_mul_i32 s45, s44, 49152")
    a("v_add_u32 v15, s45, v14")
    a("s_lshl_b32 s48, s44, 7")
    a("s_mov_b32 s49, 1")
    a("s_movk_i32 s88, 4096")
    XR, NR, PR, YL, OF = 172, 184, 196, 220, 232
    a("v_and_b32 v17, 15, v1")
    a("v_lshrrev_b32 v18, 4, v1")
    a("s_add_u32 s43, s38, s42")
    a("s_mul_i32 s43, s43, 18432")
    a("s_mul_i32 s34, s31, 192")
    a("s_add_u32 s34, s34, s43")
    a("v_mul_u32_u24 v19, 1152, v17")
    a(f"v_lshlrev_b32 v{OF}, 3, v18")
    a(f"v_add3_u32 v{OF}, v19, v{OF}, s34")
    a("s_lshl_b32 s43, s43, 1")
    a("s_mul_i32 s34, s31, 6144")
    a("s_add_u32 s43, s43, s34")
    a(f"v_add_u32 v{OF+1}, s43, v16")
    def run_loop(NJ, hooks):
        units = [(j, mm, ct) for j in range(NJ) for mm in range(2) for ct in range(6)]
        def w_reads(U):
            j, mm, ct = units[U]
            st = j % G2_NS
            r = WB + 4 * (U % (PD2 + 1))
            base = vB + 2*(st >> 1) + (0 if ct < 5 else 1)
            off = (st & 1)*G2_ST + 32*mm*192 + (32*ct if ct < 5 else 0)
            a.lds(f"ds_read_b64_tr_b16 v[{r}:{r+1}], v{base} offset:{off}", f"W{U}")
            a.lds(f"ds_read_b64_tr_b16 v[{r+2}:{r+3}], v{base} offset:{off+3072}", f"W{U}")
        def mfmas(U):
            j, mm, ct = units[U]
            r = WB + 4 * (U % (PD2 + 1))
            for t in range(2):
                ac = ACC + 4 * (t*6 + ct)
                ar = AB + 16*(j % NAB) + 8*t + 4*mm
                a(f"v_mfma_f32_16x16x32_bf16 v[{ac}:{ac+3}], v[{r}:{r+3}], v[{ar}:{ar+3}], v[{ac}:{ac+3}]")
        hk = dict(hooks or {})
        if 'coop' in FL:
            for j in range(NJ - PFD):
                hk[(j, 9)] = touch
        gemm_loop(a, units, NU, NAB, w_reads, mfmas, a_loads, dma,
                  {1: lambda: dma(2), 3: lambda: a_loads(2), 4: lambda: dma(3), 5: lambda: a_loads(3), 6: lambda: a_loads(4)},
                  NJ=NJ, NS=G2_NS, PD=PD2, hooks=hk)
    def pofs(i):
        return ("0", 1024*i) if i < 4 else ("s88", 1024*(i-4))
    def exchange():
        a("s_barrier")
        a("s_cmp_lt_u32 s40, 4")
        a(f"s_cbranch_scc1 L_g2_x{exchange.n}a")
        a("s_nop 4")
        for i in range(6):
            a(f"ds_write_b128 v14, v[{ACC+4*i}:{ACC+4*i+3}] offset:{1024*i}")
        for i in range(24):
            a(f"v_mov_b32 v{20+i}, v{ACC+24+i}")
        a(f"s_branch L_g2_x{exchange.n}b")
        a.label(f"L_g2_x{exchange.n}a")
        a("s_nop 4")
        for i in range(6):
            a(f"ds_write_b128 v14, v[{ACC+24+4*i}:{ACC+24+4*i+3}] offset:{1024*i}")
        for i in range(24):
            a(f"v_mov_b32 v{20+i}, v{ACC+i}")
        a.label(f"L_g2_x{exchange.n}b")
        exchange.n += 1
    exchange.n = 0
    a("s_cmp_eq_u32 s29, 0")
    a("s_cbranch_scc1 L_g2_consumer")
    vm_save = list(a.vm)
    run_loop(G2_NJP, None)
    a.stamp(4)
    a.keepbar = True
    exchange()
    a("s_waitcnt lgkmcnt(0)")
    a("s_barrier")
    for i in range(6):
        a(f"ds_read_b128 v[{44+4*i}:{47+4*i}], v7 offset:{1024*i}")
    for i in range(6):
        a(f"s_waitcnt lgkmcnt({5-i})")
        for e in range(4):
            a(f"v_add_f32 v{20+4*i+e}, v{20+4*i+e}, v{44+4*i+e}")
        so, imm = pofs(i)
        a(f"buffer_store_dwordx4 v[{20+4*i}:{23+4*i}], v15, s[84:87], {so} offen offset:{imm} sc1")
    a("s_waitcnt vmcnt(0)")
    a("s_barrier")
    a("s_cmp_lg_u32 s40, 0")
    a("s_cbranch_scc1 L_g2_fin")
    a("v_mov_b32 v20, s48")
    a("v_mov_b32 v21, s49")
    a("s_mov_b64 exec, 1")
    a("buffer_store_dword v21, v20, s[80:83], 0 offen sc1")
    a("s_mov_b64 exec, -1")
    a("s_branch L_g2_fin")
    a.label("L_g2_consumer")
    a.vm = vm_save; a.lg = []; a.keepbar = False
    def x_loads():
        for ct in range(6):
            so, imm = pofs(ct)
            a.vmem(f"buffer_load_dwordx4 v[{XR+4*ct}:{XR+4*ct+3}], v{OF+1}, s[24:27], {so} offen offset:{imm}", "X")
    def early_polls():
        a("v_mov_b32 v17, s48")
        a.vmem("buffer_load_dword v244, v17, s[80:83], 0 offen sc1", "F")
    def early_loads():
        if 'st2' in FL: a.stamp(1)
        a.wait_vm("F")
        a("v_readfirstlane_b32 s43, v244")
        a("v_mov_b32 v17, s48")
        a("s_nop 2")
        a("s_and_b32 s43, s43, s49")
        a("s_cbranch_scc1 L_g2_go2")
        a.label("L_g2_poll2")
        a("s_sleep 8")
        a("buffer_load_dword v18, v17, s[80:83], 0 offen sc1")
        a("s_waitcnt vmcnt(0)")
        a("v_readfirstlane_b32 s43, v18")
        a("s_nop 3")
        a("s_and_b32 s43, s43, s49")
        a("s_cbranch_scc0 L_g2_poll2")
        a.label("L_g2_go2")
        for i in range(6):
            so, imm = pofs(i)
            a.vmem(f"buffer_load_dwordx4 v[{PR+4*i}:{PR+4*i+3}], v15, s[84:87], {so} offen offset:{imm} sc1", "E")
        if 'st2' in FL: a.stamp(3)
    def y_loads():
        for p in range(3):
            a(f"buffer_load_dwordx4 v[{YL+4*p}:{YL+4*p+3}], v{OF+2}, s[20:23], s{96+p} offen sc1")
    def conv_poll():
        a("s_lshl_b32 s43, s31, 7")
        a(f"s_add_u32 s43, s43, {96*128}")
        a(f"v_mov_b32 v{OF+3}, s43")
        a.vmem(f"buffer_load_dword v245, v{OF+3}, s[80:83], 0 offen sc1", "G")
        a("v_lshrrev_b32 v17, 4, v1")
        a("v_lshlrev_b32 v17, 12, v17")
        a("v_and_b32 v18, 15, v1")
        a("v_lshlrev_b32 v18, 4, v18")
        a(f"v_add_u32 v{OF+2}, v17, v18")
        a("s_mul_i32 s96, s31, 96")
        a("s_mul_i32 s35, s40, 12")
        a("s_add_u32 s96, s96, s35")
        a("s_lshl_b32 s96, s96, 12")
        a("s_lshl_b32 s35, s32, 8")
        a("s_add_u32 s96, s96, s35")
        a("s_add_u32 s97, s96, 16384")
        a("s_add_u32 s98, s96, 32768")
    def conv_check():
        a.wait_vm("G")
        a("v_readfirstlane_b32 s89, v245")
        a("s_nop 3")
        a("s_cmp_lt_u32 s89, 384")
        a("s_cbranch_scc1 L_g2_cc")
        y_loads()
        a.label("L_g2_cc")
    run_loop(G2_NJC, {(6, 1): x_loads, (G2_NJC - G2_HP, 1): early_polls, (G2_NJC - G2_HL, 1): early_loads,
                      (G2_NJC - 3, 2): conv_poll, (G2_NJC - 1, 2): conv_check})
    a.stamp(4)
    a.keepbar = True
    a("s_cmp_ge_u32 s89, 384")
    a("s_cbranch_scc1 L_g2_go")
    a.label("L_g2_poll")
    a("s_sleep 24")
    a(f"buffer_load_dword v18, v{OF+3}, s[80:83], 0 offen sc1")
    a("s_waitcnt vmcnt(0)")
    a("v_readfirstlane_b32 s44, v18")
    a("s_nop 3")
    a("s_cmp_ge_u32 s44, 384")
    a("s_cbranch_scc0 L_g2_poll")
    y_loads()
    a.label("L_g2_go")
    a("s_mul_i32 s35, s40, 3072")
    a(f"s_add_u32 s35, s35, {G2_Y}")
    a("v_add_u32 v19, s35, v16")
    exchange()
    a("v_lshrrev_b32 v16, 2, v1")
    a("v_lshlrev_b32 v16, 8, v16")
    a("v_and_b32 v17, 3, v1")
    a("v_lshlrev_b32 v17, 3, v17")
    a("s_lshl_b32 s43, s41, 6")
    a("s_lshl_b32 s44, s42, 5")
    a("s_add_u32 s43, s43, s44")
    a(f"s_add_u32 s43, s43, {G2_Y}")
    a("v_add3_u32 v16, v16, v17, s43")
    a("s_waitcnt vmcnt(3)")
    for i in range(24):
        a(f"v_add_f32 v{20+i}, v{20+i}, v{PR+i}")
    a("s_waitcnt vmcnt(0)")
    for p in range(3):
        a(f"ds_write_b128 v19, v[{YL+4*p}:{YL+4*p+3}] offset:{1024*p}")
    a("s_waitcnt lgkmcnt(0)")
    a("s_barrier")
    YR = 68
    for i in range(6):
        a(f"ds_read_b128 v[{44+4*i}:{47+4*i}], v7 offset:{1024*i}")
    for ct in range(6):
        a(f"ds_read_b64_tr_b16 v[{YR+2*ct}:{YR+2*ct+1}], v16 offset:{4096*ct}")
    a("s_waitcnt lgkmcnt(0)")
    for z in range(6):
        T = 92 + 6*(z & 1)
        for e in range(4):
            a(f"v_add_f32 v{20+4*z+e}, v{20+4*z+e}, v{44+4*z+e}")
        for w in range(2):
            xr, xnr, yr, br = XR+4*z+w, XR+4*z+2+w, YR+2*z+w, 20+4*z+2*w
            unpack_lo(a, T, xnr); unpack_hi(a, T+1, xnr)
            unpack_lo(a, T+2, yr); unpack_hi(a, T+3, yr)
            a(f"v_mul_f32 v{T}, v{T}, v{T+2}")
            a(f"v_mul_f32 v{T+1}, v{T+1}, v{T+3}")
            a(f"v_cvt_pk_bf16_f32 v{T+2}, v{T}, v{T+1}")
            unpack_lo(a, T, T+2); unpack_hi(a, T+1, T+2)
            unpack_lo(a, T+3, xr); unpack_hi(a, T+4, xr)
            a(f"v_add_f32 v{T}, v{T}, v{T+3}")
            a(f"v_add_f32 v{T+1}, v{T+1}, v{T+4}")
            a(f"v_cvt_pk_bf16_f32 v{T+2}, v{T}, v{T+1}")
            unpack_lo(a, T, T+2); unpack_hi(a, T+1, T+2)
            a(f"v_cvt_pk_bf16_f32 v{T+2}, v{br}, v{br+1}")
            unpack_lo(a, T+3, T+2); unpack_hi(a, T+4, T+2)
            a(f"v_add_f32 v{T}, v{T}, v{T+3}")
            a(f"v_add_f32 v{T+1}, v{T+1}, v{T+4}")
            a(f"v_cvt_pk_bf16_f32 v{xr}, v{T}, v{T+1}")
        a(f"buffer_store_dwordx2 v[{XR+4*z}:{XR+4*z+1}], v{OF}, s[76:79], 0 offen offset:{32*z}")
    a.label("L_g2_fin")
    a.stamp(5)
    a.stamp_flush(6, 8, 0x8100000)
    a("s_endpgm")
    a.label("L_g2_pf")
    if 'stamp' in FL: a("s_memtime s[64:65]")
    a("s_load_dwordx2 s[44:45], s[0:1], 72")
    a("s_load_dwordx2 s[8:9], s[0:1], 96")
    a("s_load_dwordx4 s[4:7], s[0:1], 32")
    a("v_and_b32 v1, 63, v0")
    a("v_lshrrev_b32 v2, 6, v0")
    a("s_nop 0")
    a("v_readfirstlane_b32 s40, v2")
    a("s_lshl_b32 s31, s40, 6")
    a("s_add_u32 s30, s2, s31")
    a(f"s_mul_i32 s31, s40, {CV_SZ}")
    a("s_lshl_b32 s32, s30, 12")
    a("v_lshlrev_b32 v2, 4, v1")
    a("s_waitcnt lgkmcnt(0)")
    a.srd(12, 4, SZ_SD)
    a.srd(16, 6, D*2)
    a.srd(20, 8, SZ_SD, WS_KVT)
    a.srd(24, 8, SZ_SD, WS_Y2T)
    a.srd(36, 8, 128*128, WS_FL)
    def cloads(kb, dreg, sd, sdb, slds):
        for i in range(4):
            a(f"buffer_load_dwordx4 v[{kb+6*i}:{kb+3+6*i}], v2, s[12:15], s{sdb} offen offset:{1024*i}")
            a(f"buffer_load_dword v{kb+4+6*i}, v2, s[12:15], s{sdb} offen offset:{1024*i+16}")
        for i in range(4):
            a(f"s_add_u32 m0, s{slds}, {CV_U + 1024*i}")
            a(f"s_add_u32 s33, s{sdb}, {1024*i}")
            a("buffer_load_dwordx4 v2, s[20:23], s33 offen lds")
        a(f"s_lshl_b32 s33, s{sd}, 1")
        a(f"v_mov_b32 v{dreg}, s33")
        a(f"buffer_load_ushort v{dreg}, v{dreg}, s[16:19], 0 offen")
    cloads(48, 3, 30, 32, 31)
    a("s_add_u32 s46, s2, 512")
    a("s_lshl_b32 s47, s46, 12")
    a(f"s_mov_b32 s48, {8*CV_SZ}")
    a("s_cmp_ge_u32 s40, 4")
    a("s_cbranch_scc1 L_g2_pf2")
    cloads(176, 200, 46, 47, 48)
    a.label("L_g2_pf2")
    a("s_barrier")
    a("s_and_b32 s50, s2, 7")
    a("s_and_b32 s51, s2, 56")
    a("s_add_u32 s51, s51, s40")
    a("s_lshr_b32 s52, s50, 2")
    if 'swap' in FL: a("s_xor_b32 s52, s52, 1")
    a("v_lshlrev_b32 v199, 7, v1")
    a("s_lshl_b32 s53, s51, 13")
    a("v_lshrrev_b32 v5, 4, v1")
    a("v_mul_u32_u24 v5, 147456, v5")
    a("v_and_b32 v6, 15, v1")
    a("v_lshlrev_b32 v6, 7, v6")
    a("v_add_u32 v181, v5, v6")
    a("s_and_b32 s54, s50, 3")
    a("s_lshl_b32 s54, s54, 5")
    a("s_and_b32 s55, s51, 7")
    a("s_lshl_b32 s55, s55, 2")
    a("s_add_u32 s54, s54, s55")
    a("s_mul_i32 s54, s54, 147456")
    a("s_cmp_eq_u32 s52, 0")
    a(f"s_cselect_b32 s55, {128*G2_NJP*32}, 0")
    a(f"s_cselect_b32 s52, {128*G2_NJP*1152}, 0")
    a(f"s_mov_b32 s58, {128*G2_NJP*1152}")
    a(f"s_cselect_b32 s58, {128*G2_NJC*1152}, s58")
    a(f"s_cselect_b32 s43, {2*G2_NJC}, {2*G2_NJP}")
    a("s_add_u32 s54, s54, s55")
    a("s_lshr_b32 s50, s51, 3")
    a("s_lshl_b32 s55, s50, 11")
    a("s_add_u32 s54, s54, s55")
    a("s_add_u32 s56, s44, s52")
    a("s_addc_u32 s57, s45, 0")
    a("s_mov_b32 s59, 0x00020000")
    a.srd(60, 8, SZ_H, WS_H)
    def pf(rs):
        for r in rs:
            a(f"buffer_load_dword v201, v199, s[56:59], s53 offen")
            a(f"s_add_u32 s53, s53, {64*8192}")
            a("s_cmp_ge_u32 s50, s43")
            a("s_cselect_b32 s55, 0x7f000000, s54")
            a(f"buffer_load_dword v201, v181, s[60:63], s55 offen")
            a("s_add_u32 s54, s54, 16384")
            a("s_add_u32 s50, s50, 8")
    NPF = int(os.environ.get('NPF', '3'))
    pf(range(0, NPF))
    a("s_mov_b32 s49, 0")
    a("v_and_b32 v9, 15, v1")
    a("v_lshrrev_b32 v10, 4, v1")
    a("v_lshlrev_b32 v12, 4, v10")
    a(f"s_waitcnt vmcnt({2*NPF})")
    if 'stamp' in FL: a("s_memtime s[66:67]")
    def conv_body(ts):
        a("v_add_u32 v8, s31, v2")
        a("v_lshlrev_b32 v11, 1, v9")
        a("v_add_u32 v11, v11, v12")
        a("v_and_b32 v14, 1, v9")
        a("v_cmp_eq_u32 vcc, 1, v14")
        a(f"v_mov_b32 v14, {CV_O}")
        a("s_nop 1")
        a("v_cndmask_b32 v14, v14, 2, vcc")
        a("v_add_u32 v11, v11, v14")
        a("v_add_u32 v11, s31, v11")
        a("v_lshlrev_b32 v13, 5, v9")
        a("v_sub_u32 v13, v12, v13")
        a(f"v_add_u32 v13, {CV_U+480}, v13")
        a("v_add_u32 v13, s31, v13")
        KA = [11, 14, 15, 202, 203]
        for i in range(1, 5):
            a(f"v_add_u32 v{KA[i]}, {960*i}, v11")
        a("v_mov_b32 v4, 0"); a("v_mov_b32 v5, 0"); a("v_mov_b32 v6, 0"); a("v_mov_b32 v7, 0")
        a("s_mov_b32 exec_hi, 0")
        a(f"ds_write_b128 v8, v[4:7] offset:{CV_U+4096}")
        a("s_mov_b32 exec_lo, 3")
        a("ds_write_b128 v8, v[4:7]")
        a("s_mov_b32 exec_lo, 1")
        a(f"ds_write_b128 v8, v[4:7] offset:{CV_O}")
        a("s_mov_b64 exec, -1")
        CA = 16; FA = 48; FB = 80
        mx = max(ts)
        for t in ts:
            for i in range(4): a(f"v_mov_b32 v{CA+4*t+i}, 0")
        for i in range(4):
            b = 48 + 6*i
            a(f"ds_write_b128 v8, v[{b}:{b+3}] offset:{32+1024*i}")
            for t in range(4):
                a(f"v_alignbit_b32 v{112+4*(i&1)+t}, v{b+t+1}, v{b+t}, 16")
            a(f"ds_write_b128 v8, v[{112+4*(i&1)}:{115+4*(i&1)}] offset:{CV_O+32+1024*i}")
            if i == 0:
                a("v_lshlrev_b32 v7, 16, v48")
                a("s_mov_b64 exec, 1")
                a(f"ds_write_b128 v8, v[4:7] offset:{CV_O+16}")
                a("s_mov_b64 exec, -1")
        a("s_waitcnt lgkmcnt(0)")
        def creads(rho):
            o = 64 * (rho & 1)
            for pi in range(mx + 1):
                p = 8*pi + rho
                r = FA+o+4*pi
                a(f"ds_read2_b32 v[{r}:{r+1}], v{KA[p//15]} offset0:{16*(p%15)} offset1:{16*(p%15)+1}")
                a(f"ds_read2_b32 v[{r+2}:{r+3}], v{KA[p//15]} offset0:{16*(p%15)+2} offset1:{16*(p%15)+3}")
                w = 8*pi - rho
                a(f"ds_read_b128 v[{FB+o+4*pi}:{FB+o+4*pi+3}], v13 offset:{64*(56-w)}")
        creads(0)
        for rho in range(8):
            a("s_waitcnt lgkmcnt(0)")
            if rho < 7:
                creads(rho + 1)
            o = 64 * (rho & 1)
            for t in ts:
                for pi in range(t + 1):
                    tau = t - pi
                    a(f"v_mfma_f32_16x16x32_bf16 v[{CA+4*t}:{CA+4*t+3}], v[{FA+o+4*pi}:{FA+o+4*pi+3}], v[{FB+o+4*tau}:{FB+o+4*tau+3}], v[{CA+4*t}:{CA+4*t+3}]")
        a("v_lshlrev_b32 v3, 16, v3")
        a("v_lshlrev_b32 v14, 5, v9")
        a("v_lshlrev_b32 v15, 3, v10")
        a("v_add_u32 v14, v14, v15")
        a(f"v_sub_u32 v15, {CV_U+504}, v14")
        a("v_add_u32 v15, s31, v15")
        a("v_add_u32 v14, s32, v14")
        for t in ts:
            a(f"ds_read_b64 v[{48+2*t}:{49+2*t}], v15 offset:{512*(7-t)}")
        a("s_waitcnt lgkmcnt(0)")
        for n_, t in enumerate(ts):
            y = CA + 4*t; kq = 48 + 2*t; T = 64 + 8*(n_ & 1)
            unpack_hi(a, T, kq+1); unpack_lo(a, T+1, kq+1); unpack_hi(a, T+2, kq); unpack_lo(a, T+3, kq)
            for i in range(4):
                a(f"v_mul_f32 v{T+i}, v{T+i}, v3")
            a(f"v_cvt_pk_bf16_f32 v{T+4}, v{T}, v{T+1}")
            a(f"v_cvt_pk_bf16_f32 v{T+5}, v{T+2}, v{T+3}")
            a(f"v_cvt_pk_bf16_f32 v{T+6}, v{y}, v{y+1}")
            a(f"v_cvt_pk_bf16_f32 v{T+7}, v{y+2}, v{y+3}")
            unpack_lo(a, T, T+4); unpack_hi(a, T+1, T+4); unpack_lo(a, T+2, T+5); unpack_hi(a, T+3, T+5)
            unpack_lo(a, y, T+6); unpack_hi(a, y+1, T+6); unpack_lo(a, y+2, T+7); unpack_hi(a, y+3, T+7)
            for i in range(4):
                a(f"v_add_f32 v{T+i}, v{T+i}, v{y+i}")
            a(f"v_cvt_pk_bf16_f32 v{y}, v{T}, v{T+1}")
            a(f"v_cvt_pk_bf16_f32 v{y+1}, v{T+2}, v{T+3}")
            a(f"buffer_store_dwordx2 v[{y}:{y+1}], v14, s[24:27], 0 offen offset:{512*t} sc1")
    conv_body(list(range(8)))
    a("s_mul_i32 s33, s30, 683")
    a("s_lshr_b32 s33, s33, 16")
    a("s_lshl_b32 s33, s33, 7")
    a(f"s_add_u32 s33, s33, {96*128}")
    a("s_cmp_ge_u32 s40, 4")
    a("s_cbranch_scc1 L_g2_pub")
    a("s_mov_b32 s32, s47")
    a("s_mov_b32 s31, s48")
    for i in range(24):
        a(f"v_mov_b32 v{48+i}, v{176+i}")
    a("v_mov_b32 v3, v200")
    for q in range(4):
        if q < 3:
            a(f"s_cmp_lg_u32 s40, {q}")
            a(f"s_cbranch_scc1 L_g2_q{q+1}")
        conv_body([7 - q, q])
        if q < 3:
            a("s_branch L_g2_pub2")
            a.label(f"L_g2_q{q+1}")
    a.label("L_g2_pub2")
    a(f"v_mov_b32 v14, {101*128}")
    a("v_mov_b32 v15, 1")
    a("s_waitcnt vmcnt(0)")
    a("s_mov_b64 exec, 1")
    a("buffer_atomic_add v15, v14, s[36:39], 0 offen")
    a("s_mov_b64 exec, -1")
    a.label("L_g2_pub")
    if 'stamp' in FL: a("s_memtime s[68:69]")
    a("v_mov_b32 v14, s33")
    a("v_mov_b32 v15, 4")
    a("s_waitcnt vmcnt(0)")
    if 'stamp' in FL: a("s_memtime s[70:71]")
    a("s_mov_b64 exec, 1")
    a("buffer_atomic_add v15, v14, s[36:39], 0 offen")
    a("s_mov_b64 exec, -1")
    if 'hpf2' in FL: pf(range(NPF, 6))
    if 'stamp' in FL:
        a("s_waitcnt vmcnt(0)")
        a("s_memtime s[72:73]")
        a("s_waitcnt lgkmcnt(0)")
        a("s_add_u32 s76, s8, 0x8200000")
        a("s_addc_u32 s77, s9, 0")
        a("s_mov_b32 s78, 0x100000")
        a("s_mov_b32 s79, 0x00020000")
        a("s_lshl_b32 s74, s2, 9")
        a("s_lshl_b32 s75, s40, 6")
        a("s_add_u32 s74, s74, s75")
        a("v_mov_b32 v5, s74")
        for i in range(8):
            ii = min(i, 4)
            a(f"v_mov_b32 v6, s{64+2*ii}")
            a(f"v_mov_b32 v7, s{65+2*ii}")
            a(f"buffer_store_dwordx2 v[6:7], v5, s[76:79], 0 offen offset:{8*i}")
            a("s_nop 1")
    a.label("L_g2_end")
    a("s_endpgm")
    return desc("gemm2_kernel", 248, 100)

def gen_final(a):
    a.kernel_begin("final_kernel")
    a("s_cmp_ge_u32 s2, 288")
    a("s_cbranch_scc1 L_fin_end")
    a("s_load_dwordx2 s[4:5], s[0:1], 0")
    a("s_load_dwordx2 s[6:7], s[0:1], 80")
    a("s_load_dwordx2 s[8:9], s[0:1], 96")
    a("s_and_b32 s32, s2, 31")
    a("s_lshr_b32 s33, s2, 5")
    a("s_waitcnt lgkmcnt(0)")
    a.srd(12, 4, SZ_SD)
    a.srd(16, 6, SZ_SD)
    a.srd(20, 8, SZ_SD, WS_XN)
    a.srd(24, 8, SZ_SD, WS_Y2T)
    a.srd(28, 8, SZ_P, WS_P)
    a("v_lshrrev_b32 v1, 2, v0")
    a("v_and_b32 v2, 3, v0")
    a("v_lshlrev_b32 v3, 12, v1")
    a("v_lshlrev_b32 v4, 5, v2")
    a("v_add_u32 v3, v3, v4")
    a("s_lshl_b32 s34, s33, 18")
    a("s_lshl_b32 s35, s32, 7")
    a("s_add_u32 s34, s34, s35")
    a("v_add_u32 v3, s34, v3")
    a("buffer_load_dwordx4 v[8:11], v3, s[24:27], 0 offen")
    a("buffer_load_dwordx4 v[12:15], v3, s[24:27], 0 offen offset:16")
    a("v_mul_u32_u24 v5, 136, v1")
    a("v_add_u32 v5, v5, v4")
    a("v_lshrrev_b32 v6, 3, v0")
    a("v_and_b32 v7, 7, v0")
    a("s_lshl_b32 s34, s32, 6")
    a("v_add_u32 v16, s34, v6")
    a("v_lshrrev_b32 v20, 4, v16")
    a("v_mul_u32_u24 v20, 18432, v20")
    a("v_and_b32 v21, 15, v16")
    a("v_lshlrev_b32 v21, 4, v21")
    a("v_add_u32 v20, v20, v21")
    a("v_and_b32 v21, 1, v7")
    a("v_lshlrev_b32 v21, 10, v21")
    a("v_add_u32 v20, v20, v21")
    a("v_lshrrev_b32 v21, 1, v7")
    a("v_lshlrev_b32 v21, 8, v21")
    a("v_add_u32 v20, v20, v21")
    a("s_lshl_b32 s35, s33, 11")
    a("v_add_u32 v22, s35, v20")
    a(f"v_add_u32 v23, {2*18432}, v22")
    a("v_mul_u32_u24 v16, 1152, v16")
    a("v_lshlrev_b32 v17, 4, v7")
    a("s_lshl_b32 s35, s33, 7")
    a("v_add_u32 v17, s35, v17")
    a("v_add_u32 v16, v16, v17")
    a(f"v_add_u32 v17, {32*1152}, v16")
    a("v_lshlrev_b32 v18, 1, v16")
    a("v_lshlrev_b32 v19, 1, v17")
    for it in range(2):
        b = 24 + 40*it
        a(f"buffer_load_dwordx4 v[{b}:{b+3}], v{16+it}, s[12:15], 0 offen")
        a(f"buffer_load_dwordx4 v[{b+4}:{b+7}], v{22+it}, s[20:23], 0 offen")
        for ks in range(4):
            a(f"s_mov_b32 s36, {ks*S*D*4}")
            a(f"buffer_load_dwordx4 v[{b+8+8*ks}:{b+11+8*ks}], v{18+it}, s[28:31], s36 offen")
            a(f"buffer_load_dwordx4 v[{b+12+8*ks}:{b+15+8*ks}], v{18+it}, s[28:31], s36 offen offset:16")
    a("s_waitcnt vmcnt(20)")
    for m in range(4):
        a(f"ds_write_b64 v5, v[{8+2*m}:{9+2*m}] offset:{8*m}")
    a("s_waitcnt lgkmcnt(0)")
    a("s_barrier")
    a("v_mul_u32_u24 v20, 1088, v7")
    a("v_lshlrev_b32 v21, 1, v6")
    a("v_add_u32 v20, v20, v21")
    for it in range(2):
        for c in range(8):
            a(f"ds_read_u16 v{104+8*it+c}, v20 offset:{136*c + 64*it}")
    a("s_waitcnt vmcnt(0) lgkmcnt(0)")
    for it in range(2):
        b = 24 + 40*it
        for w in range(4):
            T = 120
            y0, y1 = 104 + 8*it + 2*w, 104 + 8*it + 2*w + 1
            unpack_lo(a, y0, y0); unpack_lo(a, y1, y1)
            unpack_lo(a, T, b+4+w); unpack_hi(a, T+1, b+4+w)
            a(f"v_mul_f32 v{T}, v{T}, v{y0}")
            a(f"v_mul_f32 v{T+1}, v{T+1}, v{y1}")
            a(f"v_cvt_pk_bf16_f32 v{T+2}, v{T}, v{T+1}")
            unpack_lo(a, T, T+2); unpack_hi(a, T+1, T+2)
            unpack_lo(a, T+3, b+w); unpack_hi(a, T+4, b+w)
            a(f"v_add_f32 v{T}, v{T}, v{T+3}")
            a(f"v_add_f32 v{T+1}, v{T+1}, v{T+4}")
            a(f"v_cvt_pk_bf16_f32 v{T+2}, v{T}, v{T+1}")
            unpack_lo(a, T, T+2); unpack_hi(a, T+1, T+2)
            p = b + 8 + 2*w
            a(f"v_add_f32 v{T+3}, v{p}, v{p+8}")
            a(f"v_add_f32 v{T+4}, v{p+1}, v{p+9}")
            a(f"v_add_f32 v{T+5}, v{p+16}, v{p+24}")
            a(f"v_add_f32 v{T+6}, v{p+17}, v{p+25}")
            a(f"v_add_f32 v{T+3}, v{T+3}, v{T+5}")
            a(f"v_add_f32 v{T+4}, v{T+4}, v{T+6}")
            a(f"v_cvt_pk_bf16_f32 v{T+2}, v{T+3}, v{T+4}")
            unpack_lo(a, T+3, T+2); unpack_hi(a, T+4, T+2)
            a(f"v_add_f32 v{T}, v{T}, v{T+3}")
            a(f"v_add_f32 v{T+1}, v{T+1}, v{T+4}")
            a(f"v_cvt_pk_bf16_f32 v{b+w}, v{T}, v{T+1}")
        a(f"buffer_store_dwordx4 v[{b}:{b+3}], v{16+it}, s[16:19], 0 offen")
    a.label("L_fin_end")
    a("s_endpgm")
    return desc("final_kernel", 128)

def main(path):
    hdr = open("parallel_sum__ssm_conv_h3__glu_gated_swiglu__prompt.s.ref").read().split("\n")
    head = [l for l in hdr if l.startswith(";") and "@launch" not in l and "Override launch" not in l and "grid=ceil" not in l]
    launches = [
        "; @launch kernel=front_kernel grid=(480,1,1) block=(256,1,1) lds=8704",
        f"; @launch kernel=gemm1_kernel grid=(256,1,1) block=(512,1,1) lds={NST*STAGE}",
        f"; @launch kernel=gemm2_kernel grid=(256,1,1) block=(512,1,1) lds={G2_LDS}",
    ]
    a = Asm()
    descs = [gen_front(a), gen_gemm1(a), gen_gemm2(a)]
    out = "\n".join(head + launches) + "\n"
    out += '.amdgcn_target "amdgcn-amd-amdhsa--gfx950"\n.text\n'
    out += "\n".join(a.l) + "\n"
    out += '.section .rodata,"a"\n'
    for d in descs:
        out += ".p2align 6\n" + d
    open(path, "w").write(out)

if __name__ == "__main__":
    main(sys.argv[1] if len(sys.argv) > 1 else "parallel_sum__ssm_conv_h3__glu_gated_swiglu__prompt.s")
```

```python
import sys, os
FL = set(os.environ.get('FL','').split(','))

S, D, F = 2048, 576, 4608
WS_XN, WS_KVT, WS_Y2T, WS_H, WS_P = 0x0, 0x400000, 0x800000, 0x1000000, 0x3000000
WS_XP = 0x2400000
WS_FL = 0x3800000
SZ_SD = S * D * 2
SZ_W = D * F * 2
SZ_H = S * F * 2
SZ_P = 4 * S * D * 4

class Asm:
    def __init__(self):
        self.l = []
        self.gemm = False
        self.keepbar = False
        self.vm = []
        self.lg = []
    def __call__(self, s):
        if self.gemm:
            if 'nomfma' in FL and s.startswith('v_mfma'): return
            if 'nolds' in FL and s.startswith('ds_read_b64_tr'): return
            if 'nodma' in FL and s.endswith('offen lds'): return
            if 'noa' in FL and s.startswith('buffer_load_dwordx4 v['): return
            if 'nobar' in FL and s.startswith('s_barrier') and not self.keepbar: return
            if 'nostore' in FL and s.startswith('buffer_store'): return
        self.l.append("    " + s)
    def label(self, s):
        self.l.append(s + ":")
    def c(self, s):
        self.l.append("    ; " + s)
    def vmem(self, s, tag):
        self(s); self.vm.append(tag)
    def lds(self, s, tag):
        self(s); self.lg.append(tag)
    def wait_vm(self, tag):
        if tag not in self.vm: return
        idx = max(i for i, t in enumerate(self.vm) if t == tag)
        n = len(self.vm) - 1 - idx
        assert n <= 63
        self(f"s_waitcnt vmcnt({n})")
        self.vm = self.vm[idx + 1:]
    def wait_lg(self, tag):
        if tag not in self.lg: return
        idx = max(i for i, t in enumerate(self.lg) if t == tag)
        n = len(self.lg) - 1 - idx
        assert n <= 15, n
        self(f"s_waitcnt lgkmcnt({n})")
        self.lg = self.lg[idx + 1:]
    def capture(self, fn):
        l0, vm0 = self.l, self.vm
        self.l, self.vm = [], []
        marks = []
        ov = self.vmem
        def vm2(s_, tag):
            self(s_); marks.append((len(self.l), tag))
        self.vmem = vm2
        fn()
        del self.vmem
        lines = self.l
        self.l, self.vm = l0, vm0
        chunks = []; p = 0
        for k, (e, tag) in enumerate(marks):
            end = e
            if end < len(lines) and 'exec' in lines[end] and '-1' in lines[end]: end += 1
            chunks.append((lines[p:end], tag)); p = end
        if p < len(lines): chunks[-1] = (chunks[-1][0] + lines[p:], chunks[-1][1])
        return chunks
    def emit_chunk(self, ch):
        self.l += ch[0]; self.vm.append(ch[1])
    def wait_all(self):
        self("s_waitcnt vmcnt(0) lgkmcnt(0)")
        self.vm = []; self.lg = []
    def srd(self, d, base, size, off=0):
        if off:
            self(f"s_add_u32 s{d}, s{base}, {off}")
            self(f"s_addc_u32 s{d+1}, s{base+1}, 0")
        else:
            self(f"s_mov_b32 s{d}, s{base}")
            self(f"s_mov_b32 s{d+1}, s{base+1}")
        self(f"s_mov_b32 s{d+2}, {size}")
        self(f"s_mov_b32 s{d+3}, 0x00020000")
    def stamp(self, i):
        if 'stamp' not in FL: return
        self(f"s_memtime s[{50+2*i}:{51+2*i}]")
        if i == 0: self("s_memrealtime s[62:63]")
    def stamp_flush(self, n, wsb, base):
        if 'stamp' not in FL: return
        self("s_memrealtime s[64:65]")
        self("s_waitcnt lgkmcnt(0)")
        self(f"s_add_u32 s68, s{wsb}, {base}")
        self(f"s_addc_u32 s69, s{wsb+1}, 0")
        self("s_mov_b32 s70, 0x100000")
        self("s_mov_b32 s71, 0x00020000")
        self("s_lshl_b32 s66, s2, 9")
        self("s_lshl_b32 s67, s40, 6")
        self("s_add_u32 s66, s66, s67")
        self("v_mov_b32 v5, s66")
        for i in range(8):
            self(f"v_mov_b32 v6, s{50+2*i}")
            self(f"v_mov_b32 v7, s{51+2*i}")
            self(f"buffer_store_dwordx2 v[6:7], v5, s[68:71], 0 offen offset:{8*i}")
            self("s_nop 1")
    def kernel_begin(self, name):
        self.l.append(f".globl {name}")
        self.l.append(".p2align 8")
        self.l.append(f".type {name},@function")
        self.label(name)
        self.gemm = name.startswith('gemm'); self.keepbar = False
        self.vm = []; self.lg = []

def vr(b, n=1):
    return f"v{b}" if n == 1 else f"v[{b}:{b+n-1}]"

def desc(name, vgpr, sgpr=80):
    acc = (vgpr + 3) // 4 * 4
    return f""".amdhsa_kernel {name}
  .amdhsa_next_free_vgpr {vgpr}
  .amdhsa_next_free_sgpr {sgpr}
  .amdhsa_accum_offset {acc}
  .amdhsa_group_segment_fixed_size 0
  .amdhsa_kernarg_size 104
  .amdhsa_user_sgpr_count 2
  .amdhsa_user_sgpr_kernarg_segment_ptr 1
  .amdhsa_system_sgpr_workgroup_id_x 1
  .amdhsa_float_denorm_mode_32 3
.end_amdhsa_kernel
"""

def unpack_lo(a, d, s): a(f"v_lshlrev_b32 v{d}, 16, v{s}")
def unpack_hi(a, d, s): a(f"v_and_b32 v{d}, 0xffff0000, v{s}")

CV_O, CV_U, CV_SZ = 4224, 8448, 13056
def gen_front(a):
    a.kernel_begin("front_kernel")
    a("s_cmp_ge_u32 s2, 480")
    a("s_cbranch_scc1 L_fr_end")
    a("s_cmp_lt_u32 s2, 64")
    a("s_cbranch_scc1 L_fr_pf")
    a("s_cmp_ge_u32 s2, 192")
    a("s_cbranch_scc1 L_fr_kv")
    a("s_load_dwordx2 s[4:5], s[0:1], 0")
    a("s_load_dwordx2 s[14:15], s[0:1], 96")
    a("s_waitcnt lgkmcnt(0)")
    a.srd(16, 4, SZ_SD)
    a.srd(20, 14, SZ_SD, WS_XN)
    a("s_sub_u32 s3, s2, 64")
    a("s_lshl_b32 s3, s3, 4")
    a("v_lshrrev_b32 v1, 4, v0")
    a("v_add_u32 v1, s3, v1")
    a("v_and_b32 v2, 15, v0")
    a("v_mul_u32_u24 v3, 1152, v1")
    a("v_lshlrev_b32 v4, 3, v2")
    a("v_add_u32 v3, v3, v4")
    for i in range(9):
        a(f"buffer_load_dwordx2 v[{8+2*i}:{9+2*i}], v3, s[16:19], 0 offen offset:{128*i}")
    a("v_lshrrev_b32 v4, 4, v1")
    a("v_mul_u32_u24 v4, 18432, v4")
    a("v_and_b32 v5, 15, v1")
    a("v_lshlrev_b32 v5, 4, v5")
    a("v_add_u32 v4, v4, v5")
    a("v_lshrrev_b32 v5, 2, v2")
    a("v_lshlrev_b32 v5, 8, v5")
    a("v_add_u32 v4, v4, v5")
    a("v_lshrrev_b32 v5, 1, v2")
    a("v_and_b32 v5, 1, v5")
    a("v_lshlrev_b32 v5, 10, v5")
    a("v_add_u32 v4, v4, v5")
    a("v_and_b32 v5, 1, v2")
    a("v_lshlrev_b32 v5, 3, v5")
    a("v_add_u32 v1, v4, v5")
    a("s_waitcnt vmcnt(0)")
    X = 32
    for i in range(18):
        unpack_lo(a, X + 2*i, 8 + i)
        unpack_hi(a, X + 2*i + 1, 8 + i)
    for i in range(9):
        a(f"v_mov_b32 v{72+4*i}, v{8+2*i}")
        a(f"v_mov_b32 v{73+4*i}, v{9+2*i}")
    a(f"v_add_f32 v2, v{X}, v{X+1}")
    a(f"v_add_f32 v3, v{X+2}, v{X+3}")
    for i in range(4, 36, 2):
        a(f"v_add_f32 v2, v2, v{X+i}")
        a(f"v_add_f32 v3, v3, v{X+i+1}")
    a("v_add_f32 v2, v2, v3")
    def red16(r, t):
        a("s_nop 1")
        a(f"v_add_f32_dpp v{t}, v{r}, v{r} quad_perm:[1,0,3,2] row_mask:0xf bank_mask:0xf")
        a("s_nop 1")
        a(f"v_add_f32_dpp v{r}, v{t}, v{t} quad_perm:[2,3,0,1] row_mask:0xf bank_mask:0xf")
        a("s_nop 1")
        a(f"v_add_f32_dpp v{t}, v{r}, v{r} row_half_mirror row_mask:0xf bank_mask:0xf")
        a("s_nop 1")
        a(f"v_add_f32_dpp v{r}, v{t}, v{t} row_mirror row_mask:0xf bank_mask:0xf")
    red16(2, 3)
    a("s_mov_b32 s24, 0x3ae38e39")
    a("v_mul_f32 v2, s24, v2")
    a("v_mov_b32 v4, 0")
    a("v_mov_b32 v5, 0")
    for i in range(0, 36, 2):
        a(f"v_sub_f32 v6, v{X+i}, v2")
        a(f"v_sub_f32 v7, v{X+i+1}, v2")
        a("v_fmac_f32 v4, v6, v6")
        a("v_fmac_f32 v5, v7, v7")
    a("v_add_f32 v4, v4, v5")
    red16(4, 5)
    a("v_mul_f32 v4, s24, v4")
    a("v_cvt_pk_bf16_f32 v5, v2, v4")
    unpack_lo(a, 2, 5)
    unpack_hi(a, 4, 5)
    a("v_add_f32 v4, 0x3727c5ac, v4")
    a("v_cvt_pk_bf16_f32 v4, v4, v4")
    unpack_hi(a, 4, 4)
    a("v_sqrt_f32 v4, v4")
    a("s_nop 0")
    a("v_cvt_pk_bf16_f32 v4, v4, v4")
    unpack_hi(a, 4, 4)
    a("v_rcp_f32 v5, v4")
    a("s_nop 0")
    for i in range(18):
        x0, x1 = X + 2*i, X + 2*i + 1
        a(f"v_sub_f32 v{x0}, v{x0}, v2")
        a(f"v_sub_f32 v{x1}, v{x1}, v2")
        a(f"v_cvt_pk_bf16_f32 v6, v{x0}, v{x1}")
        unpack_lo(a, x0, 6)
        unpack_hi(a, x1, 6)
        a(f"v_mul_f32 v6, v{x0}, v5")
        a(f"v_mul_f32 v7, v{x1}, v5")
        a(f"v_fma_f32 v{x0}, -v6, v4, v{x0}")
        a(f"v_fma_f32 v{x1}, -v7, v4, v{x1}")
        a(f"v_fma_f32 v6, v{x0}, v5, v6")
        a(f"v_fma_f32 v7, v{x1}, v5, v7")
        a(f"v_cvt_pk_bf16_f32 v{8+i}, v6, v7")
    for i in range(9):
        a(f"s_mov_b32 s25, {2048*i}")
        a(f"buffer_store_dwordx2 v[{8+2*i}:{9+2*i}], v1, s[20:23], s25 offen")
    a.srd(28, 14, 2*SZ_SD, WS_XP)
    a("v_lshrrev_b32 v2, 4, v0")
    a("v_add_u32 v2, s3, v2")
    a("v_lshrrev_b32 v3, 4, v2")
    a("v_mul_u32_u24 v3, 36864, v3")
    a("v_and_b32 v2, 15, v2")
    a("v_lshlrev_b32 v2, 4, v2")
    a("v_add_u32 v3, v3, v2")
    a("v_bfe_u32 v2, v0, 2, 2")
    a("v_lshlrev_b32 v2, 10, v2")
    a("v_add_u32 v3, v3, v2")
    a("v_and_b32 v2, 3, v0")
    a("v_lshlrev_b32 v2, 8, v2")
    a("v_add_u32 v3, v3, v2")
    for i in range(9):
        a(f"v_mov_b32 v{74+4*i}, v{8+2*i}")
        a(f"v_mov_b32 v{75+4*i}, v{9+2*i}")
        a(f"s_mov_b32 s25, {4096*i}")
        a(f"buffer_store_dwordx4 v[{72+4*i}:{75+4*i}], v3, s[28:31], s25 offen")
    a("s_endpgm")
    a.label("L_fr_pf")
    a("s_load_dwordx4 s[4:7], s[0:1], 56")
    a("s_load_dwordx2 s[8:9], s[0:1], 32")
    a("s_load_dwordx2 s[10:11], s[0:1], 96")
    a("v_and_b32 v1, 63, v0")
    a("v_lshrrev_b32 v2, 6, v0")
    a("s_nop 0")
    a("v_readfirstlane_b32 s40, v2")
    a("s_and_b32 s30, s2, 7")
    a("s_mul_i32 s30, s30, 1152")
    a("s_mov_b32 s31, s2")
    a("s_lshr_b32 s31, s31, 3")
    a("s_lshl_b32 s31, s31, 2")
    a("s_add_u32 s31, s31, s40")
    a(f"s_mul_i32 s31, s31, {7*9216}")
    a("v_mul_u32_u24 v2, 57, v1")
    a("v_lshrrev_b32 v2, 9, v2")
    a("v_mul_u32_u24 v3, 9, v2")
    a("v_sub_u32 v3, v1, v3")
    a("v_mul_u32_u24 v2, 9216, v2")
    a("v_lshlrev_b32 v3, 7, v3")
    a("v_add_u32 v2, v2, v3")
    a("s_waitcnt lgkmcnt(0)")
    a.srd(24, 10, 128*128, WS_FL)
    a("s_cmp_lg_u32 s2, 0")
    a("s_cbranch_scc1 L_fr_pf1")
    a("v_lshlrev_b32 v4, 7, v0")
    a("v_mov_b32 v5, 0")
    a("buffer_store_dword v5, v4, s[24:27], 0 offen")
    a.label("L_fr_pf1")
    for m in range(2):
        a(f"s_add_u32 s{12+4*m}, s{4+2*m}, s30")
        a(f"s_addc_u32 s{13+4*m}, s{5+2*m}, 0")
        a(f"s_sub_u32 s{14+4*m}, {SZ_W}, s30")
        a(f"s_mov_b32 s{15+4*m}, 0x00020000")
    for r in range(0 if 'nofpf' in FL else (3 if 'fpf3' in FL else (2 if 'fpf2' in FL else 1))):
        a(f"buffer_load_dword v{8+2*r}, v2, s[12:15], s31 offen")
        a(f"buffer_load_dword v{9+2*r}, v2, s[16:19], s31 offen")
        a(f"s_add_u32 s31, s31, {32*7*9216}")
    a("s_endpgm")
    a.label("L_fr_kv")
    a("s_load_dwordx4 s[8:11], s[0:1], 8")
    a("s_load_dwordx2 s[12:13], s[0:1], 24")
    a("s_load_dwordx2 s[14:15], s[0:1], 96")
    a("s_waitcnt lgkmcnt(0)")
    a.srd(16, 8, SZ_SD)
    a.srd(20, 10, SZ_SD)
    a.srd(24, 12, D * 8)
    a.srd(28, 14, SZ_SD, WS_KVT)
    a("s_sub_u32 s3, s2, 192")
    a("s_and_b32 s32, s3, 31")
    a("s_lshr_b32 s33, s3, 5")
    a("v_lshrrev_b32 v1, 3, v0")
    a("v_and_b32 v2, 7, v0")
    a("s_lshl_b32 s34, s32, 6")
    a("v_lshlrev_b32 v3, 1, v1")
    a("v_add_u32 v3, s34, v3")
    a("s_lshl_b32 s35, s33, 7")
    a("v_lshlrev_b32 v4, 4, v2")
    a("v_add_u32 v4, s35, v4")
    a("v_mul_u32_u24 v5, 1152, v3")
    a("v_add_u32 v5, v5, v4")
    for r in range(5):
        a(f"v_add_u32 v{6+r}, {(r-3)*1152 & 0xffffffff}, v5")
    for r in range(5):
        a(f"buffer_load_dwordx4 v[{12+4*r}:{15+4*r}], v{6+r}, s[16:19], 0 offen")
    a("buffer_load_dwordx4 v[32:35], v5, s[20:23], 0 offen")
    a("buffer_load_dwordx4 v[36:39], v5, s[20:23], 0 offen offset:1152")
    a("v_lshlrev_b32 v11, 2, v4")
    for i in range(4):
        a(f"buffer_load_dwordx4 v[{40+4*i}:{43+4*i}], v11, s[24:27], 0 offen offset:{16*i}")
    a("v_mul_u32_u24 v56, 1088, v2")
    a("v_sub_u32 v57, 31, v1")
    a("v_lshlrev_b32 v57, 2, v57")
    a("v_add_u32 v56, v56, v57")
    a("s_waitcnt vmcnt(0)")
    for c in range(8):
        w, hi = c >> 1, c & 1
        up = unpack_hi if hi else unpack_lo
        for r in range(5):
            up(a, 60 + r, 12 + 4*r + w)
        up(a, 65, 32 + w); up(a, 66, 36 + w)
        unpack_lo(a, 67, 40 + 2*c); unpack_hi(a, 68, 40 + 2*c)
        unpack_lo(a, 69, 41 + 2*c); unpack_hi(a, 70, 41 + 2*c)
        for step, j in enumerate([3, 2, 1, 0]):
            kk0 = 60 + (3 - j); kk1 = kk0 + 1
            a(f"v_mul_f32 v71, v{kk0}, v{67+j}")
            a(f"v_mul_f32 v72, v{kk1}, v{67+j}")
            a("v_cvt_pk_bf16_f32 v73, v71, v72")
            if step == 0:
                unpack_lo(a, 74, 73); unpack_hi(a, 75, 73)
            else:
                unpack_lo(a, 71, 73); unpack_hi(a, 72, 73)
                a("v_add_f32 v74, v74, v71")
                a("v_add_f32 v75, v75, v72")
                a("v_cvt_pk_bf16_f32 v73, v74, v75")
                unpack_lo(a, 74, 73); unpack_hi(a, 75, 73)
        a("v_mul_f32 v74, v74, v65")
        a("v_mul_f32 v75, v75, v66")
        a("v_cvt_pk_bf16_f32 v73, v75, v74")
        a(f"ds_write_b32 v56, v73 offset:{136*c}")
    a("s_waitcnt lgkmcnt(0)")
    a("s_barrier")
    a("v_lshrrev_b32 v1, 2, v0")
    a("v_and_b32 v2, 3, v0")
    a("v_mul_u32_u24 v3, 136, v1")
    a("v_lshlrev_b32 v4, 5, v2")
    a("v_add_u32 v3, v3, v4")
    for m in range(4):
        a(f"ds_read_b64 v[{8+2*m}:{9+2*m}], v3 offset:{8*m}")
    a("s_lshl_b32 s36, s33, 18")
    a("s_lshl_b32 s37, s32, 7")
    a("s_sub_u32 s36, s36, s37")
    a("s_add_u32 s36, s36, 3968")
    a("v_lshlrev_b32 v5, 12, v1")
    a("v_add_u32 v5, v5, v4")
    a("v_add_u32 v5, s36, v5")
    a("s_waitcnt lgkmcnt(0)")
    a("buffer_store_dwordx4 v[8:11], v5, s[28:31], 0 offen")
    a("buffer_store_dwordx4 v[12:15], v5, s[28:31], 0 offen offset:16")
    a.label("L_fr_end")
    a("s_endpgm")
    return desc("front_kernel", 128)

STAGE = 36864
NST = 4
PD = 5

def gemm_setup_dma(a, row_bytes, vD, sW, sH, perm):
    a("s_and_b32 s41, s40, 3")
    a("s_lshr_b32 s42, s40, 2")
    a("s_mul_i32 s43, s42, 18432")
    a("s_lshl_b32 s44, s41, 12")
    a(f"s_add_u32 s{sW}, s43, s44")
    a("s_lshl_b32 s44, s41, 9")
    a("s_add_u32 s44, s44, 16384")
    a(f"s_add_u32 s{sH}, s43, s44")
    a("s_movk_i32 s45, 3641")
    for i in range(5):
        if i < 4:
            a("s_lshl_b32 s44, s41, 8")
            a(f"s_add_u32 s44, s44, {64*i}")
        else:
            a("s_lshl_b32 s44, s41, 5")
            a("s_add_u32 s44, s44, 1024")
        a("v_add_u32 v17, s44, v1")
        a("v_mul_lo_u32 v18, v17, s45")
        a("v_lshrrev_b32 v18, 16, v18")
        a("v_mul_u32_u24 v19, 18, v18")
        a("v_sub_u32 v19, v17, v19")
        if perm:
            a("v_lshrrev_b32 v17, 4, v18")
            a("v_and_b32 v17, 1, v17")
            a("v_lshlrev_b32 v17, 2, v17")
            a("v_xor_b32 v18, v18, v17")
        a(f"v_mul_u32_u24 v18, {row_bytes}, v18")
        a("v_lshlrev_b32 v19, 4, v19")
        a(f"v_add_u32 v{vD+i}, v18, v19")

def gemm_dma(a, j, vD, sW, sH, srdW, kstep_bytes):
    st = j % NST
    a(f"s_mov_b32 s46, {j*kstep_bytes}")
    for i in range(4):
        a(f"s_add_u32 m0, s{sW}, {st*STAGE + 1024*i}")
        a("s_nop 0")
        a.vmem(f"buffer_load_dwordx4 v{vD+i}, s[{srdW}:{srdW+3}], s46 offen lds", f"D{j}")
    a(f"s_add_u32 m0, s{sH}, {st*STAGE}")
    a("s_mov_b32 exec_hi, 0")
    a.vmem(f"buffer_load_dwordx4 v{vD+4}, s[{srdW}:{srdW+3}], s46 offen lds", f"D{j}")
    a("s_mov_b32 exec_hi, -1")

def gemm_loop(a, units, NU, NAB, w_reads, mfmas, a_loads, dma, early, late=None, NJ=9, NS=4, PD=PD, hooks=None):
    a.wait_vm("A0")
    a("s_barrier")
    a.stamp(2)
    for U in range(PD):
        w_reads(U)
    bg = []
    spread = 'nospread' not in FL
    every = 2 if NU > 20 else 1
    for U, un in enumerate(units):
        j = un[0]; u = U % NU
        if bg and U % every == 0: a.emit_chunk(bg.pop(0))
        if U == NU*4 and not ('st2' in FL and NJ != 9): a.stamp(3)
        if u == 0 and j > 0:
            a.wait_vm(f"A{j}")
            if j + NAB - 1 <= NJ - 1:
                if spread: bg += a.capture(lambda: a_loads(j + NAB - 1))
                else: a_loads(j + NAB - 1)
        if j == 0 and u in early:
            early[u]()
        if j == NJ - 3 and u == 16 and late: late()
        if hooks and (j, u) in hooks: hooks[(j, u)]()
        if u == NU - PD and j < NJ - 1:
            a.wait_vm(f"D{j+1}")
            a("s_barrier")
            if j + NS - 1 <= NJ - 1:
                if spread: bg += a.capture(lambda: dma(j + NS - 1))
                else: dma(j + NS - 1)
        if U + PD < len(units):
            w_reads(U + PD)
        a.wait_lg(f"W{U}")
        mfmas(U)

CVB = 3 * 36864
G1_LDS = CVB + 4 * CV_SZ
def conv_head_loads(a):
    a("s_lshr_b32 s80, s40, 1")
    a("s_lshl_b32 s81, s80, 8")
    a("s_add_u32 s81, s81, s2")
    a("s_cmp_lt_u32 s81, 576")
    a("s_cselect_b32 s82, 1, 0")
    a("s_min_u32 s81, s81, 575")
    a(f"s_mul_i32 s83, s80, {CV_SZ}")
    a(f"s_add_u32 s83, s83, {CVB}")
    a("s_lshl_b32 s84, s81, 12")
    a.srd(88, 72, SZ_SD)
    a.srd(92, 74, D*2)
    a.srd(96, 8, SZ_SD, WS_KVT)
    a("v_lshlrev_b32 v212, 4, v1")
    for i in range(4):
        a.vmem(f"buffer_load_dwordx4 v[{84+8*i}:{87+8*i}], v212, s[88:91], s84 offen offset:{1024*i}", "CK")
        a.vmem(f"buffer_load_dword v{88+8*i}, v212, s[88:91], s84 offen offset:{1024*i+16}", "CK")
    for i in range(4):
        a(f"s_add_u32 m0, s83, {CV_U + 1024*i}")
        a(f"s_add_u32 s85, s84, {1024*i}")
        a.vmem("buffer_load_dwordx4 v212, s[96:99], s85 offen lds", "CU")
    a("s_lshl_b32 s85, s81, 1")
    a("v_mov_b32 v213, s85")
    a.vmem("buffer_load_ushort v213, v213, s[92:95], 0 offen", "CU")

def conv_head_compute(a):
    Z = 216
    for i in range(4): a(f"v_mov_b32 v{Z+i}, 0")
    a("v_add_u32 v214, s83, v212")
    a("s_mov_b32 exec_hi, 0")
    a(f"ds_write_b128 v214, v[{Z}:{Z+3}] offset:{CV_U+4096}")
    a("s_mov_b32 exec_lo, 3")
    a(f"ds_write_b128 v214, v[{Z}:{Z+3}]")
    a("s_mov_b32 exec_lo, 1")
    a(f"ds_write_b128 v214, v[{Z}:{Z+3}] offset:{CV_O}")
    a("s_mov_b64 exec, -1")
    a("v_and_b32 v220, 15, v1")
    a("v_lshrrev_b32 v221, 4, v1")
    a("v_lshlrev_b32 v222, 1, v220")
    a("v_lshlrev_b32 v223, 4, v221")
    a("v_add_u32 v222, v222, v223")
    a("v_and_b32 v224, 1, v220")
    a("v_cmp_eq_u32 vcc, 1, v224")
    a(f"v_mov_b32 v224, {CV_O}")
    a("s_nop 1")
    a("v_cndmask_b32 v224, v224, 2, vcc")
    a("v_add3_u32 v222, v222, v224, s83")
    a("v_lshlrev_b32 v225, 5, v220")
    a("v_sub_u32 v225, v223, v225")
    a(f"v_add_u32 v225, {CV_U+480}, v225")
    a("v_add_u32 v225, s83, v225")
    KA = [226, 227, 228, 229, 230]
    for i in range(5):
        a(f"v_add_u32 v{KA[i]}, {960*i}, v222")
    ACC = 52; FA = 84; FB = 116
    for i in range(16):
        a(f"v_mov_b32 v{ACC+i}, 0")
    a.wait_vm("CK")
    for i in range(4):
        b = 84 + 8*i
        a(f"ds_write_b128 v214, v[{b}:{b+3}] offset:{32+1024*i}")
        for t in range(4):
            a(f"v_alignbit_b32 v{232+4*(i&1)+t}, v{b+t+1}, v{b+t}, 16")
        a(f"ds_write_b128 v214, v[{232+4*(i&1)}:{235+4*(i&1)}] offset:{CV_O+32+1024*i}")
        if i == 0:
            a(f"v_lshlrev_b32 v{Z+3}, 16, v84")
            a("s_mov_b64 exec, 1")
            a(f"ds_write_b128 v214, v[{Z}:{Z+3}] offset:{CV_O+16}")
            a("s_mov_b64 exec, -1")
    a.wait_vm("CU")
    a("s_waitcnt lgkmcnt(0)")
    a("s_cmp_eq_u32 s82, 0")
    a("s_cbranch_scc1 L_cvh_epi")
    a("s_and_b32 s85, s40, 1")
    a("s_cmp_eq_u32 s85, 1")
    a("s_cbranch_scc1 L_cvh_p1")
    TS = [[7, 4, 1, 0], [6, 5, 3, 2]]
    for part in range(2):
        if part == 1: a.label("L_cvh_p1")
        ts = TS[part]; mx = max(ts)
        def reads(rho):
            o = 64 * (rho & 1)
            for pi in range(mx + 1):
                p = 8*pi + rho
                r = FA+o+4*pi
                a(f"ds_read2_b32 v[{r}:{r+1}], v{KA[p//15]} offset0:{16*(p%15)} offset1:{16*(p%15)+1}")
                a(f"ds_read2_b32 v[{r+2}:{r+3}], v{KA[p//15]} offset0:{16*(p%15)+2} offset1:{16*(p%15)+3}")
                w = 8*pi - rho
                a(f"ds_read_b128 v[{FB+o+4*pi}:{FB+o+4*pi+3}], v225 offset:{64*(56-w)}")
        reads(0)
        for rho in range(8):
            a("s_waitcnt lgkmcnt(0)")
            if rho < 7:
                reads(rho + 1)
            o = 64 * (rho & 1)
            work = [[(ti, t, pi) for pi in range(t + 1)] for ti, t in enumerate(ts)]
            while any(work):
                for wl in work:
                    if wl:
                        ti, t, pi = wl.pop(0)
                        tau = t - pi
                        a(f"v_mfma_f32_16x16x32_bf16 v[{ACC+4*ti}:{ACC+4*ti+3}], v[{FA+o+4*pi}:{FA+o+4*pi+3}], v[{FB+o+4*tau}:{FB+o+4*tau+3}], v[{ACC+4*ti}:{ACC+4*ti+3}]")
        for ti, t in enumerate(ts):
            a(f"s_mov_b32 s{76+ti}, {512*t}")
        if part == 0: a("s_branch L_cvh_epi")
    a.label("L_cvh_epi")
    a.srd(88, 8, SZ_SD, WS_Y2T)
    a("s_cmp_eq_u32 s82, 0")
    a("s_cselect_b32 s84, 0x7f000000, s84")
    for ti in range(4):
        a(f"s_cselect_b32 s{76+ti}, 0, s{76+ti}")
    a("v_lshlrev_b32 v213, 16, v213")
    a("v_lshlrev_b32 v224, 5, v220")
    a("v_lshlrev_b32 v226, 3, v221")
    a("v_add_u32 v224, v224, v226")
    a(f"v_sub_u32 v226, {CV_U+4088}, v224")
    a("v_add_u32 v226, s83, v226")
    a("v_add_u32 v224, s84, v224")
    for ti in range(4):
        a(f"v_subrev_u32 v227, s{76+ti}, v226")
        a(f"ds_read_b64 v[{84+2*ti}:{85+2*ti}], v227")
    a("s_waitcnt lgkmcnt(0)")
    for ti in range(4):
        y = ACC + 4*ti; kq = 84 + 2*ti; T = 100 + 8*(ti & 1)
        unpack_hi(a, T, kq+1); unpack_lo(a, T+1, kq+1); unpack_hi(a, T+2, kq); unpack_lo(a, T+3, kq)
        for i in range(4):
            a(f"v_mul_f32 v{T+i}, v{T+i}, v213")
        a(f"v_cvt_pk_bf16_f32 v{T+4}, v{T}, v{T+1}")
        a(f"v_cvt_pk_bf16_f32 v{T+5}, v{T+2}, v{T+3}")
        a(f"v_cvt_pk_bf16_f32 v{T+6}, v{y}, v{y+1}")
        a(f"v_cvt_pk_bf16_f32 v{T+7}, v{y+2}, v{y+3}")
        unpack_lo(a, T, T+4); unpack_hi(a, T+1, T+4); unpack_lo(a, T+2, T+5); unpack_hi(a, T+3, T+5)
        unpack_lo(a, y, T+6); unpack_hi(a, y+1, T+6); unpack_lo(a, y+2, T+7); unpack_hi(a, y+3, T+7)
        for i in range(4):
            a(f"v_add_f32 v{T+i}, v{T+i}, v{y+i}")
        a(f"v_cvt_pk_bf16_f32 v{240+2*ti}, v{T}, v{T+1}")
        a(f"v_cvt_pk_bf16_f32 v{241+2*ti}, v{T+2}, v{T+3}")
        a.vmem(f"buffer_store_dwordx2 v[{240+2*ti}:{241+2*ti}], v224, s[88:91], s{76+ti} offen", "CS")

def gen_gemm1(a):
    a.kernel_begin("gemm1_kernel")
    a("s_cmp_ge_u32 s2, 256")
    a("s_cbranch_scc1 L_g1_end")
    a.stamp(0)
    a("s_load_dwordx4 s[4:7], s[0:1], 56")
    a("s_load_dwordx2 s[8:9], s[0:1], 96")
    a("s_load_dwordx4 s[72:75], s[0:1], 32")
    a("s_load_dwordx2 s[86:87], s[0:1], 72")
    a("v_and_b32 v1, 63, v0")
    a("v_lshrrev_b32 v2, 6, v0")
    a("s_nop 0")
    a("v_readfirstlane_b32 s40, v2")
    a("s_and_b32 s30, s2, 7")
    a("s_lshr_b32 s31, s2, 3")
    a("s_lshl_b32 s30, s30, 2")
    a("s_and_b32 s32, s31, 3")
    a("s_add_u32 s30, s30, s32")
    a("s_lshr_b32 s31, s31, 2")
    a("s_mul_i32 s33, s30, 288")
    vD, vA, vB = 2, 7, 9
    AB, WB, ACC = 20, 84, 108
    NAB = 4
    gemm_setup_dma(a, 9216, vD, 34, 35, True)
    a("s_lshl_b32 s36, s31, 4")
    a("s_lshl_b32 s37, s40, 1")
    a("s_add_u32 s36, s36, s37")
    a("s_mul_i32 s37, s36, 18432")
    a("v_lshlrev_b32 v17, 4, v1")
    a(f"v_add_u32 v{vA}, s37, v17")
    a(f"v_add_u32 v{vA+1}, 18432, v{vA}")
    a("s_waitcnt lgkmcnt(0)")
    a("s_cmp_ge_u32 s40, 4")
    a("s_cselect_b32 s10, s6, s4")
    a("s_cselect_b32 s11, s7, s5")
    a("s_add_u32 s12, s10, s33")
    a("s_addc_u32 s13, s11, 0")
    a(f"s_sub_u32 s14, {SZ_W}, s33")
    a("s_mov_b32 s15, 0x00020000")
    a.srd(16, 8, SZ_SD, WS_XN)
    a.srd(20, 8, SZ_H, WS_H)
    def a_loads(j):
        b = AB + 16 * (j % NAB)
        a(f"s_mov_b32 s47, {2048*j}")
        for t in range(2):
            for kh in range(2):
                r = b + 8*t + 4*kh
                a.vmem(f"buffer_load_dwordx4 v[{r}:{r+3}], v{vA+t}, s[16:19], s47 offen offset:{1024*kh}", f"A{j}")
    KB = 64 * 9216
    dma = lambda j: gemm_dma(a, j, vD, 34, 35, 12, KB)
    if 'cvhead' in FL: conv_head_loads(a)
    dma(0); a_loads(0); dma(1); a_loads(1)
    def g1_pf():
        a("s_and_b32 s41, s2, 7")
        a("s_mul_i32 s41, s41, 1152")
        a("s_add_u32 s24, s10, s41")
        a("s_addc_u32 s25, s11, 0")
        a(f"s_sub_u32 s26, {SZ_W}, s41")
        a("s_mov_b32 s27, 0x00020000")
        a("s_lshr_b32 s41, s2, 3")
        a("v_mul_u32_u24 v17, 3641, v1")
        a("v_lshrrev_b32 v17, 16, v17")
        a("v_mul_u32_u24 v18, 18, v17")
        a("v_sub_u32 v18, v1, v18")
        a("v_lshlrev_b32 v17, 5, v17")
        a("v_add_u32 v17, s41, v17")
        a("v_mul_u32_u24 v17, 9216, v17")
        a("v_lshlrev_b32 v18, 6, v18")
        a("v_add_u32 v17, v17, v18")
        a("s_and_b32 s42, s40, 3")
        a(f"s_mul_i32 s43, s42, {3*32*9216}")
        a(f"s_add_u32 s43, s43, {4*32*9216}")
        a.vmem("buffer_load_dword v0, v17, s[24:27], s43 offen", "PF")
        a("s_and_b32 s42, s41, 3")
        a("s_lshl_b32 s42, s42, 2")
        a("s_lshl_b32 s44, s31, 4")
        a("s_add_u32 s42, s42, s44")
        a("s_and_b32 s44, s40, 1")
        a("s_lshl_b32 s44, s44, 1")
        a("s_add_u32 s42, s42, s44")
        a("s_mul_i32 s42, s42, 18432")
        a("s_lshr_b32 s44, s40, 1")
        a("s_lshl_b32 s44, s44, 11")
        a("s_add_u32 s42, s42, s44")
        a("s_add_u32 s42, s42, 4096")
        a("v_lshrrev_b32 v18, 5, v1")
        a("v_mul_u32_u24 v18, 18432, v18")
        a("v_and_b32 v19, 31, v1")
        a("v_lshlrev_b32 v19, 6, v19")
        a("v_add_u32 v18, v18, v19")
        a.vmem("buffer_load_dword v0, v18, s[16:19], s42 offen", "PF")
        a(f"s_add_u32 s43, s43, {12*32*9216}")
        a.vmem("buffer_load_dword v0, v17, s[24:27], s43 offen", "PF")
        a("s_add_u32 s42, s42, 8192")
        a("s_cmp_ge_u32 s40, 6")
        a("s_cselect_b32 s42, 0x7f000000, s42")
        a.vmem("buffer_load_dword v0, v18, s[16:19], s42 offen", "PF")
    if 'cvhead' in FL: conv_head_compute(a)
    a("v_lshrrev_b32 v17, 4, v1")
    a("v_lshrrev_b32 v18, 2, v1")
    a("v_and_b32 v18, 3, v18")
    a("v_and_b32 v19, 1, v17")
    a("v_lshlrev_b32 v17, 4, v17")
    a("v_add_u32 v17, v17, v18")
    a("v_lshlrev_b32 v19, 2, v19")
    a("v_add_u32 v18, v17, v19")
    a("v_xor_b32 v19, 4, v19")
    a("v_add_u32 v19, v17, v19")
    a("v_mul_u32_u24 v18, 288, v18")
    a("v_mul_u32_u24 v19, 288, v19")
    a("v_and_b32 v17, 3, v1")
    a("v_lshlrev_b32 v17, 3, v17")
    a(f"v_add_u32 v{vB}, v18, v17")
    a(f"v_add_u32 v{vB+1}, v19, v17")
    for st in range(1, NST):
        a(f"v_add_u32 v{vB+2*st}, {st*STAGE}, v{vB}")
        a(f"v_add_u32 v{vB+2*st+1}, {st*STAGE}, v{vB+1}")
    for i in range(144):
        a(f"v_mov_b32 v{ACC+i}, 0")
    a.stamp(1)
    NU = 36
    units = [(j, kh, mat, c) for j in range(9) for kh in range(2) for mat in range(2) for c in range(9)]
    def w_reads(U):
        j, kh, mat, c = units[U]
        st = j % NST
        r = WB + 4 * (U % (PD + 1))
        off = mat*18432 + 8*kh*288 + c*32
        a.lds(f"ds_read_b64_tr_b16 v[{r}:{r+1}], v{vB+2*st} offset:{off}", f"W{U}")
        a.lds(f"ds_read_b64_tr_b16 v[{r+2}:{r+3}], v{vB+2*st+1} offset:{off}", f"W{U}")
    def mfmas(U):
        j, kh, mat, c = units[U]
        r = WB + 4 * (U % (PD + 1))
        for t in range(2):
            ac = ACC + 4 * (t*18 + mat*9 + c)
            ar = AB + 16*(j % NAB) + 8*t + 4*kh
            a(f"v_mfma_f32_16x16x32_bf16 v[{ac}:{ac+3}], v[{r}:{r+3}], v[{ar}:{ar+3}], v[{ac}:{ac+3}]")
    def w2_pf():
        a("s_bfe_u32 s41, s2, 0x10002")
        if 'swap' in FL: a("s_xor_b32 s41, s41, 1")
        a("s_cmp_eq_u32 s41, 0")
        a(f"s_cselect_b32 s41, {128*int(os.environ.get('NJP','15'))*1152}, 0")
        a(f"s_mov_b32 s26, {128*int(os.environ.get('NJP','15'))*1152}")
        a(f"s_cselect_b32 s26, {128*(36-int(os.environ.get('NJP','15')))*1152}, s26")
        a("s_add_u32 s24, s86, s41")
        a("s_addc_u32 s25, s87, 0")
        a("s_mov_b32 s27, 0x00020000")
        a("s_and_b32 s41, s2, 0xf8")
        a("s_add_u32 s41, s41, s40")
        a("s_lshl_b32 s41, s41, 13")
        a(f"s_add_u32 s42, s41, {256*8192}")
        a("v_lshlrev_b32 v17, 7, v1")
        a.vmem("buffer_load_dword v0, v17, s[24:27], s41 offen", "PF2")
        a.vmem("buffer_load_dword v0, v17, s[24:27], s42 offen", "PF2")
        a.srd(76, 72, SZ_SD)
        a("s_lshl_b32 s41, s2, 3")
        a("s_add_u32 s41, s41, s40")
        a("s_mul_i32 s41, s41, 1152")
        a("s_mov_b32 exec_lo, 0x1ff")
        a("s_mov_b32 exec_hi, 0")
        a.vmem("buffer_load_dword v0, v17, s[76:79], s41 offen", "PF2")
        a("s_mov_b64 exec, -1")
    gemm_loop(a, units, NU, NAB, w_reads, mfmas, a_loads, dma,
              {2: lambda: dma(2), 8: lambda: a_loads(2), 14: (g1_pf if 'g1pf' in FL else (lambda: None)), 22: lambda: a_loads(3)}, late=(None if 'nopf2' in FL else w2_pf))
    a.stamp(4)
    a("s_mul_i32 s37, s36, 147456")
    a("s_mul_i32 s38, s30, 9")
    a("s_and_b32 s39, s38, 1")
    a("s_lshr_b32 s38, s38, 1")
    a("s_lshl_b32 s38, s38, 10")
    a("s_add_u32 s37, s37, s38")
    a("v_lshlrev_b32 v17, 4, v1")
    a("v_add_u32 v2, s37, v17")
    a("v_add_u32 v3, 147456, v2")
    a("s_mov_b32 s46, 0xbfb8aa3b")
    a("s_mov_b32 s47, 0xbfb8aa3b")
    a("s_mov_b32 s48, 1.0")
    a("s_mov_b32 s49, 1.0")
    a("s_movk_i32 s45, 4096")
    a("s_cmp_eq_u32 s39, 0")
    a("s_cbranch_scc0 L_g1_epi_odd")
    def group(t, c, T, O):
        g = ACC + 4*(t*18 + c); u_ = ACC + 4*(t*18 + 9 + c)
        a(f"v_cvt_pk_bf16_f32 v{T}, v{g}, v{g+1}")
        a(f"v_cvt_pk_bf16_f32 v{T+1}, v{g+2}, v{g+3}")
        a(f"v_cvt_pk_bf16_f32 v{T+2}, v{u_}, v{u_+1}")
        a(f"v_cvt_pk_bf16_f32 v{T+3}, v{u_+2}, v{u_+3}")
        unpack_lo(a, g, T); unpack_hi(a, g+1, T); unpack_lo(a, g+2, T+1); unpack_hi(a, g+3, T+1)
        a(f"v_pk_mul_f32 v[{T+4}:{T+5}], v[{g}:{g+1}], s[46:47]")
        a(f"v_pk_mul_f32 v[{T+6}:{T+7}], v[{g+2}:{g+3}], s[46:47]")
        unpack_lo(a, u_, T+2); unpack_hi(a, u_+1, T+2)
        for i in range(4):
            a(f"v_exp_f32 v{T+4+i}, v{T+4+i}")
        unpack_lo(a, u_+2, T+3); unpack_hi(a, u_+3, T+3)
        a(f"v_pk_add_f32 v[{T+4}:{T+5}], v[{T+4}:{T+5}], s[48:49]")
        a(f"v_pk_add_f32 v[{T+6}:{T+7}], v[{T+6}:{T+7}], s[48:49]")
        for i in range(4):
            a(f"v_rcp_f32 v{T+4+i}, v{T+4+i}")
        a("s_nop 0")
        a(f"v_pk_mul_f32 v[{T+4}:{T+5}], v[{T+4}:{T+5}], v[{g}:{g+1}]")
        a(f"v_pk_mul_f32 v[{T+6}:{T+7}], v[{T+6}:{T+7}], v[{g+2}:{g+3}]")
        a(f"v_cvt_pk_bf16_f32 v{T}, v{T+4}, v{T+5}")
        a(f"v_cvt_pk_bf16_f32 v{T+1}, v{T+6}, v{T+7}")
        unpack_lo(a, T+4, T); unpack_hi(a, T+5, T); unpack_lo(a, T+6, T+1); unpack_hi(a, T+7, T+1)
        a(f"v_pk_mul_f32 v[{T+4}:{T+5}], v[{T+4}:{T+5}], v[{u_}:{u_+1}]")
        a(f"v_pk_mul_f32 v[{T+6}:{T+7}], v[{T+6}:{T+7}], v[{u_+2}:{u_+3}]")
        a(f"v_cvt_pk_bf16_f32 v{O}, v{T+4}, v{T+5}")
        a(f"v_cvt_pk_bf16_f32 v{O+1}, v{T+6}, v{T+7}")
    HF = ' sc1' if 'hsc1' in FL else (' nt' if 'hnt' in FL else (' sc0 sc1' if 'hsc01' in FL else ''))
    for par in range(2):
        if par == 1: a.label("L_g1_epi_odd")
        n = 0
        for t in range(2):
            for c in range(9):
                T2 = c + par
                m, hi = T2 >> 1, T2 & 1
                O = 52 + 4 * ((t*5 + m) & 3)
                group(t, c, 20 + 8*(n & 3), O + 2*hi); n += 1
                so, imm = ("0", m*1024) if m < 4 else ("s45", 0)
                if hi == 1 and c > 0:
                    a(f"buffer_store_dwordx4 v[{O}:{O+3}], v{2+t}, s[20:23], {so} offen offset:{imm}{HF}")
                elif hi == 1 and c == 0:
                    a(f"buffer_store_dwordx2 v[{O+2}:{O+3}], v{2+t}, s[20:23], {so} offen offset:{imm+8}{HF}")
                elif hi == 0 and c == 8:
                    a(f"buffer_store_dwordx2 v[{O}:{O+1}], v{2+t}, s[20:23], {so} offen offset:{imm}{HF}")
        if par == 0: a("s_branch L_g1_epi_done")
    a.label("L_g1_epi_done")
    a.stamp(5)
    a.stamp_flush(6, 8, 0x8000000)
    a.label("L_g1_end")
    a("s_endpgm")
    return desc("gemm1_kernel", 252, 100)

G2_ST = 24576
G2_NS = 5
G2_NJP = int(os.environ.get('NJP', '15')); G2_NJC = 36 - G2_NJP
G2_HP = int(os.environ.get('HP', '3')); G2_HL = int(os.environ.get('HL', '2'))
G2_Y = G2_NS * G2_ST
G2_LDS = G2_Y + 24576
def gen_gemm2(a):
    a.kernel_begin("gemm2_kernel")
    a("s_cmp_ge_u32 s2, 256")
    a("s_cbranch_scc1 L_g2_end")
    a("s_cmp_lt_u32 s2, 64")
    a("s_cbranch_scc1 L_g2_pf")
    a("s_sub_u32 s2, s2, 64")
    a.stamp(0)
    a("s_load_dwordx2 s[4:5], s[0:1], 72")
    a("s_load_dwordx2 s[6:7], s[0:1], 0")
    a("s_load_dwordx2 s[8:9], s[0:1], 96")
    a("s_load_dwordx2 s[10:11], s[0:1], 80")
    a("v_and_b32 v1, 63, v0")
    a("v_lshrrev_b32 v2, 6, v0")
    a("s_nop 0")
    a("v_readfirstlane_b32 s40, v2")
    a("s_and_b32 s30, s2, 7")
    a("s_lshr_b32 s31, s2, 3")
    a("s_mul_i32 s32, s31, 43")
    a("s_lshr_b32 s32, s32, 8")
    a("s_mul_i32 s33, s32, 6")
    a("s_sub_u32 s31, s31, s33")
    a("s_lshr_b32 s29, s30, 2")
    if 'swap' in FL: a("s_xor_b32 s29, s29, 1")
    a("s_and_b32 s30, s30, 3")
    a("s_lshl_b32 s30, s30, 2")
    a("s_add_u32 s32, s32, s30")
    a("s_and_b32 s41, s40, 3")
    a("s_lshr_b32 s42, s40, 2")
    a("s_cmp_eq_u32 s29, 0")
    a(f"s_cselect_b32 s28, {128*G2_NJP}, 0")
    a("s_mul_i32 s33, s28, 1152")
    a("s_mul_i32 s34, s31, 192")
    a("s_add_u32 s33, s33, s34")
    a("s_mul_i32 s36, s40, 3072")
    vD, vA, vB = 2, 5, 8
    AB, WB, ACC = 20, 100, 124
    NAB, PD2 = 5, 5
    a("s_movk_i32 s45, 5462")
    a("s_mul_i32 s44, s40, 192")
    for i in range(3):
        a(f"s_add_u32 s43, s44, {64*i}")
        a("v_add_u32 v17, s43, v1")
        a("v_mul_lo_u32 v18, v17, s45")
        a("v_lshrrev_b32 v18, 16, v18")
        a("v_mul_u32_u24 v19, 12, v18")
        a("v_sub_u32 v19, v17, v19")
        a("v_lshrrev_b32 v17, 1, v19")
        a("v_bfe_u32 v16, v18, 2, 1")
        a("v_sub_u32 v17, v17, v16")
        a("v_cmp_gt_i32 vcc, 0, v17")
        a("v_and_b32 v19, 1, v19")
        a("v_lshlrev_b32 v19, 4, v19")
        a("v_cndmask_b32 v17, v17, 5, vcc")
        a("v_lshlrev_b32 v17, 5, v17")
        a("v_mul_u32_u24 v18, 1152, v18")
        a(f"v_add3_u32 v{vD+i}, v17, v18, v19")
    a("s_lshl_b32 s38, s32, 3")
    a("s_lshl_b32 s39, s41, 1")
    a("s_add_u32 s38, s38, s39")
    a("s_mul_i32 s34, s38, 147456")
    a("s_lshl_b32 s35, s28, 5")
    a("s_add_u32 s34, s34, s35")
    a("s_lshl_b32 s35, s42, 11")
    a("s_add_u32 s34, s34, s35")
    a("v_lshlrev_b32 v17, 4, v1")
    a(f"v_add_u32 v{vA}, s34, v17")
    a(f"v_add_u32 v{vA+1}, 147456, v{vA}")
    a("s_waitcnt lgkmcnt(0)")
    a("s_add_u32 s12, s4, s33")
    a("s_addc_u32 s13, s5, 0")
    a(f"s_sub_u32 s14, {SZ_W}, s33")
    a("s_mov_b32 s15, 0x00020000")
    a.srd(16, 8, SZ_H, WS_H)
    a.srd(20, 8, SZ_SD, WS_Y2T)
    a.srd(24, 8, 2*SZ_SD, WS_XP)
    a.srd(72, 6, SZ_SD)
    a.srd(76, 10, SZ_SD)
    a.srd(84, 8, 96*49152, WS_P)
    a.srd(80, 8, 128*128, WS_FL)
    def a_loads(j):
        b = AB + 16 * (j % NAB)
        a(f"s_mov_b32 s47, {4096*j}")
        for t in range(2):
            for mm in range(2):
                r = b + 8*t + 4*mm
                a.vmem(f"buffer_load_dwordx4 v[{r}:{r+3}], v{vA+t}, s[16:19], s47 offen offset:{1024*mm}", f"A{j}")
    def dma(j):
        st = j % G2_NS
        a(f"s_mov_b32 s46, {j*128*1152}")
        for i in range(3):
            a(f"s_add_u32 m0, s36, {st*G2_ST + 1024*i}")
            a("s_nop 0")
            a.vmem(f"buffer_load_dwordx4 v{vD+i}, s[12:15], s46 offen lds", f"D{j}")
    dma(0); a_loads(0); dma(1); a_loads(1)
    a("v_lshrrev_b32 v17, 2, v1")
    a("v_mul_u32_u24 v17, 192, v17")
    a("v_and_b32 v18, 3, v1")
    a("v_lshlrev_b32 v18, 3, v18")
    a(f"s_mul_i32 s43, s42, {64*192}")
    a("v_add3_u32 v17, v17, v18, s43")
    a("v_bfe_u32 v18, v1, 4, 1")
    a("v_lshlrev_b32 v19, 5, v18")
    a(f"v_add_u32 v{vB}, v17, v19")
    a("v_xor_b32 v18, 1, v18")
    a("v_mul_u32_u24 v18, 160, v18")
    a(f"v_add_u32 v{vB+1}, v17, v18")
    for grp in range(1, 3):
        a(f"v_add_u32 v{vB+2*grp}, {2*grp*G2_ST}, v{vB}")
        a(f"v_add_u32 v{vB+2*grp+1}, {2*grp*G2_ST}, v{vB+1}")
    for i in range(48):
        a(f"v_mov_b32 v{ACC+i}, 0")
    a.stamp(1)
    NU = 12
    PFD = int(os.environ.get('PFD', '8'))
    a("s_lshr_b32 s43, s2, 3")
    a("s_lshl_b32 s43, s43, 2")
    a("s_add_u32 s43, s43, s41")
    a("s_mul_i32 s43, s43, 12")
    a("v_add_u32 v17, s43, v1")
    a("v_lshlrev_b32 v18, 7, v17")
    a("v_lshrrev_b32 v19, 5, v17")
    a("v_mul_u32_u24 v19, 147456, v19")
    a("v_and_b32 v17, 31, v17")
    a("v_lshlrev_b32 v17, 7, v17")
    a("v_add_u32 v19, v19, v17")
    a("s_cmp_eq_u32 s42, 0")
    a("s_cselect_b64 vcc, -1, 0")
    a("s_mul_i32 s43, s28, 1152")
    a("s_add_u32 s92, s4, s43")
    a("s_addc_u32 s93, s5, 0")
    a(f"s_sub_u32 s94, {SZ_W}, s43")
    a("v_cndmask_b32 v247, v19, v18, vcc")
    a("s_and_b32 s44, s2, 3")
    a(f"s_mul_i32 s44, s44, {32*147456}")
    a("s_lshl_b32 s45, s28, 5")
    a("s_add_u32 s44, s44, s45")
    a(f"s_add_u32 s44, s44, {PFD*4096}")
    a("s_cmp_eq_u32 s42, 0")
    a("s_cselect_b32 s92, s92, s16")
    a("s_cselect_b32 s93, s93, s17")
    a("s_cselect_b32 s94, s94, s18")
    a("s_mov_b32 s95, 0x00020000")
    a(f"s_cselect_b32 s90, {PFD*147456}, s44")
    a("s_mov_b32 s91, 4096")
    a("s_cselect_b32 s91, 147456, s91")
    def touch():
        a("s_mov_b32 exec_lo, 0xfff")
        a("s_mov_b32 exec_hi, 0")
        a.vmem("buffer_load_dword v246, v247, s[92:95], s90 offen", "T")
        a("s_mov_b64 exec, -1")
        a("s_add_u32 s90, s90, s91")
    a("s_mul_i32 s43, s40, 6144")
    a("v_lshlrev_b32 v16, 4, v1")
    a("v_add_u32 v14, s43, v16")
    a("s_xor_b32 s44, s40, 4")
    a("s_mul_i32 s44, s44, 6144")
    a("v_add_u32 v7, s44, v16")
    a("s_mul_i32 s44, s32, 6")
    a("s_add_u32 s44, s44, s31")
    a("s_mul_i32 s45, s44, 49152")
    a("v_add_u32 v15, s45, v14")
    a("s_lshl_b32 s48, s44, 7")
    a("s_mov_b32 s49, 1")
    a("s_movk_i32 s88, 4096")
    XR, NR, PR, YL, OF = 172, 184, 196, 220, 232
    a("v_and_b32 v17, 15, v1")
    a("v_lshrrev_b32 v18, 4, v1")
    a("s_add_u32 s43, s38, s42")
    a("s_mul_i32 s43, s43, 18432")
    a("s_mul_i32 s34, s31, 192")
    a("s_add_u32 s34, s34, s43")
    a("v_mul_u32_u24 v19, 1152, v17")
    a(f"v_lshlrev_b32 v{OF}, 3, v18")
    a(f"v_add3_u32 v{OF}, v19, v{OF}, s34")
    a("s_lshl_b32 s43, s43, 1")
    a("s_mul_i32 s34, s31, 6144")
    a("s_add_u32 s43, s43, s34")
    a(f"v_add_u32 v{OF+1}, s43, v16")
    def run_loop(NJ, hooks):
        units = [(j, mm, ct) for j in range(NJ) for mm in range(2) for ct in range(6)]
        def w_reads(U):
            j, mm, ct = units[U]
            st = j % G2_NS
            r = WB + 4 * (U % (PD2 + 1))
            base = vB + 2*(st >> 1) + (0 if ct < 5 else 1)
            off = (st & 1)*G2_ST + 32*mm*192 + (32*ct if ct < 5 else 0)
            a.lds(f"ds_read_b64_tr_b16 v[{r}:{r+1}], v{base} offset:{off}", f"W{U}")
            a.lds(f"ds_read_b64_tr_b16 v[{r+2}:{r+3}], v{base} offset:{off+3072}", f"W{U}")
        def mfmas(U):
            j, mm, ct = units[U]
            r = WB + 4 * (U % (PD2 + 1))
            for t in range(2):
                ac = ACC + 4 * (t*6 + ct)
                ar = AB + 16*(j % NAB) + 8*t + 4*mm
                a(f"v_mfma_f32_16x16x32_bf16 v[{ac}:{ac+3}], v[{r}:{r+3}], v[{ar}:{ar+3}], v[{ac}:{ac+3}]")
        hk = dict(hooks or {})
        if 'coop' in FL:
            for j in range(NJ - PFD):
                hk[(j, 9)] = touch
        gemm_loop(a, units, NU, NAB, w_reads, mfmas, a_loads, dma,
                  {1: lambda: dma(2), 3: lambda: a_loads(2), 4: lambda: dma(3), 5: lambda: a_loads(3), 6: lambda: a_loads(4)},
                  NJ=NJ, NS=G2_NS, PD=PD2, hooks=hk)
    def pofs(i):
        return ("0", 1024*i) if i < 4 else ("s88", 1024*(i-4))
    def exchange():
        a("s_barrier")
        a("s_cmp_lt_u32 s40, 4")
        a(f"s_cbranch_scc1 L_g2_x{exchange.n}a")
        a("s_nop 4")
        for i in range(6):
            a(f"ds_write_b128 v14, v[{ACC+4*i}:{ACC+4*i+3}] offset:{1024*i}")
        for i in range(24):
            a(f"v_mov_b32 v{20+i}, v{ACC+24+i}")
        a(f"s_branch L_g2_x{exchange.n}b")
        a.label(f"L_g2_x{exchange.n}a")
        a("s_nop 4")
        for i in range(6):
            a(f"ds_write_b128 v14, v[{ACC+24+4*i}:{ACC+24+4*i+3}] offset:{1024*i}")
        for i in range(24):
            a(f"v_mov_b32 v{20+i}, v{ACC+i}")
        a.label(f"L_g2_x{exchange.n}b")
        exchange.n += 1
    exchange.n = 0
    a("s_cmp_eq_u32 s29, 0")
    a("s_cbranch_scc1 L_g2_consumer")
    vm_save = list(a.vm)
    run_loop(G2_NJP, None)
    a.stamp(4)
    a.keepbar = True
    exchange()
    a("s_waitcnt lgkmcnt(0)")
    a("s_barrier")
    for i in range(6):
        a(f"ds_read_b128 v[{44+4*i}:{47+4*i}], v7 offset:{1024*i}")
    for i in range(6):
        a(f"s_waitcnt lgkmcnt({5-i})")
        for e in range(4):
            a(f"v_add_f32 v{20+4*i+e}, v{20+4*i+e}, v{44+4*i+e}")
        so, imm = pofs(i)
        a(f"buffer_store_dwordx4 v[{20+4*i}:{23+4*i}], v15, s[84:87], {so} offen offset:{imm} sc1")
    a("s_waitcnt vmcnt(0)")
    a("s_barrier")
    a("s_cmp_lg_u32 s40, 0")
    a("s_cbranch_scc1 L_g2_fin")
    a("v_mov_b32 v20, s48")
    a("v_mov_b32 v21, s49")
    a("s_mov_b64 exec, 1")
    a("buffer_store_dword v21, v20, s[80:83], 0 offen sc1")
    a("s_mov_b64 exec, -1")
    a("s_branch L_g2_fin")
    a.label("L_g2_consumer")
    a.vm = vm_save; a.lg = []; a.keepbar = False
    def x_loads():
        for ct in range(6):
            so, imm = pofs(ct)
            a.vmem(f"buffer_load_dwordx4 v[{XR+4*ct}:{XR+4*ct+3}], v{OF+1}, s[24:27], {so} offen offset:{imm}", "X")
    def early_polls():
        a("v_mov_b32 v17, s48")
        a.vmem("buffer_load_dword v244, v17, s[80:83], 0 offen sc1", "F")
    def early_loads():
        if 'st2' in FL: a.stamp(1)
        a.wait_vm("F")
        a("v_readfirstlane_b32 s43, v244")
        a("v_mov_b32 v17, s48")
        a("s_nop 2")
        a("s_and_b32 s43, s43, s49")
        a("s_cbranch_scc1 L_g2_go2")
        a.label("L_g2_poll2")
        a("s_sleep 8")
        a("buffer_load_dword v18, v17, s[80:83], 0 offen sc1")
        a("s_waitcnt vmcnt(0)")
        a("v_readfirstlane_b32 s43, v18")
        a("s_nop 3")
        a("s_and_b32 s43, s43, s49")
        a("s_cbranch_scc0 L_g2_poll2")
        a.label("L_g2_go2")
        for i in range(6):
            so, imm = pofs(i)
            a.vmem(f"buffer_load_dwordx4 v[{PR+4*i}:{PR+4*i+3}], v15, s[84:87], {so} offen offset:{imm} sc1", "E")
        if 'st2' in FL: a.stamp(3)
    def y_loads():
        for p in range(3):
            a(f"buffer_load_dwordx4 v[{YL+4*p}:{YL+4*p+3}], v{OF+2}, s[20:23], s{96+p} offen sc1")
    def conv_poll():
        a("s_lshl_b32 s43, s31, 7")
        a(f"s_add_u32 s43, s43, {96*128}")
        a(f"v_mov_b32 v{OF+3}, s43")
        a.vmem(f"buffer_load_dword v245, v{OF+3}, s[80:83], 0 offen sc1", "G")
        a("v_lshrrev_b32 v17, 4, v1")
        a("v_lshlrev_b32 v17, 12, v17")
        a("v_and_b32 v18, 15, v1")
        a("v_lshlrev_b32 v18, 4, v18")
        a(f"v_add_u32 v{OF+2}, v17, v18")
        a("s_mul_i32 s96, s31, 96")
        a("s_mul_i32 s35, s40, 12")
        a("s_add_u32 s96, s96, s35")
        a("s_lshl_b32 s96, s96, 12")
        a("s_lshl_b32 s35, s32, 8")
        a("s_add_u32 s96, s96, s35")
        a("s_add_u32 s97, s96, 16384")
        a("s_add_u32 s98, s96, 32768")
    def conv_check():
        a.wait_vm("G")
        a("v_readfirstlane_b32 s89, v245")
        a("s_nop 3")
        a("s_cmp_lt_u32 s89, 384")
        a("s_cbranch_scc1 L_g2_cc")
        y_loads()
        a.label("L_g2_cc")
    run_loop(G2_NJC, {(6, 1): x_loads, (G2_NJC - G2_HP, 1): early_polls, (G2_NJC - G2_HL, 1): early_loads,
                      (G2_NJC - 3, 2): conv_poll, (G2_NJC - 1, 2): conv_check})
    a.stamp(4)
    a.keepbar = True
    a("s_cmp_ge_u32 s89, 384")
    a("s_cbranch_scc1 L_g2_go")
    a.label("L_g2_poll")
    a("s_sleep 24")
    a(f"buffer_load_dword v18, v{OF+3}, s[80:83], 0 offen sc1")
    a("s_waitcnt vmcnt(0)")
    a("v_readfirstlane_b32 s44, v18")
    a("s_nop 3")
    a("s_cmp_ge_u32 s44, 384")
    a("s_cbranch_scc0 L_g2_poll")
    y_loads()
    a.label("L_g2_go")
    a("s_mul_i32 s35, s40, 3072")
    a(f"s_add_u32 s35, s35, {G2_Y}")
    a("v_add_u32 v19, s35, v16")
    exchange()
    a("v_lshrrev_b32 v16, 2, v1")
    a("v_lshlrev_b32 v16, 8, v16")
    a("v_and_b32 v17, 3, v1")
    a("v_lshlrev_b32 v17, 3, v17")
    a("s_lshl_b32 s43, s41, 6")
    a("s_lshl_b32 s44, s42, 5")
    a("s_add_u32 s43, s43, s44")
    a(f"s_add_u32 s43, s43, {G2_Y}")
    a("v_add3_u32 v16, v16, v17, s43")
    a("s_waitcnt vmcnt(3)")
    for i in range(24):
        a(f"v_add_f32 v{20+i}, v{20+i}, v{PR+i}")
    a("s_waitcnt vmcnt(0)")
    for p in range(3):
        a(f"ds_write_b128 v19, v[{YL+4*p}:{YL+4*p+3}] offset:{1024*p}")
    a("s_waitcnt lgkmcnt(0)")
    a("s_barrier")
    YR = 68
    for i in range(6):
        a(f"ds_read_b128 v[{44+4*i}:{47+4*i}], v7 offset:{1024*i}")
    for ct in range(6):
        a(f"ds_read_b64_tr_b16 v[{YR+2*ct}:{YR+2*ct+1}], v16 offset:{4096*ct}")
    a("s_waitcnt lgkmcnt(0)")
    for z in range(6):
        T = 92 + 6*(z & 1)
        for e in range(4):
            a(f"v_add_f32 v{20+4*z+e}, v{20+4*z+e}, v{44+4*z+e}")
        for w in range(2):
            xr, xnr, yr, br = XR+4*z+w, XR+4*z+2+w, YR+2*z+w, 20+4*z+2*w
            unpack_lo(a, T, xnr); unpack_hi(a, T+1, xnr)
            unpack_lo(a, T+2, yr); unpack_hi(a, T+3, yr)
            a(f"v_mul_f32 v{T}, v{T}, v{T+2}")
            a(f"v_mul_f32 v{T+1}, v{T+1}, v{T+3}")
            a(f"v_cvt_pk_bf16_f32 v{T+2}, v{T}, v{T+1}")
            unpack_lo(a, T, T+2); unpack_hi(a, T+1, T+2)
            unpack_lo(a, T+3, xr); unpack_hi(a, T+4, xr)
            a(f"v_add_f32 v{T}, v{T}, v{T+3}")
            a(f"v_add_f32 v{T+1}, v{T+1}, v{T+4}")
            a(f"v_cvt_pk_bf16_f32 v{T+2}, v{T}, v{T+1}")
            unpack_lo(a, T, T+2); unpack_hi(a, T+1, T+2)
            a(f"v_cvt_pk_bf16_f32 v{T+2}, v{br}, v{br+1}")
            unpack_lo(a, T+3, T+2); unpack_hi(a, T+4, T+2)
            a(f"v_add_f32 v{T}, v{T}, v{T+3}")
            a(f"v_add_f32 v{T+1}, v{T+1}, v{T+4}")
            a(f"v_cvt_pk_bf16_f32 v{xr}, v{T}, v{T+1}")
        a(f"buffer_store_dwordx2 v[{XR+4*z}:{XR+4*z+1}], v{OF}, s[76:79], 0 offen offset:{32*z}")
    a.label("L_g2_fin")
    a.stamp(5)
    a.stamp_flush(6, 8, 0x8100000)
    a("s_endpgm")
    a.label("L_g2_pf")
    if 'stamp' in FL: a("s_memtime s[64:65]")
    a("s_load_dwordx2 s[44:45], s[0:1], 72")
    a("s_load_dwordx2 s[8:9], s[0:1], 96")
    a("s_load_dwordx4 s[4:7], s[0:1], 32")
    a("v_and_b32 v1, 63, v0")
    a("v_lshrrev_b32 v2, 6, v0")
    a("s_nop 0")
    a("v_readfirstlane_b32 s40, v2")
    a("s_lshl_b32 s31, s40, 6")
    a("s_add_u32 s30, s2, s31")
    a(f"s_mul_i32 s31, s40, {CV_SZ}")
    a("s_lshl_b32 s32, s30, 12")
    a("v_lshlrev_b32 v2, 4, v1")
    a("s_waitcnt lgkmcnt(0)")
    a.srd(12, 4, SZ_SD)
    a.srd(16, 6, D*2)
    a.srd(20, 8, SZ_SD, WS_KVT)
    a.srd(24, 8, SZ_SD, WS_Y2T)
    a.srd(36, 8, 128*128, WS_FL)
    def cloads(kb, dreg, sd, sdb, slds):
        for i in range(4):
            a(f"buffer_load_dwordx4 v[{kb+6*i}:{kb+3+6*i}], v2, s[12:15], s{sdb} offen offset:{1024*i}")
            a(f"buffer_load_dword v{kb+4+6*i}, v2, s[12:15], s{sdb} offen offset:{1024*i+16}")
        for i in range(4):
            a(f"s_add_u32 m0, s{slds}, {CV_U + 1024*i}")
            a(f"s_add_u32 s33, s{sdb}, {1024*i}")
            a("buffer_load_dwordx4 v2, s[20:23], s33 offen lds")
        a(f"s_lshl_b32 s33, s{sd}, 1")
        a(f"v_mov_b32 v{dreg}, s33")
        a(f"buffer_load_ushort v{dreg}, v{dreg}, s[16:19], 0 offen")
    cloads(48, 3, 30, 32, 31)
    a("s_add_u32 s46, s2, 512")
    a("s_lshl_b32 s47, s46, 12")
    a(f"s_mov_b32 s48, {8*CV_SZ}")
    a("s_cmp_ge_u32 s40, 4")
    a("s_cbranch_scc1 L_g2_pf2")
    cloads(176, 200, 46, 47, 48)
    a.label("L_g2_pf2")
    a("s_barrier")
    a("s_and_b32 s50, s2, 7")
    a("s_and_b32 s51, s2, 56")
    a("s_add_u32 s51, s51, s40")
    a("s_lshr_b32 s52, s50, 2")
    if 'swap' in FL: a("s_xor_b32 s52, s52, 1")
    a("v_lshlrev_b32 v199, 7, v1")
    a("s_lshl_b32 s53, s51, 13")
    a("v_lshrrev_b32 v5, 4, v1")
    a("v_mul_u32_u24 v5, 147456, v5")
    a("v_and_b32 v6, 15, v1")
    a("v_lshlrev_b32 v6, 7, v6")
    a("v_add_u32 v181, v5, v6")
    a("s_and_b32 s54, s50, 3")
    a("s_lshl_b32 s54, s54, 5")
    a("s_and_b32 s55, s51, 7")
    a("s_lshl_b32 s55, s55, 2")
    a("s_add_u32 s54, s54, s55")
    a("s_mul_i32 s54, s54, 147456")
    a("s_cmp_eq_u32 s52, 0")
    a(f"s_cselect_b32 s55, {128*G2_NJP*32}, 0")
    a(f"s_cselect_b32 s52, {128*G2_NJP*1152}, 0")
    a(f"s_mov_b32 s58, {128*G2_NJP*1152}")
    a(f"s_cselect_b32 s58, {128*G2_NJC*1152}, s58")
    a(f"s_cselect_b32 s43, {2*G2_NJC}, {2*G2_NJP}")
    a("s_add_u32 s54, s54, s55")
    a("s_lshr_b32 s50, s51, 3")
    a("s_lshl_b32 s55, s50, 11")
    a("s_add_u32 s54, s54, s55")
    a("s_add_u32 s56, s44, s52")
    a("s_addc_u32 s57, s45, 0")
    a("s_mov_b32 s59, 0x00020000")
    a.srd(60, 8, SZ_H, WS_H)
    def pf(rs):
        for r in rs:
            a(f"buffer_load_dword v201, v199, s[56:59], s53 offen")
            a(f"s_add_u32 s53, s53, {64*8192}")
            a("s_cmp_ge_u32 s50, s43")
            a("s_cselect_b32 s55, 0x7f000000, s54")
            a(f"buffer_load_dword v201, v181, s[60:63], s55 offen")
            a("s_add_u32 s54, s54, 16384")
            a("s_add_u32 s50, s50, 8")
    NPF = int(os.environ.get('NPF', '3'))
    pf(range(0, NPF))
    a("s_mov_b32 s49, 0")
    a("v_and_b32 v9, 15, v1")
    a("v_lshrrev_b32 v10, 4, v1")
    a("v_lshlrev_b32 v12, 4, v10")
    a(f"s_waitcnt vmcnt({2*NPF})")
    if 'stamp' in FL: a("s_memtime s[66:67]")
    def conv_body(ts):
        a("v_add_u32 v8, s31, v2")
        a("v_lshlrev_b32 v11, 1, v9")
        a("v_add_u32 v11, v11, v12")
        a("v_and_b32 v14, 1, v9")
        a("v_cmp_eq_u32 vcc, 1, v14")
        a(f"v_mov_b32 v14, {CV_O}")
        a("s_nop 1")
        a("v_cndmask_b32 v14, v14, 2, vcc")
        a("v_add_u32 v11, v11, v14")
        a("v_add_u32 v11, s31, v11")
        a("v_lshlrev_b32 v13, 5, v9")
        a("v_sub_u32 v13, v12, v13")
        a(f"v_add_u32 v13, {CV_U+480}, v13")
        a("v_add_u32 v13, s31, v13")
        KA = [11, 14, 15, 202, 203]
        for i in range(1, 5):
            a(f"v_add_u32 v{KA[i]}, {960*i}, v11")
        a("v_mov_b32 v4, 0"); a("v_mov_b32 v5, 0"); a("v_mov_b32 v6, 0"); a("v_mov_b32 v7, 0")
        a("s_mov_b32 exec_hi, 0")
        a(f"ds_write_b128 v8, v[4:7] offset:{CV_U+4096}")
        a("s_mov_b32 exec_lo, 3")
        a("ds_write_b128 v8, v[4:7]")
        a("s_mov_b32 exec_lo, 1")
        a(f"ds_write_b128 v8, v[4:7] offset:{CV_O}")
        a("s_mov_b64 exec, -1")
        CA = 16; FA = 48; FB = 80
        mx = max(ts)
        for t in ts:
            for i in range(4): a(f"v_mov_b32 v{CA+4*t+i}, 0")
        for i in range(4):
            b = 48 + 6*i
            a(f"ds_write_b128 v8, v[{b}:{b+3}] offset:{32+1024*i}")
            for t in range(4):
                a(f"v_alignbit_b32 v{112+4*(i&1)+t}, v{b+t+1}, v{b+t}, 16")
            a(f"ds_write_b128 v8, v[{112+4*(i&1)}:{115+4*(i&1)}] offset:{CV_O+32+1024*i}")
            if i == 0:
                a("v_lshlrev_b32 v7, 16, v48")
                a("s_mov_b64 exec, 1")
                a(f"ds_write_b128 v8, v[4:7] offset:{CV_O+16}")
                a("s_mov_b64 exec, -1")
        a("s_waitcnt lgkmcnt(0)")
        def creads(rho):
            o = 64 * (rho & 1)
            for pi in range(mx + 1):
                p = 8*pi + rho
                r = FA+o+4*pi
                a(f"ds_read2_b32 v[{r}:{r+1}], v{KA[p//15]} offset0:{16*(p%15)} offset1:{16*(p%15)+1}")
                a(f"ds_read2_b32 v[{r+2}:{r+3}], v{KA[p//15]} offset0:{16*(p%15)+2} offset1:{16*(p%15)+3}")
                w = 8*pi - rho
                a(f"ds_read_b128 v[{FB+o+4*pi}:{FB+o+4*pi+3}], v13 offset:{64*(56-w)}")
        creads(0)
        for rho in range(8):
            a("s_waitcnt lgkmcnt(0)")
            if rho < 7:
                creads(rho + 1)
            o = 64 * (rho & 1)
            for t in ts:
                for pi in range(t + 1):
                    tau = t - pi
                    a(f"v_mfma_f32_16x16x32_bf16 v[{CA+4*t}:{CA+4*t+3}], v[{FA+o+4*pi}:{FA+o+4*pi+3}], v[{FB+o+4*tau}:{FB+o+4*tau+3}], v[{CA+4*t}:{CA+4*t+3}]")
        a("v_lshlrev_b32 v3, 16, v3")
        a("v_lshlrev_b32 v14, 5, v9")
        a("v_lshlrev_b32 v15, 3, v10")
        a("v_add_u32 v14, v14, v15")
        a(f"v_sub_u32 v15, {CV_U+504}, v14")
        a("v_add_u32 v15, s31, v15")
        a("v_add_u32 v14, s32, v14")
        for t in ts:
            a(f"ds_read_b64 v[{48+2*t}:{49+2*t}], v15 offset:{512*(7-t)}")
        a("s_waitcnt lgkmcnt(0)")
        for n_, t in enumerate(ts):
            y = CA + 4*t; kq = 48 + 2*t; T = 64 + 8*(n_ & 1)
            unpack_hi(a, T, kq+1); unpack_lo(a, T+1, kq+1); unpack_hi(a, T+2, kq); unpack_lo(a, T+3, kq)
            for i in range(4):
                a(f"v_mul_f32 v{T+i}, v{T+i}, v3")
            a(f"v_cvt_pk_bf16_f32 v{T+4}, v{T}, v{T+1}")
            a(f"v_cvt_pk_bf16_f32 v{T+5}, v{T+2}, v{T+3}")
            a(f"v_cvt_pk_bf16_f32 v{T+6}, v{y}, v{y+1}")
            a(f"v_cvt_pk_bf16_f32 v{T+7}, v{y+2}, v{y+3}")
            unpack_lo(a, T, T+4); unpack_hi(a, T+1, T+4); unpack_lo(a, T+2, T+5); unpack_hi(a, T+3, T+5)
            unpack_lo(a, y, T+6); unpack_hi(a, y+1, T+6); unpack_lo(a, y+2, T+7); unpack_hi(a, y+3, T+7)
            for i in range(4):
                a(f"v_add_f32 v{T+i}, v{T+i}, v{y+i}")
            a(f"v_cvt_pk_bf16_f32 v{y}, v{T}, v{T+1}")
            a(f"v_cvt_pk_bf16_f32 v{y+1}, v{T+2}, v{T+3}")
            a(f"buffer_store_dwordx2 v[{y}:{y+1}], v14, s[24:27], 0 offen offset:{512*t} sc1")
    conv_body(list(range(8)))
    a("s_mul_i32 s33, s30, 683")
    a("s_lshr_b32 s33, s33, 16")
    a("s_lshl_b32 s33, s33, 7")
    a(f"s_add_u32 s33, s33, {96*128}")
    a("s_cmp_ge_u32 s40, 4")
    a("s_cbranch_scc1 L_g2_pub")
    a("s_mov_b32 s32, s47")
    a("s_mov_b32 s31, s48")
    for i in range(24):
        a(f"v_mov_b32 v{48+i}, v{176+i}")
    a("v_mov_b32 v3, v200")
    for q in range(4):
        if q < 3:
            a(f"s_cmp_lg_u32 s40, {q}")
            a(f"s_cbranch_scc1 L_g2_q{q+1}")
        conv_body([7 - q, q])
        if q < 3:
            a("s_branch L_g2_pub2")
            a.label(f"L_g2_q{q+1}")
    a.label("L_g2_pub2")
    a(f"v_mov_b32 v14, {101*128}")
    a("v_mov_b32 v15, 1")
    a("s_waitcnt vmcnt(0)")
    a("s_mov_b64 exec, 1")
    a("buffer_atomic_add v15, v14, s[36:39], 0 offen")
    a("s_mov_b64 exec, -1")
    a.label("L_g2_pub")
    if 'stamp' in FL: a("s_memtime s[68:69]")
    a("v_mov_b32 v14, s33")
    a("v_mov_b32 v15, 4")
    a("s_waitcnt vmcnt(0)")
    if 'stamp' in FL: a("s_memtime s[70:71]")
    a("s_mov_b64 exec, 1")
    a("buffer_atomic_add v15, v14, s[36:39], 0 offen")
    a("s_mov_b64 exec, -1")
    if 'hpf2' in FL: pf(range(NPF, 6))
    if 'stamp' in FL:
        a("s_waitcnt vmcnt(0)")
        a("s_memtime s[72:73]")
        a("s_waitcnt lgkmcnt(0)")
        a("s_add_u32 s76, s8, 0x8200000")
        a("s_addc_u32 s77, s9, 0")
        a("s_mov_b32 s78, 0x100000")
        a("s_mov_b32 s79, 0x00020000")
        a("s_lshl_b32 s74, s2, 9")
        a("s_lshl_b32 s75, s40, 6")
        a("s_add_u32 s74, s74, s75")
        a("v_mov_b32 v5, s74")
        for i in range(8):
            ii = min(i, 4)
            a(f"v_mov_b32 v6, s{64+2*ii}")
            a(f"v_mov_b32 v7, s{65+2*ii}")
            a(f"buffer_store_dwordx2 v[6:7], v5, s[76:79], 0 offen offset:{8*i}")
            a("s_nop 1")
    a.label("L_g2_end")
    a("s_endpgm")
    return desc("gemm2_kernel", 248, 100)

def gen_final(a):
    a.kernel_begin("final_kernel")
    a("s_cmp_ge_u32 s2, 288")
    a("s_cbranch_scc1 L_fin_end")
    a("s_load_dwordx2 s[4:5], s[0:1], 0")
    a("s_load_dwordx2 s[6:7], s[0:1], 80")
    a("s_load_dwordx2 s[8:9], s[0:1], 96")
    a("s_and_b32 s32, s2, 31")
    a("s_lshr_b32 s33, s2, 5")
    a("s_waitcnt lgkmcnt(0)")
    a.srd(12, 4, SZ_SD)
    a.srd(16, 6, SZ_SD)
    a.srd(20, 8, SZ_SD, WS_XN)
    a.srd(24, 8, SZ_SD, WS_Y2T)
    a.srd(28, 8, SZ_P, WS_P)
    a("v_lshrrev_b32 v1, 2, v0")
    a("v_and_b32 v2, 3, v0")
    a("v_lshlrev_b32 v3, 12, v1")
    a("v_lshlrev_b32 v4, 5, v2")
    a("v_add_u32 v3, v3, v4")
    a("s_lshl_b32 s34, s33, 18")
    a("s_lshl_b32 s35, s32, 7")
    a("s_add_u32 s34, s34, s35")
    a("v_add_u32 v3, s34, v3")
    a("buffer_load_dwordx4 v[8:11], v3, s[24:27], 0 offen")
    a("buffer_load_dwordx4 v[12:15], v3, s[24:27], 0 offen offset:16")
    a("v_mul_u32_u24 v5, 136, v1")
    a("v_add_u32 v5, v5, v4")
    a("v_lshrrev_b32 v6, 3, v0")
    a("v_and_b32 v7, 7, v0")
    a("s_lshl_b32 s34, s32, 6")
    a("v_add_u32 v16, s34, v6")
    a("v_lshrrev_b32 v20, 4, v16")
    a("v_mul_u32_u24 v20, 18432, v20")
    a("v_and_b32 v21, 15, v16")
    a("v_lshlrev_b32 v21, 4, v21")
    a("v_add_u32 v20, v20, v21")
    a("v_and_b32 v21, 1, v7")
    a("v_lshlrev_b32 v21, 10, v21")
    a("v_add_u32 v20, v20, v21")
    a("v_lshrrev_b32 v21, 1, v7")
    a("v_lshlrev_b32 v21, 8, v21")
    a("v_add_u32 v20, v20, v21")
    a("s_lshl_b32 s35, s33, 11")
    a("v_add_u32 v22, s35, v20")
    a(f"v_add_u32 v23, {2*18432}, v22")
    a("v_mul_u32_u24 v16, 1152, v16")
    a("v_lshlrev_b32 v17, 4, v7")
    a("s_lshl_b32 s35, s33, 7")
    a("v_add_u32 v17, s35, v17")
    a("v_add_u32 v16, v16, v17")
    a(f"v_add_u32 v17, {32*1152}, v16")
    a("v_lshlrev_b32 v18, 1, v16")
    a("v_lshlrev_b32 v19, 1, v17")
    for it in range(2):
        b = 24 + 40*it
        a(f"buffer_load_dwordx4 v[{b}:{b+3}], v{16+it}, s[12:15], 0 offen")
        a(f"buffer_load_dwordx4 v[{b+4}:{b+7}], v{22+it}, s[20:23], 0 offen")
        for ks in range(4):
            a(f"s_mov_b32 s36, {ks*S*D*4}")
            a(f"buffer_load_dwordx4 v[{b+8+8*ks}:{b+11+8*ks}], v{18+it}, s[28:31], s36 offen")
            a(f"buffer_load_dwordx4 v[{b+12+8*ks}:{b+15+8*ks}], v{18+it}, s[28:31], s36 offen offset:16")
    a("s_waitcnt vmcnt(20)")
    for m in range(4):
        a(f"ds_write_b64 v5, v[{8+2*m}:{9+2*m}] offset:{8*m}")
    a("s_waitcnt lgkmcnt(0)")
    a("s_barrier")
    a("v_mul_u32_u24 v20, 1088, v7")
    a("v_lshlrev_b32 v21, 1, v6")
    a("v_add_u32 v20, v20, v21")
    for it in range(2):
        for c in range(8):
            a(f"ds_read_u16 v{104+8*it+c}, v20 offset:{136*c + 64*it}")
    a("s_waitcnt vmcnt(0) lgkmcnt(0)")
    for it in range(2):
        b = 24 + 40*it
        for w in range(4):
            T = 120
            y0, y1 = 104 + 8*it + 2*w, 104 + 8*it + 2*w + 1
            unpack_lo(a, y0, y0); unpack_lo(a, y1, y1)
            unpack_lo(a, T, b+4+w); unpack_hi(a, T+1, b+4+w)
            a(f"v_mul_f32 v{T}, v{T}, v{y0}")
            a(f"v_mul_f32 v{T+1}, v{T+1}, v{y1}")
            a(f"v_cvt_pk_bf16_f32 v{T+2}, v{T}, v{T+1}")
            unpack_lo(a, T, T+2); unpack_hi(a, T+1, T+2)
            unpack_lo(a, T+3, b+w); unpack_hi(a, T+4, b+w)
            a(f"v_add_f32 v{T}, v{T}, v{T+3}")
            a(f"v_add_f32 v{T+1}, v{T+1}, v{T+4}")
            a(f"v_cvt_pk_bf16_f32 v{T+2}, v{T}, v{T+1}")
            unpack_lo(a, T, T+2); unpack_hi(a, T+1, T+2)
            p = b + 8 + 2*w
            a(f"v_add_f32 v{T+3}, v{p}, v{p+8}")
            a(f"v_add_f32 v{T+4}, v{p+1}, v{p+9}")
            a(f"v_add_f32 v{T+5}, v{p+16}, v{p+24}")
            a(f"v_add_f32 v{T+6}, v{p+17}, v{p+25}")
            a(f"v_add_f32 v{T+3}, v{T+3}, v{T+5}")
            a(f"v_add_f32 v{T+4}, v{T+4}, v{T+6}")
            a(f"v_cvt_pk_bf16_f32 v{T+2}, v{T+3}, v{T+4}")
            unpack_lo(a, T+3, T+2); unpack_hi(a, T+4, T+2)
            a(f"v_add_f32 v{T}, v{T}, v{T+3}")
            a(f"v_add_f32 v{T+1}, v{T+1}, v{T+4}")
            a(f"v_cvt_pk_bf16_f32 v{b+w}, v{T}, v{T+1}")
        a(f"buffer_store_dwordx4 v[{b}:{b+3}], v{16+it}, s[16:19], 0 offen")
    a.label("L_fin_end")
    a("s_endpgm")
    return desc("final_kernel", 128)

def main(path):
    hdr = open("parallel_sum__ssm_conv_h3__glu_gated_swiglu__prompt.s.ref").read().split("\n")
    head = [l for l in hdr if l.startswith(";") and "@launch" not in l and "Override launch" not in l and "grid=ceil" not in l]
    launches = [
        "; @launch kernel=front_kernel grid=(480,1,1) block=(256,1,1) lds=8704",
        f"; @launch kernel=gemm1_kernel grid=(256,1,1) block=(512,1,1) lds={NST*STAGE}",
        f"; @launch kernel=gemm2_kernel grid=(256,1,1) block=(512,1,1) lds={G2_LDS}",
    ]
    a = Asm()
    descs = [gen_front(a), gen_gemm1(a), gen_gemm2(a)]
    out = "\n".join(head + launches) + "\n"
    out += '.amdgcn_target "amdgcn-amd-amdhsa--gfx950"\n.text\n'
    out += "\n".join(a.l) + "\n"
    out += '.section .rodata,"a"\n'
    for d in descs:
        out += ".p2align 6\n" + d
    open(path, "w").write(out)

if __name__ == "__main__":
    main(sys.argv[1] if len(sys.argv) > 1 else "parallel_sum__ssm_conv_h3__glu_gated_swiglu__prompt.s")
```

```python
import sys, os
FL = set(os.environ.get('FL','').split(','))

S, D, F = 2048, 576, 4608
WS_XN, WS_KVT, WS_Y2T, WS_H, WS_P = 0x0, 0x400000, 0x800000, 0x1000000, 0x3000000
WS_XP = 0x2400000
WS_FL = 0x3800000
SZ_SD = S * D * 2
SZ_W = D * F * 2
SZ_H = S * F * 2
SZ_P = 4 * S * D * 4

class Asm:
    def __init__(self):
        self.l = []
        self.gemm = False
        self.keepbar = False
        self.vm = []
        self.lg = []
    def __call__(self, s):
        if self.gemm:
            if 'nomfma' in FL and s.startswith('v_mfma'): return
            if 'nolds' in FL and s.startswith('ds_read_b64_tr'): return
            if 'nodma' in FL and s.endswith('offen lds'): return
            if 'noa' in FL and s.startswith('buffer_load_dwordx4 v['): return
            if 'nobar' in FL and s.startswith('s_barrier') and not self.keepbar: return
            if 'nostore' in FL and s.startswith('buffer_store'): return
        self.l.append("    " + s)
    def label(self, s):
        self.l.append(s + ":")
    def c(self, s):
        self.l.append("    ; " + s)
    def vmem(self, s, tag):
        self(s); self.vm.append(tag)
    def lds(self, s, tag):
        self(s); self.lg.append(tag)
    def wait_vm(self, tag):
        if tag not in self.vm: return
        idx = max(i for i, t in enumerate(self.vm) if t == tag)
        n = len(self.vm) - 1 - idx
        assert n <= 63
        self(f"s_waitcnt vmcnt({n})")
        self.vm = self.vm[idx + 1:]
    def wait_lg(self, tag):
        if tag not in self.lg: return
        idx = max(i for i, t in enumerate(self.lg) if t == tag)
        n = len(self.lg) - 1 - idx
        assert n <= 15, n
        self(f"s_waitcnt lgkmcnt({n})")
        self.lg = self.lg[idx + 1:]
    def capture(self, fn):
        l0, vm0 = self.l, self.vm
        self.l, self.vm = [], []
        marks = []
        ov = self.vmem
        def vm2(s_, tag):
            self(s_); marks.append((len(self.l), tag))
        self.vmem = vm2
        fn()
        del self.vmem
        lines = self.l
        self.l, self.vm = l0, vm0
        chunks = []; p = 0
        for k, (e, tag) in enumerate(marks):
            end = e
            if end < len(lines) and 'exec' in lines[end] and '-1' in lines[end]: end += 1
            chunks.append((lines[p:end], tag)); p = end
        if p < len(lines): chunks[-1] = (chunks[-1][0] + lines[p:], chunks[-1][1])
        return chunks
    def emit_chunk(self, ch):
        self.l += ch[0]; self.vm.append(ch[1])
    def wait_all(self):
        self("s_waitcnt vmcnt(0) lgkmcnt(0)")
        self.vm = []; self.lg = []
    def srd(self, d, base, size, off=0):
        if off:
            self(f"s_add_u32 s{d}, s{base}, {off}")
            self(f"s_addc_u32 s{d+1}, s{base+1}, 0")
        else:
            self(f"s_mov_b32 s{d}, s{base}")
            self(f"s_mov_b32 s{d+1}, s{base+1}")
        self(f"s_mov_b32 s{d+2}, {size}")
        self(f"s_mov_b32 s{d+3}, 0x00020000")
    def stamp(self, i):
        if 'stamp' not in FL: return
        self(f"s_memtime s[{50+2*i}:{51+2*i}]")
        if i == 0: self("s_memrealtime s[62:63]")
    def stamp_flush(self, n, wsb, base):
        if 'stamp' not in FL: return
        self("s_memrealtime s[64:65]")
        self("s_waitcnt lgkmcnt(0)")
        self(f"s_add_u32 s68, s{wsb}, {base}")
        self(f"s_addc_u32 s69, s{wsb+1}, 0")
        self("s_mov_b32 s70, 0x100000")
        self("s_mov_b32 s71, 0x00020000")
        self("s_lshl_b32 s66, s2, 9")
        self("s_lshl_b32 s67, s40, 6")
        self("s_add_u32 s66, s66, s67")
        self("v_mov_b32 v5, s66")
        for i in range(8):
            self(f"v_mov_b32 v6, s{50+2*i}")
            self(f"v_mov_b32 v7, s{51+2*i}")
            self(f"buffer_store_dwordx2 v[6:7], v5, s[68:71], 0 offen offset:{8*i}")
            self("s_nop 1")
    def kernel_begin(self, name):
        self.l.append(f".globl {name}")
        self.l.append(".p2align 8")
        self.l.append(f".type {name},@function")
        self.label(name)
        self.gemm = name.startswith('gemm'); self.keepbar = False
        self.vm = []; self.lg = []

def vr(b, n=1):
    return f"v{b}" if n == 1 else f"v[{b}:{b+n-1}]"

def desc(name, vgpr, sgpr=80):
    acc = (vgpr + 3) // 4 * 4
    return f""".amdhsa_kernel {name}
  .amdhsa_next_free_vgpr {vgpr}
  .amdhsa_next_free_sgpr {sgpr}
  .amdhsa_accum_offset {acc}
  .amdhsa_group_segment_fixed_size 0
  .amdhsa_kernarg_size 104
  .amdhsa_user_sgpr_count 2
  .amdhsa_user_sgpr_kernarg_segment_ptr 1
  .amdhsa_system_sgpr_workgroup_id_x 1
  .amdhsa_float_denorm_mode_32 3
.end_amdhsa_kernel
"""

def unpack_lo(a, d, s): a(f"v_lshlrev_b32 v{d}, 16, v{s}")
def unpack_hi(a, d, s): a(f"v_and_b32 v{d}, 0xffff0000, v{s}")

CV_O, CV_U, CV_SZ = 4224, 8448, 13056
def gen_front(a):
    a.kernel_begin("front_kernel")
    a("s_cmp_ge_u32 s2, 480")
    a("s_cbranch_scc1 L_fr_end")
    a("s_cmp_lt_u32 s2, 64")
    a("s_cbranch_scc1 L_fr_pf")
    a("s_cmp_ge_u32 s2, 192")
    a("s_cbranch_scc1 L_fr_kv")
    a("s_load_dwordx2 s[4:5], s[0:1], 0")
    a("s_load_dwordx2 s[14:15], s[0:1], 96")
    a("s_waitcnt lgkmcnt(0)")
    a.srd(16, 4, SZ_SD)
    a.srd(20, 14, SZ_SD, WS_XN)
    a("s_sub_u32 s3, s2, 64")
    a("s_lshl_b32 s3, s3, 4")
    a("v_lshrrev_b32 v1, 4, v0")
    a("v_add_u32 v1, s3, v1")
    a("v_and_b32 v2, 15, v0")
    a("v_mul_u32_u24 v3, 1152, v1")
    a("v_lshlrev_b32 v4, 3, v2")
    a("v_add_u32 v3, v3, v4")
    for i in range(9):
        a(f"buffer_load_dwordx2 v[{8+2*i}:{9+2*i}], v3, s[16:19], 0 offen offset:{128*i}")
    a("v_lshrrev_b32 v4, 4, v1")
    a("v_mul_u32_u24 v4, 18432, v4")
    a("v_and_b32 v5, 15, v1")
    a("v_lshlrev_b32 v5, 4, v5")
    a("v_add_u32 v4, v4, v5")
    a("v_lshrrev_b32 v5, 2, v2")
    a("v_lshlrev_b32 v5, 8, v5")
    a("v_add_u32 v4, v4, v5")
    a("v_lshrrev_b32 v5, 1, v2")
    a("v_and_b32 v5, 1, v5")
    a("v_lshlrev_b32 v5, 10, v5")
    a("v_add_u32 v4, v4, v5")
    a("v_and_b32 v5, 1, v2")
    a("v_lshlrev_b32 v5, 3, v5")
    a("v_add_u32 v1, v4, v5")
    a("s_waitcnt vmcnt(0)")
    X = 32
    for i in range(18):
        unpack_lo(a, X + 2*i, 8 + i)
        unpack_hi(a, X + 2*i + 1, 8 + i)
    for i in range(9):
        a(f"v_mov_b32 v{72+4*i}, v{8+2*i}")
        a(f"v_mov_b32 v{73+4*i}, v{9+2*i}")
    a(f"v_add_f32 v2, v{X}, v{X+1}")
    a(f"v_add_f32 v3, v{X+2}, v{X+3}")
    for i in range(4, 36, 2):
        a(f"v_add_f32 v2, v2, v{X+i}")
        a(f"v_add_f32 v3, v3, v{X+i+1}")
    a("v_add_f32 v2, v2, v3")
    def red16(r, t):
        a("s_nop 1")
        a(f"v_add_f32_dpp v{t}, v{r}, v{r} quad_perm:[1,0,3,2] row_mask:0xf bank_mask:0xf")
        a("s_nop 1")
        a(f"v_add_f32_dpp v{r}, v{t}, v{t} quad_perm:[2,3,0,1] row_mask:0xf bank_mask:0xf")
        a("s_nop 1")
        a(f"v_add_f32_dpp v{t}, v{r}, v{r} row_half_mirror row_mask:0xf bank_mask:0xf")
        a("s_nop 1")
        a(f"v_add_f32_dpp v{r}, v{t}, v{t} row_mirror row_mask:0xf bank_mask:0xf")
    red16(2, 3)
    a("s_mov_b32 s24, 0x3ae38e39")
    a("v_mul_f32 v2, s24, v2")
    a("v_mov_b32 v4, 0")
    a("v_mov_b32 v5, 0")
    for i in range(0, 36, 2):
        a(f"v_sub_f32 v6, v{X+i}, v2")
        a(f"v_sub_f32 v7, v{X+i+1}, v2")
        a("v_fmac_f32 v4, v6, v6")
        a("v_fmac_f32 v5, v7, v7")
    a("v_add_f32 v4, v4, v5")
    red16(4, 5)
    a("v_mul_f32 v4, s24, v4")
    a("v_cvt_pk_bf16_f32 v5, v2, v4")
    unpack_lo(a, 2, 5)
    unpack_hi(a, 4, 5)
    a("v_add_f32 v4, 0x3727c5ac, v4")
    a("v_cvt_pk_bf16_f32 v4, v4, v4")
    unpack_hi(a, 4, 4)
    a("v_sqrt_f32 v4, v4")
    a("s_nop 0")
    a("v_cvt_pk_bf16_f32 v4, v4, v4")
    unpack_hi(a, 4, 4)
    a("v_rcp_f32 v5, v4")
    a("s_nop 0")
    for i in range(18):
        x0, x1 = X + 2*i, X + 2*i + 1
        a(f"v_sub_f32 v{x0}, v{x0}, v2")
        a(f"v_sub_f32 v{x1}, v{x1}, v2")
        a(f"v_cvt_pk_bf16_f32 v6, v{x0}, v{x1}")
        unpack_lo(a, x0, 6)
        unpack_hi(a, x1, 6)
        a(f"v_mul_f32 v6, v{x0}, v5")
        a(f"v_mul_f32 v7, v{x1}, v5")
        a(f"v_fma_f32 v{x0}, -v6, v4, v{x0}")
        a(f"v_fma_f32 v{x1}, -v7, v4, v{x1}")
        a(f"v_fma_f32 v6, v{x0}, v5, v6")
        a(f"v_fma_f32 v7, v{x1}, v5, v7")
        a(f"v_cvt_pk_bf16_f32 v{8+i}, v6, v7")
    for i in range(9):
        a(f"s_mov_b32 s25, {2048*i}")
        a(f"buffer_store_dwordx2 v[{8+2*i}:{9+2*i}], v1, s[20:23], s25 offen")
    a.srd(28, 14, 2*SZ_SD, WS_XP)
    a("v_lshrrev_b32 v2, 4, v0")
    a("v_add_u32 v2, s3, v2")
    a("v_lshrrev_b32 v3, 4, v2")
    a("v_mul_u32_u24 v3, 36864, v3")
    a("v_and_b32 v2, 15, v2")
    a("v_lshlrev_b32 v2, 4, v2")
    a("v_add_u32 v3, v3, v2")
    a("v_bfe_u32 v2, v0, 2, 2")
    a("v_lshlrev_b32 v2, 10, v2")
    a("v_add_u32 v3, v3, v2")
    a("v_and_b32 v2, 3, v0")
    a("v_lshlrev_b32 v2, 8, v2")
    a("v_add_u32 v3, v3, v2")
    for i in range(9):
        a(f"v_mov_b32 v{74+4*i}, v{8+2*i}")
        a(f"v_mov_b32 v{75+4*i}, v{9+2*i}")
        a(f"s_mov_b32 s25, {4096*i}")
        a(f"buffer_store_dwordx4 v[{72+4*i}:{75+4*i}], v3, s[28:31], s25 offen")
    a("s_endpgm")
    a.label("L_fr_pf")
    a("s_load_dwordx4 s[4:7], s[0:1], 56")
    a("s_load_dwordx2 s[8:9], s[0:1], 32")
    a("s_load_dwordx2 s[10:11], s[0:1], 96")
    a("v_and_b32 v1, 63, v0")
    a("v_lshrrev_b32 v2, 6, v0")
    a("s_nop 0")
    a("v_readfirstlane_b32 s40, v2")
    a("s_and_b32 s30, s2, 7")
    a("s_mul_i32 s30, s30, 1152")
    a("s_mov_b32 s31, s2")
    a("s_lshr_b32 s31, s31, 3")
    a("s_lshl_b32 s31, s31, 2")
    a("s_add_u32 s31, s31, s40")
    a(f"s_mul_i32 s31, s31, {7*9216}")
    a("v_mul_u32_u24 v2, 57, v1")
    a("v_lshrrev_b32 v2, 9, v2")
    a("v_mul_u32_u24 v3, 9, v2")
    a("v_sub_u32 v3, v1, v3")
    a("v_mul_u32_u24 v2, 9216, v2")
    a("v_lshlrev_b32 v3, 7, v3")
    a("v_add_u32 v2, v2, v3")
    a("s_waitcnt lgkmcnt(0)")
    a.srd(24, 10, 128*128, WS_FL)
    a("s_cmp_lg_u32 s2, 0")
    a("s_cbranch_scc1 L_fr_pf1")
    a("v_lshlrev_b32 v4, 7, v0")
    a("v_mov_b32 v5, 0")
    a("buffer_store_dword v5, v4, s[24:27], 0 offen")
    a.label("L_fr_pf1")
    for m in range(2):
        a(f"s_add_u32 s{12+4*m}, s{4+2*m}, s30")
        a(f"s_addc_u32 s{13+4*m}, s{5+2*m}, 0")
        a(f"s_sub_u32 s{14+4*m}, {SZ_W}, s30")
        a(f"s_mov_b32 s{15+4*m}, 0x00020000")
    for r in range(0 if 'nofpf' in FL else (3 if 'fpf3' in FL else (2 if 'fpf2' in FL else 1))):
        a(f"buffer_load_dword v{8+2*r}, v2, s[12:15], s31 offen")
        a(f"buffer_load_dword v{9+2*r}, v2, s[16:19], s31 offen")
        a(f"s_add_u32 s31, s31, {32*7*9216}")
    if 'ssmfront' in FL:
        a.srd(20, 8, SZ_SD)
        a("s_mov_b32 s31, s2")
        a("s_lshl_b32 s31, s31, 2")
        a("s_add_u32 s31, s31, s40")
        a("s_lshl_b32 s31, s31, 13")
        a("v_lshlrev_b32 v3, 7, v1")
        a("buffer_load_dword v16, v3, s[20:23], s31 offen")
        a(f"s_add_u32 s31, s31, {256*8192}")
        a("buffer_load_dword v17, v3, s[20:23], s31 offen")
    a("s_endpgm")
    a.label("L_fr_kv")
    a("s_load_dwordx4 s[8:11], s[0:1], 8")
    a("s_load_dwordx2 s[12:13], s[0:1], 24")
    a("s_load_dwordx2 s[14:15], s[0:1], 96")
    a("s_waitcnt lgkmcnt(0)")
    a.srd(16, 8, SZ_SD)
    a.srd(20, 10, SZ_SD)
    a.srd(24, 12, D * 8)
    a.srd(28, 14, SZ_SD, WS_KVT)
    a("s_sub_u32 s3, s2, 192")
    a("s_and_b32 s32, s3, 31")
    a("s_lshr_b32 s33, s3, 5")
    a("v_lshrrev_b32 v1, 3, v0")
    a("v_and_b32 v2, 7, v0")
    a("s_lshl_b32 s34, s32, 6")
    a("v_lshlrev_b32 v3, 1, v1")
    a("v_add_u32 v3, s34, v3")
    a("s_lshl_b32 s35, s33, 7")
    a("v_lshlrev_b32 v4, 4, v2")
    a("v_add_u32 v4, s35, v4")
    a("v_mul_u32_u24 v5, 1152, v3")
    a("v_add_u32 v5, v5, v4")
    for r in range(5):
        a(f"v_add_u32 v{6+r}, {(r-3)*1152 & 0xffffffff}, v5")
    for r in range(5):
        a(f"buffer_load_dwordx4 v[{12+4*r}:{15+4*r}], v{6+r}, s[16:19], 0 offen")
    a("buffer_load_dwordx4 v[32:35], v5, s[20:23], 0 offen")
    a("buffer_load_dwordx4 v[36:39], v5, s[20:23], 0 offen offset:1152")
    a("v_lshlrev_b32 v11, 2, v4")
    for i in range(4):
        a(f"buffer_load_dwordx4 v[{40+4*i}:{43+4*i}], v11, s[24:27], 0 offen offset:{16*i}")
    a("v_mul_u32_u24 v56, 1088, v2")
    a("v_sub_u32 v57, 31, v1")
    a("v_lshlrev_b32 v57, 2, v57")
    a("v_add_u32 v56, v56, v57")
    a("s_waitcnt vmcnt(0)")
    for c in range(8):
        w, hi = c >> 1, c & 1
        up = unpack_hi if hi else unpack_lo
        for r in range(5):
            up(a, 60 + r, 12 + 4*r + w)
        up(a, 65, 32 + w); up(a, 66, 36 + w)
        unpack_lo(a, 67, 40 + 2*c); unpack_hi(a, 68, 40 + 2*c)
        unpack_lo(a, 69, 41 + 2*c); unpack_hi(a, 70, 41 + 2*c)
        for step, j in enumerate([3, 2, 1, 0]):
            kk0 = 60 + (3 - j); kk1 = kk0 + 1
            a(f"v_mul_f32 v71, v{kk0}, v{67+j}")
            a(f"v_mul_f32 v72, v{kk1}, v{67+j}")
            a("v_cvt_pk_bf16_f32 v73, v71, v72")
            if step == 0:
                unpack_lo(a, 74, 73); unpack_hi(a, 75, 73)
            else:
                unpack_lo(a, 71, 73); unpack_hi(a, 72, 73)
                a("v_add_f32 v74, v74, v71")
                a("v_add_f32 v75, v75, v72")
                a("v_cvt_pk_bf16_f32 v73, v74, v75")
                unpack_lo(a, 74, 73); unpack_hi(a, 75, 73)
        a("v_mul_f32 v74, v74, v65")
        a("v_mul_f32 v75, v75, v66")
        a("v_cvt_pk_bf16_f32 v73, v75, v74")
        a(f"ds_write_b32 v56, v73 offset:{136*c}")
    a("s_waitcnt lgkmcnt(0)")
    a("s_barrier")
    a("v_lshrrev_b32 v1, 2, v0")
    a("v_and_b32 v2, 3, v0")
    a("v_mul_u32_u24 v3, 136, v1")
    a("v_lshlrev_b32 v4, 5, v2")
    a("v_add_u32 v3, v3, v4")
    for m in range(4):
        a(f"ds_read_b64 v[{8+2*m}:{9+2*m}], v3 offset:{8*m}")
    a("s_lshl_b32 s36, s33, 18")
    a("s_lshl_b32 s37, s32, 7")
    a("s_sub_u32 s36, s36, s37")
    a("s_add_u32 s36, s36, 3968")
    a("v_lshlrev_b32 v5, 12, v1")
    a("v_add_u32 v5, v5, v4")
    a("v_add_u32 v5, s36, v5")
    a("s_waitcnt lgkmcnt(0)")
    a("buffer_store_dwordx4 v[8:11], v5, s[28:31], 0 offen")
    a("buffer_store_dwordx4 v[12:15], v5, s[28:31], 0 offen offset:16")
    a.label("L_fr_end")
    a("s_endpgm")
    return desc("front_kernel", 128)

STAGE = 36864
NST = 4
PD = 5

def gemm_setup_dma(a, row_bytes, vD, sW, sH, perm):
    a("s_and_b32 s41, s40, 3")
    a("s_lshr_b32 s42, s40, 2")
    a("s_mul_i32 s43, s42, 18432")
    a("s_lshl_b32 s44, s41, 12")
    a(f"s_add_u32 s{sW}, s43, s44")
    a("s_lshl_b32 s44, s41, 9")
    a("s_add_u32 s44, s44, 16384")
    a(f"s_add_u32 s{sH}, s43, s44")
    a("s_movk_i32 s45, 3641")
    for i in range(5):
        if i < 4:
            a("s_lshl_b32 s44, s41, 8")
            a(f"s_add_u32 s44, s44, {64*i}")
        else:
            a("s_lshl_b32 s44, s41, 5")
            a("s_add_u32 s44, s44, 1024")
        a("v_add_u32 v17, s44, v1")
        a("v_mul_lo_u32 v18, v17, s45")
        a("v_lshrrev_b32 v18, 16, v18")
        a("v_mul_u32_u24 v19, 18, v18")
        a("v_sub_u32 v19, v17, v19")
        if perm:
            a("v_lshrrev_b32 v17, 4, v18")
            a("v_and_b32 v17, 1, v17")
            a("v_lshlrev_b32 v17, 2, v17")
            a("v_xor_b32 v18, v18, v17")
        a(f"v_mul_u32_u24 v18, {row_bytes}, v18")
        a("v_lshlrev_b32 v19, 4, v19")
        a(f"v_add_u32 v{vD+i}, v18, v19")

def gemm_dma(a, j, vD, sW, sH, srdW, kstep_bytes):
    st = j % NST
    a(f"s_mov_b32 s46, {j*kstep_bytes}")
    for i in range(4):
        a(f"s_add_u32 m0, s{sW}, {st*STAGE + 1024*i}")
        a("s_nop 0")
        a.vmem(f"buffer_load_dwordx4 v{vD+i}, s[{srdW}:{srdW+3}], s46 offen lds", f"D{j}")
    a(f"s_add_u32 m0, s{sH}, {st*STAGE}")
    a("s_mov_b32 exec_hi, 0")
    a.vmem(f"buffer_load_dwordx4 v{vD+4}, s[{srdW}:{srdW+3}], s46 offen lds", f"D{j}")
    a("s_mov_b32 exec_hi, -1")

def gemm_loop(a, units, NU, NAB, w_reads, mfmas, a_loads, dma, early, late=None, NJ=9, NS=4, PD=PD, hooks=None):
    a.wait_vm("A0")
    a("s_barrier")
    a.stamp(2)
    for U in range(PD):
        w_reads(U)
    bg = []
    spread = 'nospread' not in FL
    every = 2 if NU > 20 else 1
    for U, un in enumerate(units):
        j = un[0]; u = U % NU
        if bg and U % every == 0: a.emit_chunk(bg.pop(0))
        if U == NU*4 and not ('st2' in FL and NJ != 9): a.stamp(3)
        if u == 0 and j > 0:
            a.wait_vm(f"A{j}")
            if j + NAB - 1 <= NJ - 1:
                if spread: bg += a.capture(lambda: a_loads(j + NAB - 1))
                else: a_loads(j + NAB - 1)
        if j == 0 and u in early:
            early[u]()
        if j == NJ - 3 and u == 16 and late: late()
        if hooks and (j, u) in hooks: hooks[(j, u)]()
        if u == NU - PD and j < NJ - 1:
            a.wait_vm(f"D{j+1}")
            a("s_barrier")
            if j + NS - 1 <= NJ - 1:
                if spread: bg += a.capture(lambda: dma(j + NS - 1))
                else: dma(j + NS - 1)
        if U + PD < len(units):
            w_reads(U + PD)
        a.wait_lg(f"W{U}")
        mfmas(U)

CVB = 3 * 36864
G1_LDS = CVB + 4 * CV_SZ
def conv_head_loads(a):
    a("s_lshr_b32 s80, s40, 1")
    a("s_lshl_b32 s81, s80, 8")
    a("s_add_u32 s81, s81, s2")
    a("s_cmp_lt_u32 s81, 576")
    a("s_cselect_b32 s82, 1, 0")
    a("s_min_u32 s81, s81, 575")
    a(f"s_mul_i32 s83, s80, {CV_SZ}")
    a(f"s_add_u32 s83, s83, {CVB}")
    a("s_lshl_b32 s84, s81, 12")
    a.srd(88, 72, SZ_SD)
    a.srd(92, 74, D*2)
    a.srd(96, 8, SZ_SD, WS_KVT)
    a("v_lshlrev_b32 v212, 4, v1")
    for i in range(4):
        a.vmem(f"buffer_load_dwordx4 v[{84+8*i}:{87+8*i}], v212, s[88:91], s84 offen offset:{1024*i}", "CK")
        a.vmem(f"buffer_load_dword v{88+8*i}, v212, s[88:91], s84 offen offset:{1024*i+16}", "CK")
    for i in range(4):
        a(f"s_add_u32 m0, s83, {CV_U + 1024*i}")
        a(f"s_add_u32 s85, s84, {1024*i}")
        a.vmem("buffer_load_dwordx4 v212, s[96:99], s85 offen lds", "CU")
    a("s_lshl_b32 s85, s81, 1")
    a("v_mov_b32 v213, s85")
    a.vmem("buffer_load_ushort v213, v213, s[92:95], 0 offen", "CU")

def conv_head_compute(a):
    Z = 216
    for i in range(4): a(f"v_mov_b32 v{Z+i}, 0")
    a("v_add_u32 v214, s83, v212")
    a("s_mov_b32 exec_hi, 0")
    a(f"ds_write_b128 v214, v[{Z}:{Z+3}] offset:{CV_U+4096}")
    a("s_mov_b32 exec_lo, 3")
    a(f"ds_write_b128 v214, v[{Z}:{Z+3}]")
    a("s_mov_b32 exec_lo, 1")
    a(f"ds_write_b128 v214, v[{Z}:{Z+3}] offset:{CV_O}")
    a("s_mov_b64 exec, -1")
    a("v_and_b32 v220, 15, v1")
    a("v_lshrrev_b32 v221, 4, v1")
    a("v_lshlrev_b32 v222, 1, v220")
    a("v_lshlrev_b32 v223, 4, v221")
    a("v_add_u32 v222, v222, v223")
    a("v_and_b32 v224, 1, v220")
    a("v_cmp_eq_u32 vcc, 1, v224")
    a(f"v_mov_b32 v224, {CV_O}")
    a("s_nop 1")
    a("v_cndmask_b32 v224, v224, 2, vcc")
    a("v_add3_u32 v222, v222, v224, s83")
    a("v_lshlrev_b32 v225, 5, v220")
    a("v_sub_u32 v225, v223, v225")
    a(f"v_add_u32 v225, {CV_U+480}, v225")
    a("v_add_u32 v225, s83, v225")
    KA = [226, 227, 228, 229, 230]
    for i in range(5):
        a(f"v_add_u32 v{KA[i]}, {960*i}, v222")
    ACC = 52; FA = 84; FB = 116
    for i in range(16):
        a(f"v_mov_b32 v{ACC+i}, 0")
    a.wait_vm("CK")
    for i in range(4):
        b = 84 + 8*i
        a(f"ds_write_b128 v214, v[{b}:{b+3}] offset:{32+1024*i}")
        for t in range(4):
            a(f"v_alignbit_b32 v{232+4*(i&1)+t}, v{b+t+1}, v{b+t}, 16")
        a(f"ds_write_b128 v214, v[{232+4*(i&1)}:{235+4*(i&1)}] offset:{CV_O+32+1024*i}")
        if i == 0:
            a(f"v_lshlrev_b32 v{Z+3}, 16, v84")
            a("s_mov_b64 exec, 1")
            a(f"ds_write_b128 v214, v[{Z}:{Z+3}] offset:{CV_O+16}")
            a("s_mov_b64 exec, -1")
    a.wait_vm("CU")
    a("s_waitcnt lgkmcnt(0)")
    a("s_cmp_eq_u32 s82, 0")
    a("s_cbranch_scc1 L_cvh_epi")
    a("s_and_b32 s85, s40, 1")
    a("s_cmp_eq_u32 s85, 1")
    a("s_cbranch_scc1 L_cvh_p1")
    TS = [[7, 4, 1, 0], [6, 5, 3, 2]]
    for part in range(2):
        if part == 1: a.label("L_cvh_p1")
        ts = TS[part]; mx = max(ts)
        def reads(rho):
            o = 64 * (rho & 1)
            for pi in range(mx + 1):
                p = 8*pi + rho
                r = FA+o+4*pi
                a(f"ds_read2_b32 v[{r}:{r+1}], v{KA[p//15]} offset0:{16*(p%15)} offset1:{16*(p%15)+1}")
                a(f"ds_read2_b32 v[{r+2}:{r+3}], v{KA[p//15]} offset0:{16*(p%15)+2} offset1:{16*(p%15)+3}")
                w = 8*pi - rho
                a(f"ds_read_b128 v[{FB+o+4*pi}:{FB+o+4*pi+3}], v225 offset:{64*(56-w)}")
        reads(0)
        for rho in range(8):
            a("s_waitcnt lgkmcnt(0)")
            if rho < 7:
                reads(rho + 1)
            o = 64 * (rho & 1)
            work = [[(ti, t, pi) for pi in range(t + 1)] for ti, t in enumerate(ts)]
            while any(work):
                for wl in work:
                    if wl:
                        ti, t, pi = wl.pop(0)
                        tau = t - pi
                        a(f"v_mfma_f32_16x16x32_bf16 v[{ACC+4*ti}:{ACC+4*ti+3}], v[{FA+o+4*pi}:{FA+o+4*pi+3}], v[{FB+o+4*tau}:{FB+o+4*tau+3}], v[{ACC+4*ti}:{ACC+4*ti+3}]")
        for ti, t in enumerate(ts):
            a(f"s_mov_b32 s{76+ti}, {512*t}")
        if part == 0: a("s_branch L_cvh_epi")
    a.label("L_cvh_epi")
    a.srd(88, 8, SZ_SD, WS_Y2T)
    a("s_cmp_eq_u32 s82, 0")
    a("s_cselect_b32 s84, 0x7f000000, s84")
    for ti in range(4):
        a(f"s_cselect_b32 s{76+ti}, 0, s{76+ti}")
    a("v_lshlrev_b32 v213, 16, v213")
    a("v_lshlrev_b32 v224, 5, v220")
    a("v_lshlrev_b32 v226, 3, v221")
    a("v_add_u32 v224, v224, v226")
    a(f"v_sub_u32 v226, {CV_U+4088}, v224")
    a("v_add_u32 v226, s83, v226")
    a("v_add_u32 v224, s84, v224")
    for ti in range(4):
        a(f"v_subrev_u32 v227, s{76+ti}, v226")
        a(f"ds_read_b64 v[{84+2*ti}:{85+2*ti}], v227")
    a("s_waitcnt lgkmcnt(0)")
    for ti in range(4):
        y = ACC + 4*ti; kq = 84 + 2*ti; T = 100 + 8*(ti & 1)
        unpack_hi(a, T, kq+1); unpack_lo(a, T+1, kq+1); unpack_hi(a, T+2, kq); unpack_lo(a, T+3, kq)
        for i in range(4):
            a(f"v_mul_f32 v{T+i}, v{T+i}, v213")
        a(f"v_cvt_pk_bf16_f32 v{T+4}, v{T}, v{T+1}")
        a(f"v_cvt_pk_bf16_f32 v{T+5}, v{T+2}, v{T+3}")
        a(f"v_cvt_pk_bf16_f32 v{T+6}, v{y}, v{y+1}")
        a(f"v_cvt_pk_bf16_f32 v{T+7}, v{y+2}, v{y+3}")
        unpack_lo(a, T, T+4); unpack_hi(a, T+1, T+4); unpack_lo(a, T+2, T+5); unpack_hi(a, T+3, T+5)
        unpack_lo(a, y, T+6); unpack_hi(a, y+1, T+6); unpack_lo(a, y+2, T+7); unpack_hi(a, y+3, T+7)
        for i in range(4):
            a(f"v_add_f32 v{T+i}, v{T+i}, v{y+i}")
        a(f"v_cvt_pk_bf16_f32 v{240+2*ti}, v{T}, v{T+1}")
        a(f"v_cvt_pk_bf16_f32 v{241+2*ti}, v{T+2}, v{T+3}")
        a.vmem(f"buffer_store_dwordx2 v[{240+2*ti}:{241+2*ti}], v224, s[88:91], s{76+ti} offen", "CS")

def gen_gemm1(a):
    a.kernel_begin("gemm1_kernel")
    a("s_cmp_ge_u32 s2, 256")
    a("s_cbranch_scc1 L_g1_end")
    a.stamp(0)
    a("s_load_dwordx4 s[4:7], s[0:1], 56")
    a("s_load_dwordx2 s[8:9], s[0:1], 96")
    a("s_load_dwordx4 s[72:75], s[0:1], 32")
    a("s_load_dwordx2 s[86:87], s[0:1], 72")
    a("v_and_b32 v1, 63, v0")
    a("v_lshrrev_b32 v2, 6, v0")
    a("s_nop 0")
    a("v_readfirstlane_b32 s40, v2")
    a("s_and_b32 s30, s2, 7")
    a("s_lshr_b32 s31, s2, 3")
    a("s_lshl_b32 s30, s30, 2")
    a("s_and_b32 s32, s31, 3")
    a("s_add_u32 s30, s30, s32")
    a("s_lshr_b32 s31, s31, 2")
    a("s_mul_i32 s33, s30, 288")
    vD, vA, vB = 2, 7, 9
    AB, WB, ACC = 20, 84, 108
    NAB = 4
    gemm_setup_dma(a, 9216, vD, 34, 35, True)
    a("s_lshl_b32 s36, s31, 4")
    a("s_lshl_b32 s37, s40, 1")
    a("s_add_u32 s36, s36, s37")
    a("s_mul_i32 s37, s36, 18432")
    a("v_lshlrev_b32 v17, 4, v1")
    a(f"v_add_u32 v{vA}, s37, v17")
    a(f"v_add_u32 v{vA+1}, 18432, v{vA}")
    a("s_waitcnt lgkmcnt(0)")
    a("s_cmp_ge_u32 s40, 4")
    a("s_cselect_b32 s10, s6, s4")
    a("s_cselect_b32 s11, s7, s5")
    a("s_add_u32 s12, s10, s33")
    a("s_addc_u32 s13, s11, 0")
    a(f"s_sub_u32 s14, {SZ_W}, s33")
    a("s_mov_b32 s15, 0x00020000")
    a.srd(16, 8, SZ_SD, WS_XN)
    a.srd(20, 8, SZ_H, WS_H)
    def a_loads(j):
        b = AB + 16 * (j % NAB)
        a(f"s_mov_b32 s47, {2048*j}")
        for t in range(2):
            for kh in range(2):
                r = b + 8*t + 4*kh
                a.vmem(f"buffer_load_dwordx4 v[{r}:{r+3}], v{vA+t}, s[16:19], s47 offen offset:{1024*kh}", f"A{j}")
    KB = 64 * 9216
    dma = lambda j: gemm_dma(a, j, vD, 34, 35, 12, KB)
    if 'cvhead' in FL: conv_head_loads(a)
    dma(0); a_loads(0); dma(1); a_loads(1)
    def g1_pf():
        a("s_and_b32 s41, s2, 7")
        a("s_mul_i32 s41, s41, 1152")
        a("s_add_u32 s24, s10, s41")
        a("s_addc_u32 s25, s11, 0")
        a(f"s_sub_u32 s26, {SZ_W}, s41")
        a("s_mov_b32 s27, 0x00020000")
        a("s_lshr_b32 s41, s2, 3")
        a("v_mul_u32_u24 v17, 3641, v1")
        a("v_lshrrev_b32 v17, 16, v17")
        a("v_mul_u32_u24 v18, 18, v17")
        a("v_sub_u32 v18, v1, v18")
        a("v_lshlrev_b32 v17, 5, v17")
        a("v_add_u32 v17, s41, v17")
        a("v_mul_u32_u24 v17, 9216, v17")
        a("v_lshlrev_b32 v18, 6, v18")
        a("v_add_u32 v17, v17, v18")
        a("s_and_b32 s42, s40, 3")
        a(f"s_mul_i32 s43, s42, {3*32*9216}")
        a(f"s_add_u32 s43, s43, {4*32*9216}")
        a.vmem("buffer_load_dword v0, v17, s[24:27], s43 offen", "PF")
        a("s_and_b32 s42, s41, 3")
        a("s_lshl_b32 s42, s42, 2")
        a("s_lshl_b32 s44, s31, 4")
        a("s_add_u32 s42, s42, s44")
        a("s_and_b32 s44, s40, 1")
        a("s_lshl_b32 s44, s44, 1")
        a("s_add_u32 s42, s42, s44")
        a("s_mul_i32 s42, s42, 18432")
        a("s_lshr_b32 s44, s40, 1")
        a("s_lshl_b32 s44, s44, 11")
        a("s_add_u32 s42, s42, s44")
        a("s_add_u32 s42, s42, 4096")
        a("v_lshrrev_b32 v18, 5, v1")
        a("v_mul_u32_u24 v18, 18432, v18")
        a("v_and_b32 v19, 31, v1")
        a("v_lshlrev_b32 v19, 6, v19")
        a("v_add_u32 v18, v18, v19")
        a.vmem("buffer_load_dword v0, v18, s[16:19], s42 offen", "PF")
        a(f"s_add_u32 s43, s43, {12*32*9216}")
        a.vmem("buffer_load_dword v0, v17, s[24:27], s43 offen", "PF")
        a("s_add_u32 s42, s42, 8192")
        a("s_cmp_ge_u32 s40, 6")
        a("s_cselect_b32 s42, 0x7f000000, s42")
        a.vmem("buffer_load_dword v0, v18, s[16:19], s42 offen", "PF")
    if 'cvhead' in FL: conv_head_compute(a)
    a("v_lshrrev_b32 v17, 4, v1")
    a("v_lshrrev_b32 v18, 2, v1")
    a("v_and_b32 v18, 3, v18")
    a("v_and_b32 v19, 1, v17")
    a("v_lshlrev_b32 v17, 4, v17")
    a("v_add_u32 v17, v17, v18")
    a("v_lshlrev_b32 v19, 2, v19")
    a("v_add_u32 v18, v17, v19")
    a("v_xor_b32 v19, 4, v19")
    a("v_add_u32 v19, v17, v19")
    a("v_mul_u32_u24 v18, 288, v18")
    a("v_mul_u32_u24 v19, 288, v19")
    a("v_and_b32 v17, 3, v1")
    a("v_lshlrev_b32 v17, 3, v17")
    a(f"v_add_u32 v{vB}, v18, v17")
    a(f"v_add_u32 v{vB+1}, v19, v17")
    for st in range(1, NST):
        a(f"v_add_u32 v{vB+2*st}, {st*STAGE}, v{vB}")
        a(f"v_add_u32 v{vB+2*st+1}, {st*STAGE}, v{vB+1}")
    for i in range(144):
        a(f"v_mov_b32 v{ACC+i}, 0")
    a.stamp(1)
    NU = 36
    units = [(j, kh, mat, c) for j in range(9) for kh in range(2) for mat in range(2) for c in range(9)]
    def w_reads(U):
        j, kh, mat, c = units[U]
        st = j % NST
        r = WB + 4 * (U % (PD + 1))
        off = mat*18432 + 8*kh*288 + c*32
        a.lds(f"ds_read_b64_tr_b16 v[{r}:{r+1}], v{vB+2*st} offset:{off}", f"W{U}")
        a.lds(f"ds_read_b64_tr_b16 v[{r+2}:{r+3}], v{vB+2*st+1} offset:{off}", f"W{U}")
    def mfmas(U):
        j, kh, mat, c = units[U]
        r = WB + 4 * (U % (PD + 1))
        for t in range(2):
            ac = ACC + 4 * (t*18 + mat*9 + c)
            ar = AB + 16*(j % NAB) + 8*t + 4*kh
            a(f"v_mfma_f32_16x16x32_bf16 v[{ac}:{ac+3}], v[{r}:{r+3}], v[{ar}:{ar+3}], v[{ac}:{ac+3}]")
    def w2_pf():
        a("s_bfe_u32 s41, s2, 0x10002")
        if 'swap' in FL: a("s_xor_b32 s41, s41, 1")
        a("s_cmp_eq_u32 s41, 0")
        a(f"s_cselect_b32 s41, {128*int(os.environ.get('NJP','15'))*1152}, 0")
        a(f"s_mov_b32 s26, {128*int(os.environ.get('NJP','15'))*1152}")
        a(f"s_cselect_b32 s26, {128*(36-int(os.environ.get('NJP','15')))*1152}, s26")
        a("s_add_u32 s24, s86, s41")
        a("s_addc_u32 s25, s87, 0")
        a("s_mov_b32 s27, 0x00020000")
        a("s_and_b32 s41, s2, 0xf8")
        a("s_add_u32 s41, s41, s40")
        a("s_lshl_b32 s41, s41, 13")
        a(f"s_add_u32 s42, s41, {256*8192}")
        a("v_lshlrev_b32 v17, 7, v1")
        a.vmem("buffer_load_dword v0, v17, s[24:27], s41 offen", "PF2")
        a.vmem("buffer_load_dword v0, v17, s[24:27], s42 offen", "PF2")
        if 'ssmfront' in FL: return
        a.srd(76, 72, SZ_SD)
        a("s_lshl_b32 s41, s2, 3")
        a("s_add_u32 s41, s41, s40")
        a("s_mul_i32 s41, s41, 1152")
        a("s_mov_b32 exec_lo, 0x1ff")
        a("s_mov_b32 exec_hi, 0")
        a.vmem("buffer_load_dword v0, v17, s[76:79], s41 offen", "PF2")
        a("s_mov_b64 exec, -1")
    gemm_loop(a, units, NU, NAB, w_reads, mfmas, a_loads, dma,
              {2: lambda: dma(2), 8: lambda: a_loads(2), 14: (g1_pf if 'g1pf' in FL else (lambda: None)), 22: lambda: a_loads(3)}, late=(None if 'nopf2' in FL else w2_pf))
    a.stamp(4)
    a("s_mul_i32 s37, s36, 147456")
    a("s_mul_i32 s38, s30, 9")
    a("s_and_b32 s39, s38, 1")
    a("s_lshr_b32 s38, s38, 1")
    a("s_lshl_b32 s38, s38, 10")
    a("s_add_u32 s37, s37, s38")
    a("v_lshlrev_b32 v17, 4, v1")
    a("v_add_u32 v2, s37, v17")
    a("v_add_u32 v3, 147456, v2")
    a("s_mov_b32 s46, 0xbfb8aa3b")
    a("s_mov_b32 s47, 0xbfb8aa3b")
    a("s_mov_b32 s48, 1.0")
    a("s_mov_b32 s49, 1.0")
    a("s_movk_i32 s45, 4096")
    a("s_cmp_eq_u32 s39, 0")
    a("s_cbranch_scc0 L_g1_epi_odd")
    def group(t, c, T, O):
        g = ACC + 4*(t*18 + c); u_ = ACC + 4*(t*18 + 9 + c)
        a(f"v_cvt_pk_bf16_f32 v{T}, v{g}, v{g+1}")
        a(f"v_cvt_pk_bf16_f32 v{T+1}, v{g+2}, v{g+3}")
        a(f"v_cvt_pk_bf16_f32 v{T+2}, v{u_}, v{u_+1}")
        a(f"v_cvt_pk_bf16_f32 v{T+3}, v{u_+2}, v{u_+3}")
        unpack_lo(a, g, T); unpack_hi(a, g+1, T); unpack_lo(a, g+2, T+1); unpack_hi(a, g+3, T+1)
        a(f"v_pk_mul_f32 v[{T+4}:{T+5}], v[{g}:{g+1}], s[46:47]")
        a(f"v_pk_mul_f32 v[{T+6}:{T+7}], v[{g+2}:{g+3}], s[46:47]")
        unpack_lo(a, u_, T+2); unpack_hi(a, u_+1, T+2)
        for i in range(4):
            a(f"v_exp_f32 v{T+4+i}, v{T+4+i}")
        unpack_lo(a, u_+2, T+3); unpack_hi(a, u_+3, T+3)
        a(f"v_pk_add_f32 v[{T+4}:{T+5}], v[{T+4}:{T+5}], s[48:49]")
        a(f"v_pk_add_f32 v[{T+6}:{T+7}], v[{T+6}:{T+7}], s[48:49]")
        for i in range(4):
            a(f"v_rcp_f32 v{T+4+i}, v{T+4+i}")
        a("s_nop 0")
        a(f"v_pk_mul_f32 v[{T+4}:{T+5}], v[{T+4}:{T+5}], v[{g}:{g+1}]")
        a(f"v_pk_mul_f32 v[{T+6}:{T+7}], v[{T+6}:{T+7}], v[{g+2}:{g+3}]")
        a(f"v_cvt_pk_bf16_f32 v{T}, v{T+4}, v{T+5}")
        a(f"v_cvt_pk_bf16_f32 v{T+1}, v{T+6}, v{T+7}")
        unpack_lo(a, T+4, T); unpack_hi(a, T+5, T); unpack_lo(a, T+6, T+1); unpack_hi(a, T+7, T+1)
        a(f"v_pk_mul_f32 v[{T+4}:{T+5}], v[{T+4}:{T+5}], v[{u_}:{u_+1}]")
        a(f"v_pk_mul_f32 v[{T+6}:{T+7}], v[{T+6}:{T+7}], v[{u_+2}:{u_+3}]")
        a(f"v_cvt_pk_bf16_f32 v{O}, v{T+4}, v{T+5}")
        a(f"v_cvt_pk_bf16_f32 v{O+1}, v{T+6}, v{T+7}")
    HF = ' sc1' if 'hsc1' in FL else (' nt' if 'hnt' in FL else (' sc0 sc1' if 'hsc01' in FL else ''))
    for par in range(2):
        if par == 1: a.label("L_g1_epi_odd")
        n = 0
        for t in range(2):
            for c in range(9):
                T2 = c + par
                m, hi = T2 >> 1, T2 & 1
                O = 52 + 4 * ((t*5 + m) & 3)
                group(t, c, 20 + 8*(n & 3), O + 2*hi); n += 1
                so, imm = ("0", m*1024) if m < 4 else ("s45", 0)
                if hi == 1 and c > 0:
                    a(f"buffer_store_dwordx4 v[{O}:{O+3}], v{2+t}, s[20:23], {so} offen offset:{imm}{HF}")
                elif hi == 1 and c == 0:
                    a(f"buffer_store_dwordx2 v[{O+2}:{O+3}], v{2+t}, s[20:23], {so} offen offset:{imm+8}{HF}")
                elif hi == 0 and c == 8:
                    a(f"buffer_store_dwordx2 v[{O}:{O+1}], v{2+t}, s[20:23], {so} offen offset:{imm}{HF}")
        if par == 0: a("s_branch L_g1_epi_done")
    a.label("L_g1_epi_done")
    a.stamp(5)
    a.stamp_flush(6, 8, 0x8000000)
    a.label("L_g1_end")
    a("s_endpgm")
    return desc("gemm1_kernel", 252, 100)

G2_ST = 24576
G2_NS = 5
G2_NJP = int(os.environ.get('NJP', '15')); G2_NJC = 36 - G2_NJP
G2_HP = int(os.environ.get('HP', '3')); G2_HL = int(os.environ.get('HL', '2'))
G2_Y = G2_NS * G2_ST
G2_LDS = G2_Y + 24576
def gen_gemm2(a):
    a.kernel_begin("gemm2_kernel")
    a("s_cmp_ge_u32 s2, 256")
    a("s_cbranch_scc1 L_g2_end")
    a("s_cmp_lt_u32 s2, 64")
    a("s_cbranch_scc1 L_g2_pf")
    a("s_sub_u32 s2, s2, 64")
    a.stamp(0)
    a("s_load_dwordx2 s[4:5], s[0:1], 72")
    a("s_load_dwordx2 s[6:7], s[0:1], 0")
    a("s_load_dwordx2 s[8:9], s[0:1], 96")
    a("s_load_dwordx2 s[10:11], s[0:1], 80")
    a("v_and_b32 v1, 63, v0")
    a("v_lshrrev_b32 v2, 6, v0")
    a("s_nop 0")
    a("v_readfirstlane_b32 s40, v2")
    a("s_and_b32 s30, s2, 7")
    a("s_lshr_b32 s31, s2, 3")
    a("s_mul_i32 s32, s31, 43")
    a("s_lshr_b32 s32, s32, 8")
    a("s_mul_i32 s33, s32, 6")
    a("s_sub_u32 s31, s31, s33")
    a("s_lshr_b32 s29, s30, 2")
    if 'swap' in FL: a("s_xor_b32 s29, s29, 1")
    a("s_and_b32 s30, s30, 3")
    a("s_lshl_b32 s30, s30, 2")
    a("s_add_u32 s32, s32, s30")
    a("s_and_b32 s41, s40, 3")
    a("s_lshr_b32 s42, s40, 2")
    a("s_cmp_eq_u32 s29, 0")
    a(f"s_cselect_b32 s28, {128*G2_NJP}, 0")
    a("s_mul_i32 s33, s28, 1152")
    a("s_mul_i32 s34, s31, 192")
    a("s_add_u32 s33, s33, s34")
    a("s_mul_i32 s36, s40, 3072")
    vD, vA, vB = 2, 5, 8
    AB, WB, ACC = 20, 100, 124
    NAB, PD2 = 5, 5
    a("s_movk_i32 s45, 5462")
    a("s_mul_i32 s44, s40, 192")
    for i in range(3):
        a(f"s_add_u32 s43, s44, {64*i}")
        a("v_add_u32 v17, s43, v1")
        a("v_mul_lo_u32 v18, v17, s45")
        a("v_lshrrev_b32 v18, 16, v18")
        a("v_mul_u32_u24 v19, 12, v18")
        a("v_sub_u32 v19, v17, v19")
        a("v_lshrrev_b32 v17, 1, v19")
        a("v_bfe_u32 v16, v18, 2, 1")
        a("v_sub_u32 v17, v17, v16")
        a("v_cmp_gt_i32 vcc, 0, v17")
        a("v_and_b32 v19, 1, v19")
        a("v_lshlrev_b32 v19, 4, v19")
        a("v_cndmask_b32 v17, v17, 5, vcc")
        a("v_lshlrev_b32 v17, 5, v17")
        a("v_mul_u32_u24 v18, 1152, v18")
        a(f"v_add3_u32 v{vD+i}, v17, v18, v19")
    a("s_lshl_b32 s38, s32, 3")
    a("s_lshl_b32 s39, s41, 1")
    a("s_add_u32 s38, s38, s39")
    a("s_mul_i32 s34, s38, 147456")
    a("s_lshl_b32 s35, s28, 5")
    a("s_add_u32 s34, s34, s35")
    a("s_lshl_b32 s35, s42, 11")
    a("s_add_u32 s34, s34, s35")
    a("v_lshlrev_b32 v17, 4, v1")
    a(f"v_add_u32 v{vA}, s34, v17")
    a(f"v_add_u32 v{vA+1}, 147456, v{vA}")
    a("s_waitcnt lgkmcnt(0)")
    a("s_add_u32 s12, s4, s33")
    a("s_addc_u32 s13, s5, 0")
    a(f"s_sub_u32 s14, {SZ_W}, s33")
    a("s_mov_b32 s15, 0x00020000")
    a.srd(16, 8, SZ_H, WS_H)
    a.srd(20, 8, SZ_SD, WS_Y2T)
    a.srd(24, 8, 2*SZ_SD, WS_XP)
    a.srd(72, 6, SZ_SD)
    a.srd(76, 10, SZ_SD)
    a.srd(84, 8, 96*49152, WS_P)
    a.srd(80, 8, 128*128, WS_FL)
    def a_loads(j):
        b = AB + 16 * (j % NAB)
        a(f"s_mov_b32 s47, {4096*j}")
        for t in range(2):
            for mm in range(2):
                r = b + 8*t + 4*mm
                a.vmem(f"buffer_load_dwordx4 v[{r}:{r+3}], v{vA+t}, s[16:19], s47 offen offset:{1024*mm}", f"A{j}")
    def dma(j):
        st = j % G2_NS
        a(f"s_mov_b32 s46, {j*128*1152}")
        for i in range(3):
            a(f"s_add_u32 m0, s36, {st*G2_ST + 1024*i}")
            a("s_nop 0")
            a.vmem(f"buffer_load_dwordx4 v{vD+i}, s[12:15], s46 offen lds", f"D{j}")
    dma(0); a_loads(0); dma(1); a_loads(1)
    a("v_lshrrev_b32 v17, 2, v1")
    a("v_mul_u32_u24 v17, 192, v17")
    a("v_and_b32 v18, 3, v1")
    a("v_lshlrev_b32 v18, 3, v18")
    a(f"s_mul_i32 s43, s42, {64*192}")
    a("v_add3_u32 v17, v17, v18, s43")
    a("v_bfe_u32 v18, v1, 4, 1")
    a("v_lshlrev_b32 v19, 5, v18")
    a(f"v_add_u32 v{vB}, v17, v19")
    a("v_xor_b32 v18, 1, v18")
    a("v_mul_u32_u24 v18, 160, v18")
    a(f"v_add_u32 v{vB+1}, v17, v18")
    for grp in range(1, 3):
        a(f"v_add_u32 v{vB+2*grp}, {2*grp*G2_ST}, v{vB}")
        a(f"v_add_u32 v{vB+2*grp+1}, {2*grp*G2_ST}, v{vB+1}")
    for i in range(48):
        a(f"v_mov_b32 v{ACC+i}, 0")
    a.stamp(1)
    NU = 12
    PFD = int(os.environ.get('PFD', '8'))
    a("s_lshr_b32 s43, s2, 3")
    a("s_lshl_b32 s43, s43, 2")
    a("s_add_u32 s43, s43, s41")
    a("s_mul_i32 s43, s43, 12")
    a("v_add_u32 v17, s43, v1")
    a("v_lshlrev_b32 v18, 7, v17")
    a("v_lshrrev_b32 v19, 5, v17")
    a("v_mul_u32_u24 v19, 147456, v19")
    a("v_and_b32 v17, 31, v17")
    a("v_lshlrev_b32 v17, 7, v17")
    a("v_add_u32 v19, v19, v17")
    a("s_cmp_eq_u32 s42, 0")
    a("s_cselect_b64 vcc, -1, 0")
    a("s_mul_i32 s43, s28, 1152")
    a("s_add_u32 s92, s4, s43")
    a("s_addc_u32 s93, s5, 0")
    a(f"s_sub_u32 s94, {SZ_W}, s43")
    a("v_cndmask_b32 v247, v19, v18, vcc")
    a("s_and_b32 s44, s2, 3")
    a(f"s_mul_i32 s44, s44, {32*147456}")
    a("s_lshl_b32 s45, s28, 5")
    a("s_add_u32 s44, s44, s45")
    a(f"s_add_u32 s44, s44, {PFD*4096}")
    a("s_cmp_eq_u32 s42, 0")
    a("s_cselect_b32 s92, s92, s16")
    a("s_cselect_b32 s93, s93, s17")
    a("s_cselect_b32 s94, s94, s18")
    a("s_mov_b32 s95, 0x00020000")
    a(f"s_cselect_b32 s90, {PFD*147456}, s44")
    a("s_mov_b32 s91, 4096")
    a("s_cselect_b32 s91, 147456, s91")
    def touch():
        a("s_mov_b32 exec_lo, 0xfff")
        a("s_mov_b32 exec_hi, 0")
        a.vmem("buffer_load_dword v246, v247, s[92:95], s90 offen", "T")
        a("s_mov_b64 exec, -1")
        a("s_add_u32 s90, s90, s91")
    a("s_mul_i32 s43, s40, 6144")
    a("v_lshlrev_b32 v16, 4, v1")
    a("v_add_u32 v14, s43, v16")
    a("s_xor_b32 s44, s40, 4")
    a("s_mul_i32 s44, s44, 6144")
    a("v_add_u32 v7, s44, v16")
    a("s_mul_i32 s44, s32, 6")
    a("s_add_u32 s44, s44, s31")
    a("s_mul_i32 s45, s44, 49152")
    a("v_add_u32 v15, s45, v14")
    a("s_lshl_b32 s48, s44, 7")
    a("s_mov_b32 s49, 1")
    a("s_movk_i32 s88, 4096")
    XR, NR, PR, YL, OF = 172, 184, 196, 220, 232
    a("v_and_b32 v17, 15, v1")
    a("v_lshrrev_b32 v18, 4, v1")
    a("s_add_u32 s43, s38, s42")
    a("s_mul_i32 s43, s43, 18432")
    a("s_mul_i32 s34, s31, 192")
    a("s_add_u32 s34, s34, s43")
    a("v_mul_u32_u24 v19, 1152, v17")
    a(f"v_lshlrev_b32 v{OF}, 3, v18")
    a(f"v_add3_u32 v{OF}, v19, v{OF}, s34")
    a("s_lshl_b32 s43, s43, 1")
    a("s_mul_i32 s34, s31, 6144")
    a("s_add_u32 s43, s43, s34")
    a(f"v_add_u32 v{OF+1}, s43, v16")
    def run_loop(NJ, hooks):
        units = [(j, mm, ct) for j in range(NJ) for mm in range(2) for ct in range(6)]
        def w_reads(U):
            j, mm, ct = units[U]
            st = j % G2_NS
            r = WB + 4 * (U % (PD2 + 1))
            base = vB + 2*(st >> 1) + (0 if ct < 5 else 1)
            off = (st & 1)*G2_ST + 32*mm*192 + (32*ct if ct < 5 else 0)
            a.lds(f"ds_read_b64_tr_b16 v[{r}:{r+1}], v{base} offset:{off}", f"W{U}")
            a.lds(f"ds_read_b64_tr_b16 v[{r+2}:{r+3}], v{base} offset:{off+3072}", f"W{U}")
        def mfmas(U):
            j, mm, ct = units[U]
            r = WB + 4 * (U % (PD2 + 1))
            for t in range(2):
                ac = ACC + 4 * (t*6 + ct)
                ar = AB + 16*(j % NAB) + 8*t + 4*mm
                a(f"v_mfma_f32_16x16x32_bf16 v[{ac}:{ac+3}], v[{r}:{r+3}], v[{ar}:{ar+3}], v[{ac}:{ac+3}]")
        hk = dict(hooks or {})
        if 'coop' in FL:
            for j in range(NJ - PFD):
                hk[(j, 9)] = touch
        gemm_loop(a, units, NU, NAB, w_reads, mfmas, a_loads, dma,
                  {1: lambda: dma(2), 3: lambda: a_loads(2), 4: lambda: dma(3), 5: lambda: a_loads(3), 6: lambda: a_loads(4)},
                  NJ=NJ, NS=G2_NS, PD=PD2, hooks=hk)
    def pofs(i):
        return ("0", 1024*i) if i < 4 else ("s88", 1024*(i-4))
    def exchange():
        a("s_barrier")
        a("s_cmp_lt_u32 s40, 4")
        a(f"s_cbranch_scc1 L_g2_x{exchange.n}a")
        a("s_nop 4")
        for i in range(6):
            a(f"ds_write_b128 v14, v[{ACC+4*i}:{ACC+4*i+3}] offset:{1024*i}")
        for i in range(24):
            a(f"v_mov_b32 v{20+i}, v{ACC+24+i}")
        a(f"s_branch L_g2_x{exchange.n}b")
        a.label(f"L_g2_x{exchange.n}a")
        a("s_nop 4")
        for i in range(6):
            a(f"ds_write_b128 v14, v[{ACC+24+4*i}:{ACC+24+4*i+3}] offset:{1024*i}")
        for i in range(24):
            a(f"v_mov_b32 v{20+i}, v{ACC+i}")
        a.label(f"L_g2_x{exchange.n}b")
        exchange.n += 1
    exchange.n = 0
    a("s_cmp_eq_u32 s29, 0")
    a("s_cbranch_scc1 L_g2_consumer")
    vm_save = list(a.vm)
    run_loop(G2_NJP, None)
    a.stamp(4)
    a.keepbar = True
    exchange()
    a("s_waitcnt lgkmcnt(0)")
    a("s_barrier")
    for i in range(6):
        a(f"ds_read_b128 v[{44+4*i}:{47+4*i}], v7 offset:{1024*i}")
    for i in range(6):
        a(f"s_waitcnt lgkmcnt({5-i})")
        for e in range(4):
            a(f"v_add_f32 v{20+4*i+e}, v{20+4*i+e}, v{44+4*i+e}")
        so, imm = pofs(i)
        a(f"buffer_store_dwordx4 v[{20+4*i}:{23+4*i}], v15, s[84:87], {so} offen offset:{imm} sc1")
    a("s_waitcnt vmcnt(0)")
    a("s_barrier")
    a("s_cmp_lg_u32 s40, 0")
    a("s_cbranch_scc1 L_g2_fin")
    a("v_mov_b32 v20, s48")
    a("v_mov_b32 v21, s49")
    a("s_mov_b64 exec, 1")
    a("buffer_store_dword v21, v20, s[80:83], 0 offen sc1")
    a("s_mov_b64 exec, -1")
    a("s_branch L_g2_fin")
    a.label("L_g2_consumer")
    a.vm = vm_save; a.lg = []; a.keepbar = False
    def x_loads():
        for ct in range(6):
            so, imm = pofs(ct)
            a.vmem(f"buffer_load_dwordx4 v[{XR+4*ct}:{XR+4*ct+3}], v{OF+1}, s[24:27], {so} offen offset:{imm}", "X")
    def early_polls():
        a("v_mov_b32 v17, s48")
        a.vmem("buffer_load_dword v244, v17, s[80:83], 0 offen sc1", "F")
    def early_loads():
        if 'st2' in FL: a.stamp(1)
        a.wait_vm("F")
        a("v_readfirstlane_b32 s43, v244")
        a("v_mov_b32 v17, s48")
        a("s_nop 2")
        a("s_and_b32 s43, s43, s49")
        a("s_cbranch_scc1 L_g2_go2")
        a.label("L_g2_poll2")
        a("s_sleep 8")
        a("buffer_load_dword v18, v17, s[80:83], 0 offen sc1")
        a("s_waitcnt vmcnt(0)")
        a("v_readfirstlane_b32 s43, v18")
        a("s_nop 3")
        a("s_and_b32 s43, s43, s49")
        a("s_cbranch_scc0 L_g2_poll2")
        a.label("L_g2_go2")
        for i in range(6):
            so, imm = pofs(i)
            a.vmem(f"buffer_load_dwordx4 v[{PR+4*i}:{PR+4*i+3}], v15, s[84:87], {so} offen offset:{imm} sc1", "E")
        if 'st2' in FL: a.stamp(3)
    def y_loads():
        for p in range(3):
            a(f"buffer_load_dwordx4 v[{YL+4*p}:{YL+4*p+3}], v{OF+2}, s[20:23], s{96+p} offen sc1")
    def conv_poll():
        a("s_lshl_b32 s43, s31, 7")
        a(f"s_add_u32 s43, s43, {96*128}")
        a(f"v_mov_b32 v{OF+3}, s43")
        a.vmem(f"buffer_load_dword v245, v{OF+3}, s[80:83], 0 offen sc1", "G")
        a("v_lshrrev_b32 v17, 4, v1")
        a("v_lshlrev_b32 v17, 12, v17")
        a("v_and_b32 v18, 15, v1")
        a("v_lshlrev_b32 v18, 4, v18")
        a(f"v_add_u32 v{OF+2}, v17, v18")
        a("s_mul_i32 s96, s31, 96")
        a("s_mul_i32 s35, s40, 12")
        a("s_add_u32 s96, s96, s35")
        a("s_lshl_b32 s96, s96, 12")
        a("s_lshl_b32 s35, s32, 8")
        a("s_add_u32 s96, s96, s35")
        a("s_add_u32 s97, s96, 16384")
        a("s_add_u32 s98, s96, 32768")
    def conv_check():
        a.wait_vm("G")
        a("v_readfirstlane_b32 s89, v245")
        a("s_nop 3")
        a("s_cmp_lt_u32 s89, 384")
        a("s_cbranch_scc1 L_g2_cc")
        y_loads()
        a.label("L_g2_cc")
    run_loop(G2_NJC, {(6, 1): x_loads, (G2_NJC - G2_HP, 1): early_polls, (G2_NJC - G2_HL, 1): early_loads,
                      (G2_NJC - 3, 2): conv_poll, (G2_NJC - 1, 2): conv_check})
    a.stamp(4)
    a.keepbar = True
    a("s_cmp_ge_u32 s89, 384")
    a("s_cbranch_scc1 L_g2_go")
    a.label("L_g2_poll")
    a("s_sleep 24")
    a(f"buffer_load_dword v18, v{OF+3}, s[80:83], 0 offen sc1")
    a("s_waitcnt vmcnt(0)")
    a("v_readfirstlane_b32 s44, v18")
    a("s_nop 3")
    a("s_cmp_ge_u32 s44, 384")
    a("s_cbranch_scc0 L_g2_poll")
    y_loads()
    a.label("L_g2_go")
    a("s_mul_i32 s35, s40, 3072")
    a(f"s_add_u32 s35, s35, {G2_Y}")
    a("v_add_u32 v19, s35, v16")
    exchange()
    a("v_lshrrev_b32 v16, 2, v1")
    a("v_lshlrev_b32 v16, 8, v16")
    a("v_and_b32 v17, 3, v1")
    a("v_lshlrev_b32 v17, 3, v17")
    a("s_lshl_b32 s43, s41, 6")
    a("s_lshl_b32 s44, s42, 5")
    a("s_add_u32 s43, s43, s44")
    a(f"s_add_u32 s43, s43, {G2_Y}")
    a("v_add3_u32 v16, v16, v17, s43")
    a("s_waitcnt vmcnt(3)")
    for i in range(24):
        a(f"v_add_f32 v{20+i}, v{20+i}, v{PR+i}")
    a("s_waitcnt vmcnt(0)")
    for p in range(3):
        a(f"ds_write_b128 v19, v[{YL+4*p}:{YL+4*p+3}] offset:{1024*p}")
    a("s_waitcnt lgkmcnt(0)")
    a("s_barrier")
    YR = 68
    for i in range(6):
        a(f"ds_read_b128 v[{44+4*i}:{47+4*i}], v7 offset:{1024*i}")
    for ct in range(6):
        a(f"ds_read_b64_tr_b16 v[{YR+2*ct}:{YR+2*ct+1}], v16 offset:{4096*ct}")
    a("s_waitcnt lgkmcnt(0)")
    for z in range(6):
        T = 92 + 6*(z & 1)
        for e in range(4):
            a(f"v_add_f32 v{20+4*z+e}, v{20+4*z+e}, v{44+4*z+e}")
        for w in range(2):
            xr, xnr, yr, br = XR+4*z+w, XR+4*z+2+w, YR+2*z+w, 20+4*z+2*w
            unpack_lo(a, T, xnr); unpack_hi(a, T+1, xnr)
            unpack_lo(a, T+2, yr); unpack_hi(a, T+3, yr)
            a(f"v_mul_f32 v{T}, v{T}, v{T+2}")
            a(f"v_mul_f32 v{T+1}, v{T+1}, v{T+3}")
            a(f"v_cvt_pk_bf16_f32 v{T+2}, v{T}, v{T+1}")
            unpack_lo(a, T, T+2); unpack_hi(a, T+1, T+2)
            unpack_lo(a, T+3, xr); unpack_hi(a, T+4, xr)
            a(f"v_add_f32 v{T}, v{T}, v{T+3}")
            a(f"v_add_f32 v{T+1}, v{T+1}, v{T+4}")
            a(f"v_cvt_pk_bf16_f32 v{T+2}, v{T}, v{T+1}")
            unpack_lo(a, T, T+2); unpack_hi(a, T+1, T+2)
            a(f"v_cvt_pk_bf16_f32 v{T+2}, v{br}, v{br+1}")
            unpack_lo(a, T+3, T+2); unpack_hi(a, T+4, T+2)
            a(f"v_add_f32 v{T}, v{T}, v{T+3}")
            a(f"v_add_f32 v{T+1}, v{T+1}, v{T+4}")
            a(f"v_cvt_pk_bf16_f32 v{xr}, v{T}, v{T+1}")
        a(f"buffer_store_dwordx2 v[{XR+4*z}:{XR+4*z+1}], v{OF}, s[76:79], 0 offen offset:{32*z}")
    a.label("L_g2_fin")
    a.stamp(5)
    a.stamp_flush(6, 8, 0x8100000)
    a("s_endpgm")
    a.label("L_g2_pf")
    if 'stamp' in FL: a("s_memtime s[64:65]")
    a("s_load_dwordx2 s[44:45], s[0:1], 72")
    a("s_load_dwordx2 s[8:9], s[0:1], 96")
    a("s_load_dwordx4 s[4:7], s[0:1], 32")
    a("v_and_b32 v1, 63, v0")
    a("v_lshrrev_b32 v2, 6, v0")
    a("s_nop 0")
    a("v_readfirstlane_b32 s40, v2")
    a("s_lshl_b32 s31, s40, 6")
    a("s_add_u32 s30, s2, s31")
    a(f"s_mul_i32 s31, s40, {CV_SZ}")
    a("s_lshl_b32 s32, s30, 12")
    a("v_lshlrev_b32 v2, 4, v1")
    a("s_waitcnt lgkmcnt(0)")
    a.srd(12, 4, SZ_SD)
    a.srd(16, 6, D*2)
    a.srd(20, 8, SZ_SD, WS_KVT)
    a.srd(24, 8, SZ_SD, WS_Y2T)
    a.srd(36, 8, 128*128, WS_FL)
    def cloads(kb, dreg, sd, sdb, slds):
        for i in range(4):
            a(f"buffer_load_dwordx4 v[{kb+6*i}:{kb+3+6*i}], v2, s[12:15], s{sdb} offen offset:{1024*i}")
            a(f"buffer_load_dword v{kb+4+6*i}, v2, s[12:15], s{sdb} offen offset:{1024*i+16}")
        for i in range(4):
            a(f"s_add_u32 m0, s{slds}, {CV_U + 1024*i}")
            a(f"s_add_u32 s33, s{sdb}, {1024*i}")
            a("buffer_load_dwordx4 v2, s[20:23], s33 offen lds")
        a(f"s_lshl_b32 s33, s{sd}, 1")
        a(f"v_mov_b32 v{dreg}, s33")
        a(f"buffer_load_ushort v{dreg}, v{dreg}, s[16:19], 0 offen")
    cloads(48, 3, 30, 32, 31)
    a("s_add_u32 s46, s2, 512")
    a("s_lshl_b32 s47, s46, 12")
    a(f"s_mov_b32 s48, {8*CV_SZ}")
    a("s_cmp_ge_u32 s40, 4")
    a("s_cbranch_scc1 L_g2_pf2")
    cloads(176, 200, 46, 47, 48)
    a.label("L_g2_pf2")
    a("s_barrier")
    a("s_and_b32 s50, s2, 7")
    a("s_and_b32 s51, s2, 56")
    a("s_add_u32 s51, s51, s40")
    a("s_lshr_b32 s52, s50, 2")
    if 'swap' in FL: a("s_xor_b32 s52, s52, 1")
    a("v_lshlrev_b32 v199, 7, v1")
    a("s_lshl_b32 s53, s51, 13")
    a("v_lshrrev_b32 v5, 4, v1")
    a("v_mul_u32_u24 v5, 147456, v5")
    a("v_and_b32 v6, 15, v1")
    a("v_lshlrev_b32 v6, 7, v6")
    a("v_add_u32 v181, v5, v6")
    a("s_and_b32 s54, s50, 3")
    a("s_lshl_b32 s54, s54, 5")
    a("s_and_b32 s55, s51, 7")
    a("s_lshl_b32 s55, s55, 2")
    a("s_add_u32 s54, s54, s55")
    a("s_mul_i32 s54, s54, 147456")
    a("s_cmp_eq_u32 s52, 0")
    a(f"s_cselect_b32 s55, {128*G2_NJP*32}, 0")
    a(f"s_cselect_b32 s52, {128*G2_NJP*1152}, 0")
    a(f"s_mov_b32 s58, {128*G2_NJP*1152}")
    a(f"s_cselect_b32 s58, {128*G2_NJC*1152}, s58")
    a(f"s_cselect_b32 s43, {2*G2_NJC}, {2*G2_NJP}")
    a("s_add_u32 s54, s54, s55")
    a("s_lshr_b32 s50, s51, 3")
    a("s_lshl_b32 s55, s50, 11")
    a("s_add_u32 s54, s54, s55")
    a("s_add_u32 s56, s44, s52")
    a("s_addc_u32 s57, s45, 0")
    a("s_mov_b32 s59, 0x00020000")
    a.srd(60, 8, SZ_H, WS_H)
    def pf(rs):
        for r in rs:
            a(f"buffer_load_dword v201, v199, s[56:59], s53 offen")
            a(f"s_add_u32 s53, s53, {64*8192}")
            a("s_cmp_ge_u32 s50, s43")
            a("s_cselect_b32 s55, 0x7f000000, s54")
            a(f"buffer_load_dword v201, v181, s[60:63], s55 offen")
            a("s_add_u32 s54, s54, 16384")
            a("s_add_u32 s50, s50, 8")
    NPF = int(os.environ.get('NPF', '3'))
    pf(range(0, NPF))
    a("s_mov_b32 s49, 0")
    a("v_and_b32 v9, 15, v1")
    a("v_lshrrev_b32 v10, 4, v1")
    a("v_lshlrev_b32 v12, 4, v10")
    a(f"s_waitcnt vmcnt({2*NPF})")
    if 'stamp' in FL: a("s_memtime s[66:67]")
    def conv_body(ts):
        a("v_add_u32 v8, s31, v2")
        a("v_lshlrev_b32 v11, 1, v9")
        a("v_add_u32 v11, v11, v12")
        a("v_and_b32 v14, 1, v9")
        a("v_cmp_eq_u32 vcc, 1, v14")
        a(f"v_mov_b32 v14, {CV_O}")
        a("s_nop 1")
        a("v_cndmask_b32 v14, v14, 2, vcc")
        a("v_add_u32 v11, v11, v14")
        a("v_add_u32 v11, s31, v11")
        a("v_lshlrev_b32 v13, 5, v9")
        a("v_sub_u32 v13, v12, v13")
        a(f"v_add_u32 v13, {CV_U+480}, v13")
        a("v_add_u32 v13, s31, v13")
        KA = [11, 14, 15, 202, 203]
        for i in range(1, 5):
            a(f"v_add_u32 v{KA[i]}, {960*i}, v11")
        a("v_mov_b32 v4, 0"); a("v_mov_b32 v5, 0"); a("v_mov_b32 v6, 0"); a("v_mov_b32 v7, 0")
        a("s_mov_b32 exec_hi, 0")
        a(f"ds_write_b128 v8, v[4:7] offset:{CV_U+4096}")
        a("s_mov_b32 exec_lo, 3")
        a("ds_write_b128 v8, v[4:7]")
        a("s_mov_b32 exec_lo, 1")
        a(f"ds_write_b128 v8, v[4:7] offset:{CV_O}")
        a("s_mov_b64 exec, -1")
        CA = 16; FA = 48; FB = 80
        mx = max(ts)
        for t in ts:
            for i in range(4): a(f"v_mov_b32 v{CA+4*t+i}, 0")
        for i in range(4):
            b = 48 + 6*i
            a(f"ds_write_b128 v8, v[{b}:{b+3}] offset:{32+1024*i}")
            for t in range(4):
                a(f"v_alignbit_b32 v{112+4*(i&1)+t}, v{b+t+1}, v{b+t}, 16")
            a(f"ds_write_b128 v8, v[{112+4*(i&1)}:{115+4*(i&1)}] offset:{CV_O+32+1024*i}")
            if i == 0:
                a("v_lshlrev_b32 v7, 16, v48")
                a("s_mov_b64 exec, 1")
                a(f"ds_write_b128 v8, v[4:7] offset:{CV_O+16}")
                a("s_mov_b64 exec, -1")
        a("s_waitcnt lgkmcnt(0)")
        def creads(rho):
            o = 64 * (rho & 1)
            for pi in range(mx + 1):
                p = 8*pi + rho
                r = FA+o+4*pi
                a(f"ds_read2_b32 v[{r}:{r+1}], v{KA[p//15]} offset0:{16*(p%15)} offset1:{16*(p%15)+1}")
                a(f"ds_read2_b32 v[{r+2}:{r+3}], v{KA[p//15]} offset0:{16*(p%15)+2} offset1:{16*(p%15)+3}")
                w = 8*pi - rho
                a(f"ds_read_b128 v[{FB+o+4*pi}:{FB+o+4*pi+3}], v13 offset:{64*(56-w)}")
        creads(0)
        for rho in range(8):
            a("s_waitcnt lgkmcnt(0)")
            if rho < 7:
                creads(rho + 1)
            o = 64 * (rho & 1)
            for t in ts:
                for pi in range(t + 1):
                    tau = t - pi
                    a(f"v_mfma_f32_16x16x32_bf16 v[{CA+4*t}:{CA+4*t+3}], v[{FA+o+4*pi}:{FA+o+4*pi+3}], v[{FB+o+4*tau}:{FB+o+4*tau+3}], v[{CA+4*t}:{CA+4*t+3}]")
        a("v_lshlrev_b32 v3, 16, v3")
        a("v_lshlrev_b32 v14, 5, v9")
        a("v_lshlrev_b32 v15, 3, v10")
        a("v_add_u32 v14, v14, v15")
        a(f"v_sub_u32 v15, {CV_U+504}, v14")
        a("v_add_u32 v15, s31, v15")
        a("v_add_u32 v14, s32, v14")
        for t in ts:
            a(f"ds_read_b64 v[{48+2*t}:{49+2*t}], v15 offset:{512*(7-t)}")
        a("s_waitcnt lgkmcnt(0)")
        for n_, t in enumerate(ts):
            y = CA + 4*t; kq = 48 + 2*t; T = 64 + 8*(n_ & 1)
            unpack_hi(a, T, kq+1); unpack_lo(a, T+1, kq+1); unpack_hi(a, T+2, kq); unpack_lo(a, T+3, kq)
            for i in range(4):
                a(f"v_mul_f32 v{T+i}, v{T+i}, v3")
            a(f"v_cvt_pk_bf16_f32 v{T+4}, v{T}, v{T+1}")
            a(f"v_cvt_pk_bf16_f32 v{T+5}, v{T+2}, v{T+3}")
            a(f"v_cvt_pk_bf16_f32 v{T+6}, v{y}, v{y+1}")
            a(f"v_cvt_pk_bf16_f32 v{T+7}, v{y+2}, v{y+3}")
            unpack_lo(a, T, T+4); unpack_hi(a, T+1, T+4); unpack_lo(a, T+2, T+5); unpack_hi(a, T+3, T+5)
            unpack_lo(a, y, T+6); unpack_hi(a, y+1, T+6); unpack_lo(a, y+2, T+7); unpack_hi(a, y+3, T+7)
            for i in range(4):
                a(f"v_add_f32 v{T+i}, v{T+i}, v{y+i}")
            a(f"v_cvt_pk_bf16_f32 v{y}, v{T}, v{T+1}")
            a(f"v_cvt_pk_bf16_f32 v{y+1}, v{T+2}, v{T+3}")
            a(f"buffer_store_dwordx2 v[{y}:{y+1}], v14, s[24:27], 0 offen offset:{512*t} sc1")
    conv_body(list(range(8)))
    a("s_mul_i32 s33, s30, 683")
    a("s_lshr_b32 s33, s33, 16")
    a("s_lshl_b32 s33, s33, 7")
    a(f"s_add_u32 s33, s33, {96*128}")
    a("s_cmp_ge_u32 s40, 4")
    a("s_cbranch_scc1 L_g2_pub")
    a("s_mov_b32 s32, s47")
    a("s_mov_b32 s31, s48")
    for i in range(24):
        a(f"v_mov_b32 v{48+i}, v{176+i}")
    a("v_mov_b32 v3, v200")
    for q in range(4):
        if q < 3:
            a(f"s_cmp_lg_u32 s40, {q}")
            a(f"s_cbranch_scc1 L_g2_q{q+1}")
        conv_body([7 - q, q])
        if q < 3:
            a("s_branch L_g2_pub2")
            a.label(f"L_g2_q{q+1}")
    a.label("L_g2_pub2")
    a(f"v_mov_b32 v14, {101*128}")
    a("v_mov_b32 v15, 1")
    a("s_waitcnt vmcnt(0)")
    a("s_mov_b64 exec, 1")
    a("buffer_atomic_add v15, v14, s[36:39], 0 offen")
    a("s_mov_b64 exec, -1")
    a.label("L_g2_pub")
    if 'stamp' in FL: a("s_memtime s[68:69]")
    a("v_mov_b32 v14, s33")
    a("v_mov_b32 v15, 4")
    a("s_waitcnt vmcnt(0)")
    if 'stamp' in FL: a("s_memtime s[70:71]")
    a("s_mov_b64 exec, 1")
    a("buffer_atomic_add v15, v14, s[36:39], 0 offen")
    a("s_mov_b64 exec, -1")
    if 'hpf2' in FL: pf(range(NPF, 6))
    if 'stamp' in FL:
        a("s_waitcnt vmcnt(0)")
        a("s_memtime s[72:73]")
        a("s_waitcnt lgkmcnt(0)")
        a("s_add_u32 s76, s8, 0x8200000")
        a("s_addc_u32 s77, s9, 0")
        a("s_mov_b32 s78, 0x100000")
        a("s_mov_b32 s79, 0x00020000")
        a("s_lshl_b32 s74, s2, 9")
        a("s_lshl_b32 s75, s40, 6")
        a("s_add_u32 s74, s74, s75")
        a("v_mov_b32 v5, s74")
        for i in range(8):
            ii = min(i, 4)
            a(f"v_mov_b32 v6, s{64+2*ii}")
            a(f"v_mov_b32 v7, s{65+2*ii}")
            a(f"buffer_store_dwordx2 v[6:7], v5, s[76:79], 0 offen offset:{8*i}")
            a("s_nop 1")
    a.label("L_g2_end")
    a("s_endpgm")
    return desc("gemm2_kernel", 248, 100)

def gen_final(a):
    a.kernel_begin("final_kernel")
    a("s_cmp_ge_u32 s2, 288")
    a("s_cbranch_scc1 L_fin_end")
    a("s_load_dwordx2 s[4:5], s[0:1], 0")
    a("s_load_dwordx2 s[6:7], s[0:1], 80")
    a("s_load_dwordx2 s[8:9], s[0:1], 96")
    a("s_and_b32 s32, s2, 31")
    a("s_lshr_b32 s33, s2, 5")
    a("s_waitcnt lgkmcnt(0)")
    a.srd(12, 4, SZ_SD)
    a.srd(16, 6, SZ_SD)
    a.srd(20, 8, SZ_SD, WS_XN)
    a.srd(24, 8, SZ_SD, WS_Y2T)
    a.srd(28, 8, SZ_P, WS_P)
    a("v_lshrrev_b32 v1, 2, v0")
    a("v_and_b32 v2, 3, v0")
    a("v_lshlrev_b32 v3, 12, v1")
    a("v_lshlrev_b32 v4, 5, v2")
    a("v_add_u32 v3, v3, v4")
    a("s_lshl_b32 s34, s33, 18")
    a("s_lshl_b32 s35, s32, 7")
    a("s_add_u32 s34, s34, s35")
    a("v_add_u32 v3, s34, v3")
    a("buffer_load_dwordx4 v[8:11], v3, s[24:27], 0 offen")
    a("buffer_load_dwordx4 v[12:15], v3, s[24:27], 0 offen offset:16")
    a("v_mul_u32_u24 v5, 136, v1")
    a("v_add_u32 v5, v5, v4")
    a("v_lshrrev_b32 v6, 3, v0")
    a("v_and_b32 v7, 7, v0")
    a("s_lshl_b32 s34, s32, 6")
    a("v_add_u32 v16, s34, v6")
    a("v_lshrrev_b32 v20, 4, v16")
    a("v_mul_u32_u24 v20, 18432, v20")
    a("v_and_b32 v21, 15, v16")
    a("v_lshlrev_b32 v21, 4, v21")
    a("v_add_u32 v20, v20, v21")
    a("v_and_b32 v21, 1, v7")
    a("v_lshlrev_b32 v21, 10, v21")
    a("v_add_u32 v20, v20, v21")
    a("v_lshrrev_b32 v21, 1, v7")
    a("v_lshlrev_b32 v21, 8, v21")
    a("v_add_u32 v20, v20, v21")
    a("s_lshl_b32 s35, s33, 11")
    a("v_add_u32 v22, s35, v20")
    a(f"v_add_u32 v23, {2*18432}, v22")
    a("v_mul_u32_u24 v16, 1152, v16")
    a("v_lshlrev_b32 v17, 4, v7")
    a("s_lshl_b32 s35, s33, 7")
    a("v_add_u32 v17, s35, v17")
    a("v_add_u32 v16, v16, v17")
    a(f"v_add_u32 v17, {32*1152}, v16")
    a("v_lshlrev_b32 v18, 1, v16")
    a("v_lshlrev_b32 v19, 1, v17")
    for it in range(2):
        b = 24 + 40*it
        a(f"buffer_load_dwordx4 v[{b}:{b+3}], v{16+it}, s[12:15], 0 offen")
        a(f"buffer_load_dwordx4 v[{b+4}:{b+7}], v{22+it}, s[20:23], 0 offen")
        for ks in range(4):
            a(f"s_mov_b32 s36, {ks*S*D*4}")
            a(f"buffer_load_dwordx4 v[{b+8+8*ks}:{b+11+8*ks}], v{18+it}, s[28:31], s36 offen")
            a(f"buffer_load_dwordx4 v[{b+12+8*ks}:{b+15+8*ks}], v{18+it}, s[28:31], s36 offen offset:16")
    a("s_waitcnt vmcnt(20)")
    for m in range(4):
        a(f"ds_write_b64 v5, v[{8+2*m}:{9+2*m}] offset:{8*m}")
    a("s_waitcnt lgkmcnt(0)")
    a("s_barrier")
    a("v_mul_u32_u24 v20, 1088, v7")
    a("v_lshlrev_b32 v21, 1, v6")
    a("v_add_u32 v20, v20, v21")
    for it in range(2):
        for c in range(8):
            a(f"ds_read_u16 v{104+8*it+c}, v20 offset:{136*c + 64*it}")
    a("s_waitcnt vmcnt(0) lgkmcnt(0)")
    for it in range(2):
        b = 24 + 40*it
        for w in range(4):
            T = 120
            y0, y1 = 104 + 8*it + 2*w, 104 + 8*it + 2*w + 1
            unpack_lo(a, y0, y0); unpack_lo(a, y1, y1)
            unpack_lo(a, T, b+4+w); unpack_hi(a, T+1, b+4+w)
            a(f"v_mul_f32 v{T}, v{T}, v{y0}")
            a(f"v_mul_f32 v{T+1}, v{T+1}, v{y1}")
            a(f"v_cvt_pk_bf16_f32 v{T+2}, v{T}, v{T+1}")
            unpack_lo(a, T, T+2); unpack_hi(a, T+1, T+2)
            unpack_lo(a, T+3, b+w); unpack_hi(a, T+4, b+w)
            a(f"v_add_f32 v{T}, v{T}, v{T+3}")
            a(f"v_add_f32 v{T+1}, v{T+1}, v{T+4}")
            a(f"v_cvt_pk_bf16_f32 v{T+2}, v{T}, v{T+1}")
            unpack_lo(a, T, T+2); unpack_hi(a, T+1, T+2)
            p = b + 8 + 2*w
            a(f"v_add_f32 v{T+3}, v{p}, v{p+8}")
            a(f"v_add_f32 v{T+4}, v{p+1}, v{p+9}")
            a(f"v_add_f32 v{T+5}, v{p+16}, v{p+24}")
            a(f"v_add_f32 v{T+6}, v{p+17}, v{p+25}")
            a(f"v_add_f32 v{T+3}, v{T+3}, v{T+5}")
            a(f"v_add_f32 v{T+4}, v{T+4}, v{T+6}")
            a(f"v_cvt_pk_bf16_f32 v{T+2}, v{T+3}, v{T+4}")
            unpack_lo(a, T+3, T+2); unpack_hi(a, T+4, T+2)
            a(f"v_add_f32 v{T}, v{T}, v{T+3}")
            a(f"v_add_f32 v{T+1}, v{T+1}, v{T+4}")
            a(f"v_cvt_pk_bf16_f32 v{b+w}, v{T}, v{T+1}")
        a(f"buffer_store_dwordx4 v[{b}:{b+3}], v{16+it}, s[16:19], 0 offen")
    a.label("L_fin_end")
    a("s_endpgm")
    return desc("final_kernel", 128)

def main(path):
    hdr = open("parallel_sum__ssm_conv_h3__glu_gated_swiglu__prompt.s.ref").read().split("\n")
    head = [l for l in hdr if l.startswith(";") and "@launch" not in l and "Override launch" not in l and "grid=ceil" not in l]
    launches = [
        "; @launch kernel=front_kernel grid=(480,1,1) block=(256,1,1) lds=8704",
        f"; @launch kernel=gemm1_kernel grid=(256,1,1) block=(512,1,1) lds={NST*STAGE}",
        f"; @launch kernel=gemm2_kernel grid=(256,1,1) block=(512,1,1) lds={G2_LDS}",
    ]
    a = Asm()
    descs = [gen_front(a), gen_gemm1(a), gen_gemm2(a)]
    out = "\n".join(head + launches) + "\n"
    out += '.amdgcn_target "amdgcn-amd-amdhsa--gfx950"\n.text\n'
    out += "\n".join(a.l) + "\n"
    out += '.section .rodata,"a"\n'
    for d in descs:
        out += ".p2align 6\n" + d
    open(path, "w").write(out)

if __name__ == "__main__":
    main(sys.argv[1] if len(sys.argv) > 1 else "parallel_sum__ssm_conv_h3__glu_gated_swiglu__prompt.s")
```

```python
import sys, os
FL = set(os.environ.get('FL','').split(','))

S, D, F = 2048, 576, 4608
WS_XN, WS_KVT, WS_Y2T, WS_H, WS_P = 0x0, 0x400000, 0x800000, 0x1000000, 0x3000000
WS_XP = 0x2400000
WS_FL = 0x3800000
SZ_SD = S * D * 2
SZ_W = D * F * 2
SZ_H = S * F * 2
SZ_P = 4 * S * D * 4

class Asm:
    def __init__(self):
        self.l = []
        self.gemm = False
        self.keepbar = False
        self.vm = []
        self.lg = []
    def __call__(self, s):
        if self.gemm:
            if 'nomfma' in FL and s.startswith('v_mfma'): return
            if 'nolds' in FL and s.startswith('ds_read_b64_tr'): return
            if 'nodma' in FL and s.endswith('offen lds'): return
            if 'noa' in FL and s.startswith('buffer_load_dwordx4 v['): return
            if 'nobar' in FL and s.startswith('s_barrier') and not self.keepbar: return
            if 'nostore' in FL and s.startswith('buffer_store'): return
        self.l.append("    " + s)
    def label(self, s):
        self.l.append(s + ":")
    def c(self, s):
        self.l.append("    ; " + s)
    def vmem(self, s, tag):
        self(s); self.vm.append(tag)
    def lds(self, s, tag):
        self(s); self.lg.append(tag)
    def wait_vm(self, tag):
        if tag not in self.vm: return
        idx = max(i for i, t in enumerate(self.vm) if t == tag)
        n = len(self.vm) - 1 - idx
        assert n <= 63
        self(f"s_waitcnt vmcnt({n})")
        self.vm = self.vm[idx + 1:]
    def wait_lg(self, tag):
        if tag not in self.lg: return
        idx = max(i for i, t in enumerate(self.lg) if t == tag)
        n = len(self.lg) - 1 - idx
        assert n <= 15, n
        self(f"s_waitcnt lgkmcnt({n})")
        self.lg = self.lg[idx + 1:]
    def capture(self, fn):
        l0, vm0 = self.l, self.vm
        self.l, self.vm = [], []
        marks = []
        ov = self.vmem
        def vm2(s_, tag):
            self(s_); marks.append((len(self.l), tag))
        self.vmem = vm2
        fn()
        del self.vmem
        lines = self.l
        self.l, self.vm = l0, vm0
        chunks = []; p = 0
        for k, (e, tag) in enumerate(marks):
            end = e
            if end < len(lines) and 'exec' in lines[end] and '-1' in lines[end]: end += 1
            chunks.append((lines[p:end], tag)); p = end
        if p < len(lines): chunks[-1] = (chunks[-1][0] + lines[p:], chunks[-1][1])
        return chunks
    def emit_chunk(self, ch):
        self.l += ch[0]; self.vm.append(ch[1])
    def wait_all(self):
        self("s_waitcnt vmcnt(0) lgkmcnt(0)")
        self.vm = []; self.lg = []
    def srd(self, d, base, size, off=0):
        if off:
            self(f"s_add_u32 s{d}, s{base}, {off}")
            self(f"s_addc_u32 s{d+1}, s{base+1}, 0")
        else:
            self(f"s_mov_b32 s{d}, s{base}")
            self(f"s_mov_b32 s{d+1}, s{base+1}")
        self(f"s_mov_b32 s{d+2}, {size}")
        self(f"s_mov_b32 s{d+3}, 0x00020000")
    def stamp(self, i):
        if 'stamp' not in FL: return
        self(f"s_memtime s[{50+2*i}:{51+2*i}]")
        if i == 0: self("s_memrealtime s[62:63]")
    def stamp_flush(self, n, wsb, base):
        if 'stamp' not in FL: return
        self("s_memrealtime s[64:65]")
        self("s_waitcnt lgkmcnt(0)")
        self(f"s_add_u32 s68, s{wsb}, {base}")
        self(f"s_addc_u32 s69, s{wsb+1}, 0")
        self("s_mov_b32 s70, 0x100000")
        self("s_mov_b32 s71, 0x00020000")
        self("s_lshl_b32 s66, s2, 9")
        self("s_lshl_b32 s67, s40, 6")
        self("s_add_u32 s66, s66, s67")
        self("v_mov_b32 v5, s66")
        for i in range(8):
            self(f"v_mov_b32 v6, s{50+2*i}")
            self(f"v_mov_b32 v7, s{51+2*i}")
            self(f"buffer_store_dwordx2 v[6:7], v5, s[68:71], 0 offen offset:{8*i}")
            self("s_nop 1")
    def kernel_begin(self, name):
        self.l.append(f".globl {name}")
        self.l.append(".p2align 8")
        self.l.append(f".type {name},@function")
        self.label(name)
        self.gemm = name.startswith('gemm'); self.keepbar = False
        self.vm = []; self.lg = []

def vr(b, n=1):
    return f"v{b}" if n == 1 else f"v[{b}:{b+n-1}]"

def desc(name, vgpr, sgpr=80):
    acc = (vgpr + 3) // 4 * 4
    return f""".amdhsa_kernel {name}
  .amdhsa_next_free_vgpr {vgpr}
  .amdhsa_next_free_sgpr {sgpr}
  .amdhsa_accum_offset {acc}
  .amdhsa_group_segment_fixed_size 0
  .amdhsa_kernarg_size 104
  .amdhsa_user_sgpr_count 2
  .amdhsa_user_sgpr_kernarg_segment_ptr 1
  .amdhsa_system_sgpr_workgroup_id_x 1
  .amdhsa_float_denorm_mode_32 3
.end_amdhsa_kernel
"""

def unpack_lo(a, d, s): a(f"v_lshlrev_b32 v{d}, 16, v{s}")
def unpack_hi(a, d, s): a(f"v_and_b32 v{d}, 0xffff0000, v{s}")

CV_O, CV_U, CV_SZ = 4224, 8448, 13056
def gen_front(a):
    a.kernel_begin("front_kernel")
    a("s_cmp_ge_u32 s2, 480")
    a("s_cbranch_scc1 L_fr_end")
    a("s_cmp_lt_u32 s2, 64")
    a("s_cbranch_scc1 L_fr_pf")
    a("s_cmp_ge_u32 s2, 192")
    a("s_cbranch_scc1 L_fr_kv")
    a("s_load_dwordx2 s[4:5], s[0:1], 0")
    a("s_load_dwordx2 s[14:15], s[0:1], 96")
    a("s_waitcnt lgkmcnt(0)")
    a.srd(16, 4, SZ_SD)
    a.srd(20, 14, SZ_SD, WS_XN)
    a("s_sub_u32 s3, s2, 64")
    a("s_lshl_b32 s3, s3, 4")
    a("v_lshrrev_b32 v1, 4, v0")
    a("v_add_u32 v1, s3, v1")
    a("v_and_b32 v2, 15, v0")
    a("v_mul_u32_u24 v3, 1152, v1")
    a("v_lshlrev_b32 v4, 3, v2")
    a("v_add_u32 v3, v3, v4")
    for i in range(9):
        a(f"buffer_load_dwordx2 v[{8+2*i}:{9+2*i}], v3, s[16:19], 0 offen offset:{128*i}")
    a("v_lshrrev_b32 v4, 4, v1")
    a("v_mul_u32_u24 v4, 18432, v4")
    a("v_and_b32 v5, 15, v1")
    a("v_lshlrev_b32 v5, 4, v5")
    a("v_add_u32 v4, v4, v5")
    a("v_lshrrev_b32 v5, 2, v2")
    a("v_lshlrev_b32 v5, 8, v5")
    a("v_add_u32 v4, v4, v5")
    a("v_lshrrev_b32 v5, 1, v2")
    a("v_and_b32 v5, 1, v5")
    a("v_lshlrev_b32 v5, 10, v5")
    a("v_add_u32 v4, v4, v5")
    a("v_and_b32 v5, 1, v2")
    a("v_lshlrev_b32 v5, 3, v5")
    a("v_add_u32 v1, v4, v5")
    a("s_waitcnt vmcnt(0)")
    X = 32
    for i in range(18):
        unpack_lo(a, X + 2*i, 8 + i)
        unpack_hi(a, X + 2*i + 1, 8 + i)
    for i in range(9):
        a(f"v_mov_b32 v{72+4*i}, v{8+2*i}")
        a(f"v_mov_b32 v{73+4*i}, v{9+2*i}")
    a(f"v_add_f32 v2, v{X}, v{X+1}")
    a(f"v_add_f32 v3, v{X+2}, v{X+3}")
    for i in range(4, 36, 2):
        a(f"v_add_f32 v2, v2, v{X+i}")
        a(f"v_add_f32 v3, v3, v{X+i+1}")
    a("v_add_f32 v2, v2, v3")
    def red16(r, t):
        a("s_nop 1")
        a(f"v_add_f32_dpp v{t}, v{r}, v{r} quad_perm:[1,0,3,2] row_mask:0xf bank_mask:0xf")
        a("s_nop 1")
        a(f"v_add_f32_dpp v{r}, v{t}, v{t} quad_perm:[2,3,0,1] row_mask:0xf bank_mask:0xf")
        a("s_nop 1")
        a(f"v_add_f32_dpp v{t}, v{r}, v{r} row_half_mirror row_mask:0xf bank_mask:0xf")
        a("s_nop 1")
        a(f"v_add_f32_dpp v{r}, v{t}, v{t} row_mirror row_mask:0xf bank_mask:0xf")
    red16(2, 3)
    a("s_mov_b32 s24, 0x3ae38e39")
    a("v_mul_f32 v2, s24, v2")
    a("v_mov_b32 v4, 0")
    a("v_mov_b32 v5, 0")
    for i in range(0, 36, 2):
        a(f"v_sub_f32 v6, v{X+i}, v2")
        a(f"v_sub_f32 v7, v{X+i+1}, v2")
        a("v_fmac_f32 v4, v6, v6")
        a("v_fmac_f32 v5, v7, v7")
    a("v_add_f32 v4, v4, v5")
    red16(4, 5)
    a("v_mul_f32 v4, s24, v4")
    a("v_cvt_pk_bf16_f32 v5, v2, v4")
    unpack_lo(a, 2, 5)
    unpack_hi(a, 4, 5)
    a("v_add_f32 v4, 0x3727c5ac, v4")
    a("v_cvt_pk_bf16_f32 v4, v4, v4")
    unpack_hi(a, 4, 4)
    a("v_sqrt_f32 v4, v4")
    a("s_nop 0")
    a("v_cvt_pk_bf16_f32 v4, v4, v4")
    unpack_hi(a, 4, 4)
    a("v_rcp_f32 v5, v4")
    a("s_nop 0")
    for i in range(18):
        x0, x1 = X + 2*i, X + 2*i + 1
        a(f"v_sub_f32 v{x0}, v{x0}, v2")
        a(f"v_sub_f32 v{x1}, v{x1}, v2")
        a(f"v_cvt_pk_bf16_f32 v6, v{x0}, v{x1}")
        unpack_lo(a, x0, 6)
        unpack_hi(a, x1, 6)
        a(f"v_mul_f32 v6, v{x0}, v5")
        a(f"v_mul_f32 v7, v{x1}, v5")
        a(f"v_fma_f32 v{x0}, -v6, v4, v{x0}")
        a(f"v_fma_f32 v{x1}, -v7, v4, v{x1}")
        a(f"v_fma_f32 v6, v{x0}, v5, v6")
        a(f"v_fma_f32 v7, v{x1}, v5, v7")
        a(f"v_cvt_pk_bf16_f32 v{8+i}, v6, v7")
    for i in range(9):
        a(f"s_mov_b32 s25, {2048*i}")
        a(f"buffer_store_dwordx2 v[{8+2*i}:{9+2*i}], v1, s[20:23], s25 offen")
    a.srd(28, 14, 2*SZ_SD, WS_XP)
    a("v_lshrrev_b32 v2, 4, v0")
    a("v_add_u32 v2, s3, v2")
    a("v_lshrrev_b32 v3, 4, v2")
    a("v_mul_u32_u24 v3, 36864, v3")
    a("v_and_b32 v2, 15, v2")
    a("v_lshlrev_b32 v2, 4, v2")
    a("v_add_u32 v3, v3, v2")
    a("v_bfe_u32 v2, v0, 2, 2")
    a("v_lshlrev_b32 v2, 10, v2")
    a("v_add_u32 v3, v3, v2")
    a("v_and_b32 v2, 3, v0")
    a("v_lshlrev_b32 v2, 8, v2")
    a("v_add_u32 v3, v3, v2")
    for i in range(9):
        a(f"v_mov_b32 v{74+4*i}, v{8+2*i}")
        a(f"v_mov_b32 v{75+4*i}, v{9+2*i}")
        a(f"s_mov_b32 s25, {4096*i}")
        a(f"buffer_store_dwordx4 v[{72+4*i}:{75+4*i}], v3, s[28:31], s25 offen")
    a("s_endpgm")
    a.label("L_fr_pf")
    a("s_load_dwordx4 s[4:7], s[0:1], 56")
    a("s_load_dwordx2 s[8:9], s[0:1], 32")
    a("s_load_dwordx2 s[10:11], s[0:1], 96")
    a("v_and_b32 v1, 63, v0")
    a("v_lshrrev_b32 v2, 6, v0")
    a("s_nop 0")
    a("v_readfirstlane_b32 s40, v2")
    a("s_and_b32 s30, s2, 7")
    a("s_mul_i32 s30, s30, 1152")
    a("s_mov_b32 s31, s2")
    a("s_lshr_b32 s31, s31, 3")
    a("s_lshl_b32 s31, s31, 2")
    a("s_add_u32 s31, s31, s40")
    a(f"s_mul_i32 s31, s31, {7*9216}")
    a("v_mul_u32_u24 v2, 57, v1")
    a("v_lshrrev_b32 v2, 9, v2")
    a("v_mul_u32_u24 v3, 9, v2")
    a("v_sub_u32 v3, v1, v3")
    a("v_mul_u32_u24 v2, 9216, v2")
    a("v_lshlrev_b32 v3, 7, v3")
    a("v_add_u32 v2, v2, v3")
    a("s_waitcnt lgkmcnt(0)")
    a.srd(24, 10, 128*128, WS_FL)
    a("s_cmp_lg_u32 s2, 0")
    a("s_cbranch_scc1 L_fr_pf1")
    a("v_lshlrev_b32 v4, 7, v0")
    a("v_mov_b32 v5, 0")
    a("buffer_store_dword v5, v4, s[24:27], 0 offen")
    a.label("L_fr_pf1")
    for m in range(2):
        a(f"s_add_u32 s{12+4*m}, s{4+2*m}, s30")
        a(f"s_addc_u32 s{13+4*m}, s{5+2*m}, 0")
        a(f"s_sub_u32 s{14+4*m}, {SZ_W}, s30")
        a(f"s_mov_b32 s{15+4*m}, 0x00020000")
    for r in range(0 if 'nofpf' in FL else (3 if 'fpf3' in FL else (2 if 'fpf2' in FL else 1))):
        a(f"buffer_load_dword v{8+2*r}, v2, s[12:15], s31 offen")
        a(f"buffer_load_dword v{9+2*r}, v2, s[16:19], s31 offen")
        a(f"s_add_u32 s31, s31, {32*7*9216}")
    if 'ssmfront' in FL:
        a.srd(20, 8, SZ_SD)
        a("s_mov_b32 s31, s2")
        a("s_lshl_b32 s31, s31, 2")
        a("s_add_u32 s31, s31, s40")
        a("s_lshl_b32 s31, s31, 13")
        a("v_lshlrev_b32 v3, 7, v1")
        a("buffer_load_dword v16, v3, s[20:23], s31 offen")
        a(f"s_add_u32 s31, s31, {256*8192}")
        a("buffer_load_dword v17, v3, s[20:23], s31 offen")
    a("s_endpgm")
    a.label("L_fr_kv")
    a("s_load_dwordx4 s[8:11], s[0:1], 8")
    a("s_load_dwordx2 s[12:13], s[0:1], 24")
    a("s_load_dwordx2 s[14:15], s[0:1], 96")
    a("s_waitcnt lgkmcnt(0)")
    a.srd(16, 8, SZ_SD)
    a.srd(20, 10, SZ_SD)
    a.srd(24, 12, D * 8)
    a.srd(28, 14, SZ_SD, WS_KVT)
    a("s_sub_u32 s3, s2, 192")
    a("s_and_b32 s32, s3, 31")
    a("s_lshr_b32 s33, s3, 5")
    a("v_lshrrev_b32 v1, 3, v0")
    a("v_and_b32 v2, 7, v0")
    a("s_lshl_b32 s34, s32, 6")
    a("v_lshlrev_b32 v3, 1, v1")
    a("v_add_u32 v3, s34, v3")
    a("s_lshl_b32 s35, s33, 7")
    a("v_lshlrev_b32 v4, 4, v2")
    a("v_add_u32 v4, s35, v4")
    a("v_mul_u32_u24 v5, 1152, v3")
    a("v_add_u32 v5, v5, v4")
    for r in range(5):
        a(f"v_add_u32 v{6+r}, {(r-3)*1152 & 0xffffffff}, v5")
    for r in range(5):
        a(f"buffer_load_dwordx4 v[{12+4*r}:{15+4*r}], v{6+r}, s[16:19], 0 offen")
    a("buffer_load_dwordx4 v[32:35], v5, s[20:23], 0 offen")
    a("buffer_load_dwordx4 v[36:39], v5, s[20:23], 0 offen offset:1152")
    a("v_lshlrev_b32 v11, 2, v4")
    for i in range(4):
        a(f"buffer_load_dwordx4 v[{40+4*i}:{43+4*i}], v11, s[24:27], 0 offen offset:{16*i}")
    a("v_mul_u32_u24 v56, 1088, v2")
    a("v_sub_u32 v57, 31, v1")
    a("v_lshlrev_b32 v57, 2, v57")
    a("v_add_u32 v56, v56, v57")
    a("s_waitcnt vmcnt(0)")
    for c in range(8):
        w, hi = c >> 1, c & 1
        up = unpack_hi if hi else unpack_lo
        for r in range(5):
            up(a, 60 + r, 12 + 4*r + w)
        up(a, 65, 32 + w); up(a, 66, 36 + w)
        unpack_lo(a, 67, 40 + 2*c); unpack_hi(a, 68, 40 + 2*c)
        unpack_lo(a, 69, 41 + 2*c); unpack_hi(a, 70, 41 + 2*c)
        for step, j in enumerate([3, 2, 1, 0]):
            kk0 = 60 + (3 - j); kk1 = kk0 + 1
            a(f"v_mul_f32 v71, v{kk0}, v{67+j}")
            a(f"v_mul_f32 v72, v{kk1}, v{67+j}")
            a("v_cvt_pk_bf16_f32 v73, v71, v72")
            if step == 0:
                unpack_lo(a, 74, 73); unpack_hi(a, 75, 73)
            else:
                unpack_lo(a, 71, 73); unpack_hi(a, 72, 73)
                a("v_add_f32 v74, v74, v71")
                a("v_add_f32 v75, v75, v72")
                a("v_cvt_pk_bf16_f32 v73, v74, v75")
                unpack_lo(a, 74, 73); unpack_hi(a, 75, 73)
        a("v_mul_f32 v74, v74, v65")
        a("v_mul_f32 v75, v75, v66")
        a("v_cvt_pk_bf16_f32 v73, v75, v74")
        a(f"ds_write_b32 v56, v73 offset:{136*c}")
    a("s_waitcnt lgkmcnt(0)")
    a("s_barrier")
    a("v_lshrrev_b32 v1, 2, v0")
    a("v_and_b32 v2, 3, v0")
    a("v_mul_u32_u24 v3, 136, v1")
    a("v_lshlrev_b32 v4, 5, v2")
    a("v_add_u32 v3, v3, v4")
    for m in range(4):
        a(f"ds_read_b64 v[{8+2*m}:{9+2*m}], v3 offset:{8*m}")
    a("s_lshl_b32 s36, s33, 18")
    a("s_lshl_b32 s37, s32, 7")
    a("s_sub_u32 s36, s36, s37")
    a("s_add_u32 s36, s36, 3968")
    a("v_lshlrev_b32 v5, 12, v1")
    a("v_add_u32 v5, v5, v4")
    a("v_add_u32 v5, s36, v5")
    a("s_waitcnt lgkmcnt(0)")
    a("buffer_store_dwordx4 v[8:11], v5, s[28:31], 0 offen")
    a("buffer_store_dwordx4 v[12:15], v5, s[28:31], 0 offen offset:16")
    a.label("L_fr_end")
    a("s_endpgm")
    return desc("front_kernel", 128)

STAGE = 36864
NST = 4
PD = int(os.environ.get('PD', '5'))

def gemm_setup_dma(a, row_bytes, vD, sW, sH, perm):
    a("s_and_b32 s41, s40, 3")
    a("s_lshr_b32 s42, s40, 2")
    a("s_mul_i32 s43, s42, 18432")
    a("s_lshl_b32 s44, s41, 12")
    a(f"s_add_u32 s{sW}, s43, s44")
    a("s_lshl_b32 s44, s41, 9")
    a("s_add_u32 s44, s44, 16384")
    a(f"s_add_u32 s{sH}, s43, s44")
    a("s_movk_i32 s45, 3641")
    for i in range(5):
        if i < 4:
            a("s_lshl_b32 s44, s41, 8")
            a(f"s_add_u32 s44, s44, {64*i}")
        else:
            a("s_lshl_b32 s44, s41, 5")
            a("s_add_u32 s44, s44, 1024")
        a("v_add_u32 v17, s44, v1")
        a("v_mul_lo_u32 v18, v17, s45")
        a("v_lshrrev_b32 v18, 16, v18")
        a("v_mul_u32_u24 v19, 18, v18")
        a("v_sub_u32 v19, v17, v19")
        if perm:
            a("v_lshrrev_b32 v17, 4, v18")
            a("v_and_b32 v17, 1, v17")
            a("v_lshlrev_b32 v17, 2, v17")
            a("v_xor_b32 v18, v18, v17")
        a(f"v_mul_u32_u24 v18, {row_bytes}, v18")
        a("v_lshlrev_b32 v19, 4, v19")
        a(f"v_add_u32 v{vD+i}, v18, v19")

def gemm_dma(a, j, vD, sW, sH, srdW, kstep_bytes):
    st = j % NST
    a(f"s_mov_b32 s46, {j*kstep_bytes}")
    for i in range(4):
        a(f"s_add_u32 m0, s{sW}, {st*STAGE + 1024*i}")
        a("s_nop 0")
        a.vmem(f"buffer_load_dwordx4 v{vD+i}, s[{srdW}:{srdW+3}], s46 offen lds", f"D{j}")
    a(f"s_add_u32 m0, s{sH}, {st*STAGE}")
    a("s_mov_b32 exec_hi, 0")
    a.vmem(f"buffer_load_dwordx4 v{vD+4}, s[{srdW}:{srdW+3}], s46 offen lds", f"D{j}")
    a("s_mov_b32 exec_hi, -1")

def gemm_loop(a, units, NU, NAB, w_reads, mfmas, a_loads, dma, early, late=None, NJ=9, NS=4, PD=PD, hooks=None):
    if 'prio' in FL or 'prio0' in FL:
        gemm_loop.n = getattr(gemm_loop, 'n', 0) + 1
        a("s_cmp_ge_u32 s40, 4" if 'prio' in FL else "s_cmp_lt_u32 s40, 4")
        a(f"s_cbranch_scc0 L_prio{gemm_loop.n}")
        a("s_setprio 1")
        a.label(f"L_prio{gemm_loop.n}")
    a.wait_vm("A0")
    a("s_barrier")
    a.stamp(2)
    for U in range(PD):
        w_reads(U)
    bg = []
    spread = 'nospread' not in FL
    every = 2 if NU > 20 else 1
    for U, un in enumerate(units):
        j = un[0]; u = U % NU
        if bg and U % every == 0: a.emit_chunk(bg.pop(0))
        if U == NU*4 and not ('st2' in FL and NJ != 9): a.stamp(3)
        if u == 0 and j > 0:
            a.wait_vm(f"A{j}")
            if j + NAB - 1 <= NJ - 1:
                if spread: bg += a.capture(lambda: a_loads(j + NAB - 1))
                else: a_loads(j + NAB - 1)
        if j == 0 and u in early:
            early[u]()
        if j == NJ - 3 and u == 16 and late: late()
        if hooks and (j, u) in hooks: hooks[(j, u)]()
        if u == NU - PD and j < NJ - 1:
            a.wait_vm(f"D{j+1}")
            a("s_barrier")
            if j + NS - 1 <= NJ - 1:
                if spread: bg += a.capture(lambda: dma(j + NS - 1))
                else: dma(j + NS - 1)
        if U + PD < len(units):
            w_reads(U + PD)
        a.wait_lg(f"W{U}")
        mfmas(U)

CVB = 3 * 36864
G1_LDS = CVB + 4 * CV_SZ
def conv_head_loads(a):
    a("s_lshr_b32 s80, s40, 1")
    a("s_lshl_b32 s81, s80, 8")
    a("s_add_u32 s81, s81, s2")
    a("s_cmp_lt_u32 s81, 576")
    a("s_cselect_b32 s82, 1, 0")
    a("s_min_u32 s81, s81, 575")
    a(f"s_mul_i32 s83, s80, {CV_SZ}")
    a(f"s_add_u32 s83, s83, {CVB}")
    a("s_lshl_b32 s84, s81, 12")
    a.srd(88, 72, SZ_SD)
    a.srd(92, 74, D*2)
    a.srd(96, 8, SZ_SD, WS_KVT)
    a("v_lshlrev_b32 v212, 4, v1")
    for i in range(4):
        a.vmem(f"buffer_load_dwordx4 v[{84+8*i}:{87+8*i}], v212, s[88:91], s84 offen offset:{1024*i}", "CK")
        a.vmem(f"buffer_load_dword v{88+8*i}, v212, s[88:91], s84 offen offset:{1024*i+16}", "CK")
    for i in range(4):
        a(f"s_add_u32 m0, s83, {CV_U + 1024*i}")
        a(f"s_add_u32 s85, s84, {1024*i}")
        a.vmem("buffer_load_dwordx4 v212, s[96:99], s85 offen lds", "CU")
    a("s_lshl_b32 s85, s81, 1")
    a("v_mov_b32 v213, s85")
    a.vmem("buffer_load_ushort v213, v213, s[92:95], 0 offen", "CU")

def conv_head_compute(a):
    Z = 216
    for i in range(4): a(f"v_mov_b32 v{Z+i}, 0")
    a("v_add_u32 v214, s83, v212")
    a("s_mov_b32 exec_hi, 0")
    a(f"ds_write_b128 v214, v[{Z}:{Z+3}] offset:{CV_U+4096}")
    a("s_mov_b32 exec_lo, 3")
    a(f"ds_write_b128 v214, v[{Z}:{Z+3}]")
    a("s_mov_b32 exec_lo, 1")
    a(f"ds_write_b128 v214, v[{Z}:{Z+3}] offset:{CV_O}")
    a("s_mov_b64 exec, -1")
    a("v_and_b32 v220, 15, v1")
    a("v_lshrrev_b32 v221, 4, v1")
    a("v_lshlrev_b32 v222, 1, v220")
    a("v_lshlrev_b32 v223, 4, v221")
    a("v_add_u32 v222, v222, v223")
    a("v_and_b32 v224, 1, v220")
    a("v_cmp_eq_u32 vcc, 1, v224")
    a(f"v_mov_b32 v224, {CV_O}")
    a("s_nop 1")
    a("v_cndmask_b32 v224, v224, 2, vcc")
    a("v_add3_u32 v222, v222, v224, s83")
    a("v_lshlrev_b32 v225, 5, v220")
    a("v_sub_u32 v225, v223, v225")
    a(f"v_add_u32 v225, {CV_U+480}, v225")
    a("v_add_u32 v225, s83, v225")
    KA = [226, 227, 228, 229, 230]
    for i in range(5):
        a(f"v_add_u32 v{KA[i]}, {960*i}, v222")
    ACC = 52; FA = 84; FB = 116
    for i in range(16):
        a(f"v_mov_b32 v{ACC+i}, 0")
    a.wait_vm("CK")
    for i in range(4):
        b = 84 + 8*i
        a(f"ds_write_b128 v214, v[{b}:{b+3}] offset:{32+1024*i}")
        for t in range(4):
            a(f"v_alignbit_b32 v{232+4*(i&1)+t}, v{b+t+1}, v{b+t}, 16")
        a(f"ds_write_b128 v214, v[{232+4*(i&1)}:{235+4*(i&1)}] offset:{CV_O+32+1024*i}")
        if i == 0:
            a(f"v_lshlrev_b32 v{Z+3}, 16, v84")
            a("s_mov_b64 exec, 1")
            a(f"ds_write_b128 v214, v[{Z}:{Z+3}] offset:{CV_O+16}")
            a("s_mov_b64 exec, -1")
    a.wait_vm("CU")
    a("s_waitcnt lgkmcnt(0)")
    a("s_cmp_eq_u32 s82, 0")
    a("s_cbranch_scc1 L_cvh_epi")
    a("s_and_b32 s85, s40, 1")
    a("s_cmp_eq_u32 s85, 1")
    a("s_cbranch_scc1 L_cvh_p1")
    TS = [[7, 4, 1, 0], [6, 5, 3, 2]]
    for part in range(2):
        if part == 1: a.label("L_cvh_p1")
        ts = TS[part]; mx = max(ts)
        def reads(rho):
            o = 64 * (rho & 1)
            for pi in range(mx + 1):
                p = 8*pi + rho
                r = FA+o+4*pi
                a(f"ds_read2_b32 v[{r}:{r+1}], v{KA[p//15]} offset0:{16*(p%15)} offset1:{16*(p%15)+1}")
                a(f"ds_read2_b32 v[{r+2}:{r+3}], v{KA[p//15]} offset0:{16*(p%15)+2} offset1:{16*(p%15)+3}")
                w = 8*pi - rho
                a(f"ds_read_b128 v[{FB+o+4*pi}:{FB+o+4*pi+3}], v225 offset:{64*(56-w)}")
        reads(0)
        for rho in range(8):
            a("s_waitcnt lgkmcnt(0)")
            if rho < 7:
                reads(rho + 1)
            o = 64 * (rho & 1)
            work = [[(ti, t, pi) for pi in range(t + 1)] for ti, t in enumerate(ts)]
            while any(work):
                for wl in work:
                    if wl:
                        ti, t, pi = wl.pop(0)
                        tau = t - pi
                        a(f"v_mfma_f32_16x16x32_bf16 v[{ACC+4*ti}:{ACC+4*ti+3}], v[{FA+o+4*pi}:{FA+o+4*pi+3}], v[{FB+o+4*tau}:{FB+o+4*tau+3}], v[{ACC+4*ti}:{ACC+4*ti+3}]")
        for ti, t in enumerate(ts):
            a(f"s_mov_b32 s{76+ti}, {512*t}")
        if part == 0: a("s_branch L_cvh_epi")
    a.label("L_cvh_epi")
    a.srd(88, 8, SZ_SD, WS_Y2T)
    a("s_cmp_eq_u32 s82, 0")
    a("s_cselect_b32 s84, 0x7f000000, s84")
    for ti in range(4):
        a(f"s_cselect_b32 s{76+ti}, 0, s{76+ti}")
    a("v_lshlrev_b32 v213, 16, v213")
    a("v_lshlrev_b32 v224, 5, v220")
    a("v_lshlrev_b32 v226, 3, v221")
    a("v_add_u32 v224, v224, v226")
    a(f"v_sub_u32 v226, {CV_U+4088}, v224")
    a("v_add_u32 v226, s83, v226")
    a("v_add_u32 v224, s84, v224")
    for ti in range(4):
        a(f"v_subrev_u32 v227, s{76+ti}, v226")
        a(f"ds_read_b64 v[{84+2*ti}:{85+2*ti}], v227")
    a("s_waitcnt lgkmcnt(0)")
    for ti in range(4):
        y = ACC + 4*ti; kq = 84 + 2*ti; T = 100 + 8*(ti & 1)
        unpack_hi(a, T, kq+1); unpack_lo(a, T+1, kq+1); unpack_hi(a, T+2, kq); unpack_lo(a, T+3, kq)
        for i in range(4):
            a(f"v_mul_f32 v{T+i}, v{T+i}, v213")
        a(f"v_cvt_pk_bf16_f32 v{T+4}, v{T}, v{T+1}")
        a(f"v_cvt_pk_bf16_f32 v{T+5}, v{T+2}, v{T+3}")
        a(f"v_cvt_pk_bf16_f32 v{T+6}, v{y}, v{y+1}")
        a(f"v_cvt_pk_bf16_f32 v{T+7}, v{y+2}, v{y+3}")
        unpack_lo(a, T, T+4); unpack_hi(a, T+1, T+4); unpack_lo(a, T+2, T+5); unpack_hi(a, T+3, T+5)
        unpack_lo(a, y, T+6); unpack_hi(a, y+1, T+6); unpack_lo(a, y+2, T+7); unpack_hi(a, y+3, T+7)
        for i in range(4):
            a(f"v_add_f32 v{T+i}, v{T+i}, v{y+i}")
        a(f"v_cvt_pk_bf16_f32 v{240+2*ti}, v{T}, v{T+1}")
        a(f"v_cvt_pk_bf16_f32 v{241+2*ti}, v{T+2}, v{T+3}")
        a.vmem(f"buffer_store_dwordx2 v[{240+2*ti}:{241+2*ti}], v224, s[88:91], s{76+ti} offen", "CS")

def gen_gemm1(a):
    a.kernel_begin("gemm1_kernel")
    a("s_cmp_ge_u32 s2, 256")
    a("s_cbranch_scc1 L_g1_end")
    a.stamp(0)
    a("s_load_dwordx4 s[4:7], s[0:1], 56")
    a("s_load_dwordx2 s[8:9], s[0:1], 96")
    a("s_load_dwordx4 s[72:75], s[0:1], 32")
    a("s_load_dwordx2 s[86:87], s[0:1], 72")
    a("v_and_b32 v1, 63, v0")
    a("v_lshrrev_b32 v2, 6, v0")
    a("s_nop 0")
    a("v_readfirstlane_b32 s40, v2")
    a("s_and_b32 s30, s2, 7")
    a("s_lshr_b32 s31, s2, 3")
    a("s_lshl_b32 s30, s30, 2")
    a("s_and_b32 s32, s31, 3")
    a("s_add_u32 s30, s30, s32")
    a("s_lshr_b32 s31, s31, 2")
    a("s_mul_i32 s33, s30, 288")
    vD, vA, vB = 2, 7, 9
    AB, WB, ACC = 20, 84, 108
    NAB = 4
    gemm_setup_dma(a, 9216, vD, 34, 35, True)
    a("s_lshl_b32 s36, s31, 4")
    a("s_lshl_b32 s37, s40, 1")
    a("s_add_u32 s36, s36, s37")
    a("s_mul_i32 s37, s36, 18432")
    a("v_lshlrev_b32 v17, 4, v1")
    a(f"v_add_u32 v{vA}, s37, v17")
    a(f"v_add_u32 v{vA+1}, 18432, v{vA}")
    a("s_waitcnt lgkmcnt(0)")
    a("s_cmp_ge_u32 s40, 4")
    a("s_cselect_b32 s10, s6, s4")
    a("s_cselect_b32 s11, s7, s5")
    a("s_add_u32 s12, s10, s33")
    a("s_addc_u32 s13, s11, 0")
    a(f"s_sub_u32 s14, {SZ_W}, s33")
    a("s_mov_b32 s15, 0x00020000")
    a.srd(16, 8, SZ_SD, WS_XN)
    a.srd(20, 8, SZ_H, WS_H)
    def a_loads(j):
        b = AB + 16 * (j % NAB)
        a(f"s_mov_b32 s47, {2048*j}")
        for t in range(2):
            for kh in range(2):
                r = b + 8*t + 4*kh
                a.vmem(f"buffer_load_dwordx4 v[{r}:{r+3}], v{vA+t}, s[16:19], s47 offen offset:{1024*kh}", f"A{j}")
    KB = 64 * 9216
    dma = lambda j: gemm_dma(a, j, vD, 34, 35, 12, KB)
    if 'cvhead' in FL: conv_head_loads(a)
    dma(0); a_loads(0); dma(1); a_loads(1)
    def g1_pf():
        a("s_and_b32 s41, s2, 7")
        a("s_mul_i32 s41, s41, 1152")
        a("s_add_u32 s24, s10, s41")
        a("s_addc_u32 s25, s11, 0")
        a(f"s_sub_u32 s26, {SZ_W}, s41")
        a("s_mov_b32 s27, 0x00020000")
        a("s_lshr_b32 s41, s2, 3")
        a("v_mul_u32_u24 v17, 3641, v1")
        a("v_lshrrev_b32 v17, 16, v17")
        a("v_mul_u32_u24 v18, 18, v17")
        a("v_sub_u32 v18, v1, v18")
        a("v_lshlrev_b32 v17, 5, v17")
        a("v_add_u32 v17, s41, v17")
        a("v_mul_u32_u24 v17, 9216, v17")
        a("v_lshlrev_b32 v18, 6, v18")
        a("v_add_u32 v17, v17, v18")
        a("s_and_b32 s42, s40, 3")
        a(f"s_mul_i32 s43, s42, {3*32*9216}")
        a(f"s_add_u32 s43, s43, {4*32*9216}")
        a.vmem("buffer_load_dword v0, v17, s[24:27], s43 offen", "PF")
        a("s_and_b32 s42, s41, 3")
        a("s_lshl_b32 s42, s42, 2")
        a("s_lshl_b32 s44, s31, 4")
        a("s_add_u32 s42, s42, s44")
        a("s_and_b32 s44, s40, 1")
        a("s_lshl_b32 s44, s44, 1")
        a("s_add_u32 s42, s42, s44")
        a("s_mul_i32 s42, s42, 18432")
        a("s_lshr_b32 s44, s40, 1")
        a("s_lshl_b32 s44, s44, 11")
        a("s_add_u32 s42, s42, s44")
        a("s_add_u32 s42, s42, 4096")
        a("v_lshrrev_b32 v18, 5, v1")
        a("v_mul_u32_u24 v18, 18432, v18")
        a("v_and_b32 v19, 31, v1")
        a("v_lshlrev_b32 v19, 6, v19")
        a("v_add_u32 v18, v18, v19")
        a.vmem("buffer_load_dword v0, v18, s[16:19], s42 offen", "PF")
        a(f"s_add_u32 s43, s43, {12*32*9216}")
        a.vmem("buffer_load_dword v0, v17, s[24:27], s43 offen", "PF")
        a("s_add_u32 s42, s42, 8192")
        a("s_cmp_ge_u32 s40, 6")
        a("s_cselect_b32 s42, 0x7f000000, s42")
        a.vmem("buffer_load_dword v0, v18, s[16:19], s42 offen", "PF")
    if 'cvhead' in FL: conv_head_compute(a)
    a("v_lshrrev_b32 v17, 4, v1")
    a("v_lshrrev_b32 v18, 2, v1")
    a("v_and_b32 v18, 3, v18")
    a("v_and_b32 v19, 1, v17")
    a("v_lshlrev_b32 v17, 4, v17")
    a("v_add_u32 v17, v17, v18")
    a("v_lshlrev_b32 v19, 2, v19")
    a("v_add_u32 v18, v17, v19")
    a("v_xor_b32 v19, 4, v19")
    a("v_add_u32 v19, v17, v19")
    a("v_mul_u32_u24 v18, 288, v18")
    a("v_mul_u32_u24 v19, 288, v19")
    a("v_and_b32 v17, 3, v1")
    a("v_lshlrev_b32 v17, 3, v17")
    a(f"v_add_u32 v{vB}, v18, v17")
    a(f"v_add_u32 v{vB+1}, v19, v17")
    for st in range(1, NST):
        a(f"v_add_u32 v{vB+2*st}, {st*STAGE}, v{vB}")
        a(f"v_add_u32 v{vB+2*st+1}, {st*STAGE}, v{vB+1}")
    for i in range(144):
        a(f"v_mov_b32 v{ACC+i}, 0")
    a.stamp(1)
    NU = 36
    units = [(j, kh, mat, c) for j in range(9) for kh in range(2) for mat in range(2) for c in range(9)]
    def w_reads(U):
        j, kh, mat, c = units[U]
        st = j % NST
        r = WB + 4 * (U % (PD + 1))
        off = mat*18432 + 8*kh*288 + c*32
        a.lds(f"ds_read_b64_tr_b16 v[{r}:{r+1}], v{vB+2*st} offset:{off}", f"W{U}")
        a.lds(f"ds_read_b64_tr_b16 v[{r+2}:{r+3}], v{vB+2*st+1} offset:{off}", f"W{U}")
    def mfmas(U):
        j, kh, mat, c = units[U]
        r = WB + 4 * (U % (PD + 1))
        for t in range(2):
            ac = ACC + 4 * (t*18 + mat*9 + c)
            ar = AB + 16*(j % NAB) + 8*t + 4*kh
            a(f"v_mfma_f32_16x16x32_bf16 v[{ac}:{ac+3}], v[{r}:{r+3}], v[{ar}:{ar+3}], v[{ac}:{ac+3}]")
    def w2_pf():
        a("s_bfe_u32 s41, s2, 0x10002")
        if 'swap' in FL: a("s_xor_b32 s41, s41, 1")
        a("s_cmp_eq_u32 s41, 0")
        a(f"s_cselect_b32 s41, {128*int(os.environ.get('NJP','15'))*1152}, 0")
        a(f"s_mov_b32 s26, {128*int(os.environ.get('NJP','15'))*1152}")
        a(f"s_cselect_b32 s26, {128*(36-int(os.environ.get('NJP','15')))*1152}, s26")
        a("s_add_u32 s24, s86, s41")
        a("s_addc_u32 s25, s87, 0")
        a("s_mov_b32 s27, 0x00020000")
        a("s_and_b32 s41, s2, 0xf8")
        a("s_add_u32 s41, s41, s40")
        a("s_lshl_b32 s41, s41, 13")
        a(f"s_add_u32 s42, s41, {256*8192}")
        a("v_lshlrev_b32 v17, 7, v1")
        a.vmem("buffer_load_dword v0, v17, s[24:27], s41 offen", "PF2")
        a.vmem("buffer_load_dword v0, v17, s[24:27], s42 offen", "PF2")
        if 'ssmfront' in FL: return
        a.srd(76, 72, SZ_SD)
        a("s_lshl_b32 s41, s2, 3")
        a("s_add_u32 s41, s41, s40")
        a("s_mul_i32 s41, s41, 1152")
        a("s_mov_b32 exec_lo, 0x1ff")
        a("s_mov_b32 exec_hi, 0")
        a.vmem("buffer_load_dword v0, v17, s[76:79], s41 offen", "PF2")
        a("s_mov_b64 exec, -1")
    gemm_loop(a, units, NU, NAB, w_reads, mfmas, a_loads, dma,
              {2: lambda: dma(2), 8: lambda: a_loads(2), 14: (g1_pf if 'g1pf' in FL else (lambda: None)), 22: lambda: a_loads(3)}, late=(None if 'nopf2' in FL else w2_pf))
    a.stamp(4)
    a("s_mul_i32 s37, s36, 147456")
    a("s_mul_i32 s38, s30, 9")
    a("s_and_b32 s39, s38, 1")
    a("s_lshr_b32 s38, s38, 1")
    a("s_lshl_b32 s38, s38, 10")
    a("s_add_u32 s37, s37, s38")
    a("v_lshlrev_b32 v17, 4, v1")
    a("v_add_u32 v2, s37, v17")
    a("v_add_u32 v3, 147456, v2")
    a("s_mov_b32 s46, 0xbfb8aa3b")
    a("s_mov_b32 s47, 0xbfb8aa3b")
    a("s_mov_b32 s48, 1.0")
    a("s_mov_b32 s49, 1.0")
    a("s_movk_i32 s45, 4096")
    a("s_cmp_eq_u32 s39, 0")
    a("s_cbranch_scc0 L_g1_epi_odd")
    def group(t, c, T, O):
        g = ACC + 4*(t*18 + c); u_ = ACC + 4*(t*18 + 9 + c)
        a(f"v_cvt_pk_bf16_f32 v{T}, v{g}, v{g+1}")
        a(f"v_cvt_pk_bf16_f32 v{T+1}, v{g+2}, v{g+3}")
        a(f"v_cvt_pk_bf16_f32 v{T+2}, v{u_}, v{u_+1}")
        a(f"v_cvt_pk_bf16_f32 v{T+3}, v{u_+2}, v{u_+3}")
        unpack_lo(a, g, T); unpack_hi(a, g+1, T); unpack_lo(a, g+2, T+1); unpack_hi(a, g+3, T+1)
        a(f"v_pk_mul_f32 v[{T+4}:{T+5}], v[{g}:{g+1}], s[46:47]")
        a(f"v_pk_mul_f32 v[{T+6}:{T+7}], v[{g+2}:{g+3}], s[46:47]")
        unpack_lo(a, u_, T+2); unpack_hi(a, u_+1, T+2)
        for i in range(4):
            a(f"v_exp_f32 v{T+4+i}, v{T+4+i}")
        unpack_lo(a, u_+2, T+3); unpack_hi(a, u_+3, T+3)
        a(f"v_pk_add_f32 v[{T+4}:{T+5}], v[{T+4}:{T+5}], s[48:49]")
        a(f"v_pk_add_f32 v[{T+6}:{T+7}], v[{T+6}:{T+7}], s[48:49]")
        for i in range(4):
            a(f"v_rcp_f32 v{T+4+i}, v{T+4+i}")
        a("s_nop 0")
        a(f"v_pk_mul_f32 v[{T+4}:{T+5}], v[{T+4}:{T+5}], v[{g}:{g+1}]")
        a(f"v_pk_mul_f32 v[{T+6}:{T+7}], v[{T+6}:{T+7}], v[{g+2}:{g+3}]")
        a(f"v_cvt_pk_bf16_f32 v{T}, v{T+4}, v{T+5}")
        a(f"v_cvt_pk_bf16_f32 v{T+1}, v{T+6}, v{T+7}")
        unpack_lo(a, T+4, T); unpack_hi(a, T+5, T); unpack_lo(a, T+6, T+1); unpack_hi(a, T+7, T+1)
        a(f"v_pk_mul_f32 v[{T+4}:{T+5}], v[{T+4}:{T+5}], v[{u_}:{u_+1}]")
        a(f"v_pk_mul_f32 v[{T+6}:{T+7}], v[{T+6}:{T+7}], v[{u_+2}:{u_+3}]")
        a(f"v_cvt_pk_bf16_f32 v{O}, v{T+4}, v{T+5}")
        a(f"v_cvt_pk_bf16_f32 v{O+1}, v{T+6}, v{T+7}")
    HF = ' sc1' if 'hsc1' in FL else (' nt' if 'hnt' in FL else (' sc0 sc1' if 'hsc01' in FL else ''))
    for par in range(2):
        if par == 1: a.label("L_g1_epi_odd")
        n = 0
        for t in range(2):
            for c in range(9):
                T2 = c + par
                m, hi = T2 >> 1, T2 & 1
                O = 52 + 4 * ((t*5 + m) & 3)
                group(t, c, 20 + 8*(n & 3), O + 2*hi); n += 1
                so, imm = ("0", m*1024) if m < 4 else ("s45", 0)
                if hi == 1 and c > 0:
                    a(f"buffer_store_dwordx4 v[{O}:{O+3}], v{2+t}, s[20:23], {so} offen offset:{imm}{HF}")
                elif hi == 1 and c == 0:
                    a(f"buffer_store_dwordx2 v[{O+2}:{O+3}], v{2+t}, s[20:23], {so} offen offset:{imm+8}{HF}")
                elif hi == 0 and c == 8:
                    a(f"buffer_store_dwordx2 v[{O}:{O+1}], v{2+t}, s[20:23], {so} offen offset:{imm}{HF}")
        if par == 0: a("s_branch L_g1_epi_done")
    a.label("L_g1_epi_done")
    a.stamp(5)
    a.stamp_flush(6, 8, 0x8000000)
    a.label("L_g1_end")
    a("s_endpgm")
    return desc("gemm1_kernel", 252, 100)

G2_ST = 24576
G2_NS = 5
G2_NJP = int(os.environ.get('NJP', '15')); G2_NJC = 36 - G2_NJP
G2_HP = int(os.environ.get('HP', '3')); G2_HL = int(os.environ.get('HL', '2'))
G2_Y = G2_NS * G2_ST
G2_LDS = G2_Y + 24576
def gen_gemm2(a):
    a.kernel_begin("gemm2_kernel")
    a("s_cmp_ge_u32 s2, 256")
    a("s_cbranch_scc1 L_g2_end")
    a("s_cmp_lt_u32 s2, 64")
    a("s_cbranch_scc1 L_g2_pf")
    a("s_sub_u32 s2, s2, 64")
    a.stamp(0)
    a("s_load_dwordx2 s[4:5], s[0:1], 72")
    a("s_load_dwordx2 s[6:7], s[0:1], 0")
    a("s_load_dwordx2 s[8:9], s[0:1], 96")
    a("s_load_dwordx2 s[10:11], s[0:1], 80")
    a("v_and_b32 v1, 63, v0")
    a("v_lshrrev_b32 v2, 6, v0")
    a("s_nop 0")
    a("v_readfirstlane_b32 s40, v2")
    a("s_and_b32 s30, s2, 7")
    a("s_lshr_b32 s31, s2, 3")
    a("s_mul_i32 s32, s31, 43")
    a("s_lshr_b32 s32, s32, 8")
    a("s_mul_i32 s33, s32, 6")
    a("s_sub_u32 s31, s31, s33")
    a("s_lshr_b32 s29, s30, 2")
    if 'swap' in FL: a("s_xor_b32 s29, s29, 1")
    a("s_and_b32 s30, s30, 3")
    a("s_lshl_b32 s30, s30, 2")
    a("s_add_u32 s32, s32, s30")
    a("s_and_b32 s41, s40, 3")
    a("s_lshr_b32 s42, s40, 2")
    a("s_cmp_eq_u32 s29, 0")
    a(f"s_cselect_b32 s28, {128*G2_NJP}, 0")
    a("s_mul_i32 s33, s28, 1152")
    a("s_mul_i32 s34, s31, 192")
    a("s_add_u32 s33, s33, s34")
    a("s_mul_i32 s36, s40, 3072")
    vD, vA, vB = 2, 5, 8
    AB, WB, ACC = 20, 100, 124
    NAB, PD2 = 5, 5
    a("s_movk_i32 s45, 5462")
    a("s_mul_i32 s44, s40, 192")
    for i in range(3):
        a(f"s_add_u32 s43, s44, {64*i}")
        a("v_add_u32 v17, s43, v1")
        a("v_mul_lo_u32 v18, v17, s45")
        a("v_lshrrev_b32 v18, 16, v18")
        a("v_mul_u32_u24 v19, 12, v18")
        a("v_sub_u32 v19, v17, v19")
        a("v_lshrrev_b32 v17, 1, v19")
        a("v_bfe_u32 v16, v18, 2, 1")
        a("v_sub_u32 v17, v17, v16")
        a("v_cmp_gt_i32 vcc, 0, v17")
        a("v_and_b32 v19, 1, v19")
        a("v_lshlrev_b32 v19, 4, v19")
        a("v_cndmask_b32 v17, v17, 5, vcc")
        a("v_lshlrev_b32 v17, 5, v17")
        a("v_mul_u32_u24 v18, 1152, v18")
        a(f"v_add3_u32 v{vD+i}, v17, v18, v19")
    a("s_lshl_b32 s38, s32, 3")
    a("s_lshl_b32 s39, s41, 1")
    a("s_add_u32 s38, s38, s39")
    a("s_mul_i32 s34, s38, 147456")
    a("s_lshl_b32 s35, s28, 5")
    a("s_add_u32 s34, s34, s35")
    a("s_lshl_b32 s35, s42, 11")
    a("s_add_u32 s34, s34, s35")
    a("v_lshlrev_b32 v17, 4, v1")
    a(f"v_add_u32 v{vA}, s34, v17")
    a(f"v_add_u32 v{vA+1}, 147456, v{vA}")
    a("s_waitcnt lgkmcnt(0)")
    a("s_add_u32 s12, s4, s33")
    a("s_addc_u32 s13, s5, 0")
    a(f"s_sub_u32 s14, {SZ_W}, s33")
    a("s_mov_b32 s15, 0x00020000")
    a.srd(16, 8, SZ_H, WS_H)
    a.srd(20, 8, SZ_SD, WS_Y2T)
    a.srd(24, 8, 2*SZ_SD, WS_XP)
    a.srd(72, 6, SZ_SD)
    a.srd(76, 10, SZ_SD)
    a.srd(84, 8, 96*49152, WS_P)
    a.srd(80, 8, 128*128, WS_FL)
    def a_loads(j):
        b = AB + 16 * (j % NAB)
        a(f"s_mov_b32 s47, {4096*j}")
        for t in range(2):
            for mm in range(2):
                r = b + 8*t + 4*mm
                a.vmem(f"buffer_load_dwordx4 v[{r}:{r+3}], v{vA+t}, s[16:19], s47 offen offset:{1024*mm}", f"A{j}")
    def dma(j):
        st = j % G2_NS
        a(f"s_mov_b32 s46, {j*128*1152}")
        for i in range(3):
            a(f"s_add_u32 m0, s36, {st*G2_ST + 1024*i}")
            a("s_nop 0")
            a.vmem(f"buffer_load_dwordx4 v{vD+i}, s[12:15], s46 offen lds", f"D{j}")
    dma(0); a_loads(0); dma(1); a_loads(1)
    a("v_lshrrev_b32 v17, 2, v1")
    a("v_mul_u32_u24 v17, 192, v17")
    a("v_and_b32 v18, 3, v1")
    a("v_lshlrev_b32 v18, 3, v18")
    a(f"s_mul_i32 s43, s42, {64*192}")
    a("v_add3_u32 v17, v17, v18, s43")
    a("v_bfe_u32 v18, v1, 4, 1")
    a("v_lshlrev_b32 v19, 5, v18")
    a(f"v_add_u32 v{vB}, v17, v19")
    a("v_xor_b32 v18, 1, v18")
    a("v_mul_u32_u24 v18, 160, v18")
    a(f"v_add_u32 v{vB+1}, v17, v18")
    for grp in range(1, 3):
        a(f"v_add_u32 v{vB+2*grp}, {2*grp*G2_ST}, v{vB}")
        a(f"v_add_u32 v{vB+2*grp+1}, {2*grp*G2_ST}, v{vB+1}")
    for i in range(48):
        a(f"v_mov_b32 v{ACC+i}, 0")
    a.stamp(1)
    NU = 12
    PFD = int(os.environ.get('PFD', '8'))
    a("s_lshr_b32 s43, s2, 3")
    a("s_lshl_b32 s43, s43, 2")
    a("s_add_u32 s43, s43, s41")
    a("s_mul_i32 s43, s43, 12")
    a("v_add_u32 v17, s43, v1")
    a("v_lshlrev_b32 v18, 7, v17")
    a("v_lshrrev_b32 v19, 5, v17")
    a("v_mul_u32_u24 v19, 147456, v19")
    a("v_and_b32 v17, 31, v17")
    a("v_lshlrev_b32 v17, 7, v17")
    a("v_add_u32 v19, v19, v17")
    a("s_cmp_eq_u32 s42, 0")
    a("s_cselect_b64 vcc, -1, 0")
    a("s_mul_i32 s43, s28, 1152")
    a("s_add_u32 s92, s4, s43")
    a("s_addc_u32 s93, s5, 0")
    a(f"s_sub_u32 s94, {SZ_W}, s43")
    a("v_cndmask_b32 v247, v19, v18, vcc")
    a("s_and_b32 s44, s2, 3")
    a(f"s_mul_i32 s44, s44, {32*147456}")
    a("s_lshl_b32 s45, s28, 5")
    a("s_add_u32 s44, s44, s45")
    a(f"s_add_u32 s44, s44, {PFD*4096}")
    a("s_cmp_eq_u32 s42, 0")
    a("s_cselect_b32 s92, s92, s16")
    a("s_cselect_b32 s93, s93, s17")
    a("s_cselect_b32 s94, s94, s18")
    a("s_mov_b32 s95, 0x00020000")
    a(f"s_cselect_b32 s90, {PFD*147456}, s44")
    a("s_mov_b32 s91, 4096")
    a("s_cselect_b32 s91, 147456, s91")
    def touch():
        a("s_mov_b32 exec_lo, 0xfff")
        a("s_mov_b32 exec_hi, 0")
        a.vmem("buffer_load_dword v246, v247, s[92:95], s90 offen", "T")
        a("s_mov_b64 exec, -1")
        a("s_add_u32 s90, s90, s91")
    a("s_mul_i32 s43, s40, 6144")
    a("v_lshlrev_b32 v16, 4, v1")
    a("v_add_u32 v14, s43, v16")
    a("s_xor_b32 s44, s40, 4")
    a("s_mul_i32 s44, s44, 6144")
    a("v_add_u32 v7, s44, v16")
    a("s_mul_i32 s44, s32, 6")
    a("s_add_u32 s44, s44, s31")
    a("s_mul_i32 s45, s44, 49152")
    a("v_add_u32 v15, s45, v14")
    a("s_lshl_b32 s48, s44, 7")
    a("s_mov_b32 s49, 1")
    a("s_movk_i32 s88, 4096")
    XR, NR, PR, YL, OF = 172, 184, 196, 220, 232
    a("v_and_b32 v17, 15, v1")
    a("v_lshrrev_b32 v18, 4, v1")
    a("s_add_u32 s43, s38, s42")
    a("s_mul_i32 s43, s43, 18432")
    a("s_mul_i32 s34, s31, 192")
    a("s_add_u32 s34, s34, s43")
    a("v_mul_u32_u24 v19, 1152, v17")
    a(f"v_lshlrev_b32 v{OF}, 3, v18")
    a(f"v_add3_u32 v{OF}, v19, v{OF}, s34")
    a("s_lshl_b32 s43, s43, 1")
    a("s_mul_i32 s34, s31, 6144")
    a("s_add_u32 s43, s43, s34")
    a(f"v_add_u32 v{OF+1}, s43, v16")
    def run_loop(NJ, hooks):
        units = [(j, mm, ct) for j in range(NJ) for mm in range(2) for ct in range(6)]
        def w_reads(U):
            j, mm, ct = units[U]
            st = j % G2_NS
            r = WB + 4 * (U % (PD2 + 1))
            base = vB + 2*(st >> 1) + (0 if ct < 5 else 1)
            off = (st & 1)*G2_ST + 32*mm*192 + (32*ct if ct < 5 else 0)
            a.lds(f"ds_read_b64_tr_b16 v[{r}:{r+1}], v{base} offset:{off}", f"W{U}")
            a.lds(f"ds_read_b64_tr_b16 v[{r+2}:{r+3}], v{base} offset:{off+3072}", f"W{U}")
        def mfmas(U):
            j, mm, ct = units[U]
            r = WB + 4 * (U % (PD2 + 1))
            for t in range(2):
                ac = ACC + 4 * (t*6 + ct)
                ar = AB + 16*(j % NAB) + 8*t + 4*mm
                a(f"v_mfma_f32_16x16x32_bf16 v[{ac}:{ac+3}], v[{r}:{r+3}], v[{ar}:{ar+3}], v[{ac}:{ac+3}]")
        hk = dict(hooks or {})
        if 'coop' in FL:
            for j in range(NJ - PFD):
                hk[(j, 9)] = touch
        gemm_loop(a, units, NU, NAB, w_reads, mfmas, a_loads, dma,
                  {1: lambda: dma(2), 3: lambda: a_loads(2), 4: lambda: dma(3), 5: lambda: a_loads(3), 6: lambda: a_loads(4)},
                  NJ=NJ, NS=G2_NS, PD=PD2, hooks=hk)
    def pofs(i):
        return ("0", 1024*i) if i < 4 else ("s88", 1024*(i-4))
    def exchange():
        a("s_barrier")
        a("s_cmp_lt_u32 s40, 4")
        a(f"s_cbranch_scc1 L_g2_x{exchange.n}a")
        a("s_nop 4")
        for i in range(6):
            a(f"ds_write_b128 v14, v[{ACC+4*i}:{ACC+4*i+3}] offset:{1024*i}")
        for i in range(24):
            a(f"v_mov_b32 v{20+i}, v{ACC+24+i}")
        a(f"s_branch L_g2_x{exchange.n}b")
        a.label(f"L_g2_x{exchange.n}a")
        a("s_nop 4")
        for i in range(6):
            a(f"ds_write_b128 v14, v[{ACC+24+4*i}:{ACC+24+4*i+3}] offset:{1024*i}")
        for i in range(24):
            a(f"v_mov_b32 v{20+i}, v{ACC+i}")
        a.label(f"L_g2_x{exchange.n}b")
        exchange.n += 1
    exchange.n = 0
    a("s_cmp_eq_u32 s29, 0")
    a("s_cbranch_scc1 L_g2_consumer")
    vm_save = list(a.vm)
    run_loop(G2_NJP, None)
    a.stamp(4)
    a.keepbar = True
    exchange()
    a("s_waitcnt lgkmcnt(0)")
    a("s_barrier")
    for i in range(6):
        a(f"ds_read_b128 v[{44+4*i}:{47+4*i}], v7 offset:{1024*i}")
    for i in range(6):
        a(f"s_waitcnt lgkmcnt({5-i})")
        for e in range(4):
            a(f"v_add_f32 v{20+4*i+e}, v{20+4*i+e}, v{44+4*i+e}")
        so, imm = pofs(i)
        a(f"buffer_store_dwordx4 v[{20+4*i}:{23+4*i}], v15, s[84:87], {so} offen offset:{imm} sc1")
    a("s_waitcnt vmcnt(0)")
    a("s_barrier")
    a("s_cmp_lg_u32 s40, 0")
    a("s_cbranch_scc1 L_g2_fin")
    a("v_mov_b32 v20, s48")
    a("v_mov_b32 v21, s49")
    a("s_mov_b64 exec, 1")
    a("buffer_store_dword v21, v20, s[80:83], 0 offen sc1")
    a("s_mov_b64 exec, -1")
    a("s_branch L_g2_fin")
    a.label("L_g2_consumer")
    a.vm = vm_save; a.lg = []; a.keepbar = False
    def x_loads():
        for ct in range(6):
            so, imm = pofs(ct)
            a.vmem(f"buffer_load_dwordx4 v[{XR+4*ct}:{XR+4*ct+3}], v{OF+1}, s[24:27], {so} offen offset:{imm}", "X")
    def early_polls():
        a("v_mov_b32 v17, s48")
        a.vmem("buffer_load_dword v244, v17, s[80:83], 0 offen sc1", "F")
    def early_loads():
        if 'st2' in FL: a.stamp(1)
        a.wait_vm("F")
        a("v_readfirstlane_b32 s43, v244")
        a("v_mov_b32 v17, s48")
        a("s_nop 2")
        a("s_and_b32 s43, s43, s49")
        a("s_cbranch_scc1 L_g2_go2")
        a.label("L_g2_poll2")
        a("s_sleep 8")
        a("buffer_load_dword v18, v17, s[80:83], 0 offen sc1")
        a("s_waitcnt vmcnt(0)")
        a("v_readfirstlane_b32 s43, v18")
        a("s_nop 3")
        a("s_and_b32 s43, s43, s49")
        a("s_cbranch_scc0 L_g2_poll2")
        a.label("L_g2_go2")
        for i in range(6):
            so, imm = pofs(i)
            a.vmem(f"buffer_load_dwordx4 v[{PR+4*i}:{PR+4*i+3}], v15, s[84:87], {so} offen offset:{imm} sc1", "E")
        if 'st2' in FL: a.stamp(3)
    def y_loads():
        for p in range(3):
            a(f"buffer_load_dwordx4 v[{YL+4*p}:{YL+4*p+3}], v{OF+2}, s[20:23], s{96+p} offen sc1")
    def conv_poll():
        a("s_lshl_b32 s43, s31, 7")
        a(f"s_add_u32 s43, s43, {96*128}")
        a(f"v_mov_b32 v{OF+3}, s43")
        a.vmem(f"buffer_load_dword v245, v{OF+3}, s[80:83], 0 offen sc1", "G")
        a("v_lshrrev_b32 v17, 4, v1")
        a("v_lshlrev_b32 v17, 12, v17")
        a("v_and_b32 v18, 15, v1")
        a("v_lshlrev_b32 v18, 4, v18")
        a(f"v_add_u32 v{OF+2}, v17, v18")
        a("s_mul_i32 s96, s31, 96")
        a("s_mul_i32 s35, s40, 12")
        a("s_add_u32 s96, s96, s35")
        a("s_lshl_b32 s96, s96, 12")
        a("s_lshl_b32 s35, s32, 8")
        a("s_add_u32 s96, s96, s35")
        a("s_add_u32 s97, s96, 16384")
        a("s_add_u32 s98, s96, 32768")
    def conv_check():
        a.wait_vm("G")
        a("v_readfirstlane_b32 s89, v245")
        a("s_nop 3")
        a("s_cmp_lt_u32 s89, 384")
        a("s_cbranch_scc1 L_g2_cc")
        y_loads()
        a.label("L_g2_cc")
    run_loop(G2_NJC, {(6, 1): x_loads, (G2_NJC - G2_HP, 1): early_polls, (G2_NJC - G2_HL, 1): early_loads,
                      (G2_NJC - 3, 2): conv_poll, (G2_NJC - 1, 2): conv_check})
    a.stamp(4)
    a.keepbar = True
    a("s_cmp_ge_u32 s89, 384")
    a("s_cbranch_scc1 L_g2_go")
    a.label("L_g2_poll")
    a("s_sleep 24")
    a(f"buffer_load_dword v18, v{OF+3}, s[80:83], 0 offen sc1")
    a("s_waitcnt vmcnt(0)")
    a("v_readfirstlane_b32 s44, v18")
    a("s_nop 3")
    a("s_cmp_ge_u32 s44, 384")
    a("s_cbranch_scc0 L_g2_poll")
    y_loads()
    a.label("L_g2_go")
    a("s_mul_i32 s35, s40, 3072")
    a(f"s_add_u32 s35, s35, {G2_Y}")
    a("v_add_u32 v19, s35, v16")
    exchange()
    a("v_lshrrev_b32 v16, 2, v1")
    a("v_lshlrev_b32 v16, 8, v16")
    a("v_and_b32 v17, 3, v1")
    a("v_lshlrev_b32 v17, 3, v17")
    a("s_lshl_b32 s43, s41, 6")
    a("s_lshl_b32 s44, s42, 5")
    a("s_add_u32 s43, s43, s44")
    a(f"s_add_u32 s43, s43, {G2_Y}")
    a("v_add3_u32 v16, v16, v17, s43")
    a("s_waitcnt vmcnt(3)")
    for i in range(24):
        a(f"v_add_f32 v{20+i}, v{20+i}, v{PR+i}")
    a("s_waitcnt vmcnt(0)")
    for p in range(3):
        a(f"ds_write_b128 v19, v[{YL+4*p}:{YL+4*p+3}] offset:{1024*p}")
    a("s_waitcnt lgkmcnt(0)")
    a("s_barrier")
    YR = 68
    for i in range(6):
        a(f"ds_read_b128 v[{44+4*i}:{47+4*i}], v7 offset:{1024*i}")
    for ct in range(6):
        a(f"ds_read_b64_tr_b16 v[{YR+2*ct}:{YR+2*ct+1}], v16 offset:{4096*ct}")
    a("s_waitcnt lgkmcnt(0)")
    for z in range(6):
        T = 92 + 6*(z & 1)
        for e in range(4):
            a(f"v_add_f32 v{20+4*z+e}, v{20+4*z+e}, v{44+4*z+e}")
        for w in range(2):
            xr, xnr, yr, br = XR+4*z+w, XR+4*z+2+w, YR+2*z+w, 20+4*z+2*w
            unpack_lo(a, T, xnr); unpack_hi(a, T+1, xnr)
            unpack_lo(a, T+2, yr); unpack_hi(a, T+3, yr)
            a(f"v_mul_f32 v{T}, v{T}, v{T+2}")
            a(f"v_mul_f32 v{T+1}, v{T+1}, v{T+3}")
            a(f"v_cvt_pk_bf16_f32 v{T+2}, v{T}, v{T+1}")
            unpack_lo(a, T, T+2); unpack_hi(a, T+1, T+2)
            unpack_lo(a, T+3, xr); unpack_hi(a, T+4, xr)
            a(f"v_add_f32 v{T}, v{T}, v{T+3}")
            a(f"v_add_f32 v{T+1}, v{T+1}, v{T+4}")
            a(f"v_cvt_pk_bf16_f32 v{T+2}, v{T}, v{T+1}")
            unpack_lo(a, T, T+2); unpack_hi(a, T+1, T+2)
            a(f"v_cvt_pk_bf16_f32 v{T+2}, v{br}, v{br+1}")
            unpack_lo(a, T+3, T+2); unpack_hi(a, T+4, T+2)
            a(f"v_add_f32 v{T}, v{T}, v{T+3}")
            a(f"v_add_f32 v{T+1}, v{T+1}, v{T+4}")
            a(f"v_cvt_pk_bf16_f32 v{xr}, v{T}, v{T+1}")
        a(f"buffer_store_dwordx2 v[{XR+4*z}:{XR+4*z+1}], v{OF}, s[76:79], 0 offen offset:{32*z}")
    a.label("L_g2_fin")
    a.stamp(5)
    a.stamp_flush(6, 8, 0x8100000)
    a("s_endpgm")
    a.label("L_g2_pf")
    if 'stamp' in FL: a("s_memtime s[64:65]")
    a("s_load_dwordx2 s[44:45], s[0:1], 72")
    a("s_load_dwordx2 s[8:9], s[0:1], 96")
    a("s_load_dwordx4 s[4:7], s[0:1], 32")
    a("v_and_b32 v1, 63, v0")
    a("v_lshrrev_b32 v2, 6, v0")
    a("s_nop 0")
    a("v_readfirstlane_b32 s40, v2")
    a("s_lshl_b32 s31, s40, 6")
    a("s_add_u32 s30, s2, s31")
    a(f"s_mul_i32 s31, s40, {CV_SZ}")
    a("s_lshl_b32 s32, s30, 12")
    a("v_lshlrev_b32 v2, 4, v1")
    a("s_waitcnt lgkmcnt(0)")
    a.srd(12, 4, SZ_SD)
    a.srd(16, 6, D*2)
    a.srd(20, 8, SZ_SD, WS_KVT)
    a.srd(24, 8, SZ_SD, WS_Y2T)
    a.srd(36, 8, 128*128, WS_FL)
    def cloads(kb, dreg, sd, sdb, slds):
        for i in range(4):
            a(f"buffer_load_dwordx4 v[{kb+6*i}:{kb+3+6*i}], v2, s[12:15], s{sdb} offen offset:{1024*i}")
            a(f"buffer_load_dword v{kb+4+6*i}, v2, s[12:15], s{sdb} offen offset:{1024*i+16}")
        for i in range(4):
            a(f"s_add_u32 m0, s{slds}, {CV_U + 1024*i}")
            a(f"s_add_u32 s33, s{sdb}, {1024*i}")
            a("buffer_load_dwordx4 v2, s[20:23], s33 offen lds")
        a(f"s_lshl_b32 s33, s{sd}, 1")
        a(f"v_mov_b32 v{dreg}, s33")
        a(f"buffer_load_ushort v{dreg}, v{dreg}, s[16:19], 0 offen")
    cloads(48, 3, 30, 32, 31)
    a("s_add_u32 s46, s2, 512")
    a("s_lshl_b32 s47, s46, 12")
    a(f"s_mov_b32 s48, {8*CV_SZ}")
    a("s_cmp_ge_u32 s40, 4")
    a("s_cbranch_scc1 L_g2_pf2")
    cloads(176, 200, 46, 47, 48)
    a.label("L_g2_pf2")
    a("s_barrier")
    a("s_and_b32 s50, s2, 7")
    a("s_and_b32 s51, s2, 56")
    a("s_add_u32 s51, s51, s40")
    a("s_lshr_b32 s52, s50, 2")
    if 'swap' in FL: a("s_xor_b32 s52, s52, 1")
    a("v_lshlrev_b32 v199, 7, v1")
    a("s_lshl_b32 s53, s51, 13")
    a("v_lshrrev_b32 v5, 4, v1")
    a("v_mul_u32_u24 v5, 147456, v5")
    a("v_and_b32 v6, 15, v1")
    a("v_lshlrev_b32 v6, 7, v6")
    a("v_add_u32 v181, v5, v6")
    a("s_and_b32 s54, s50, 3")
    a("s_lshl_b32 s54, s54, 5")
    a("s_and_b32 s55, s51, 7")
    a("s_lshl_b32 s55, s55, 2")
    a("s_add_u32 s54, s54, s55")
    a("s_mul_i32 s54, s54, 147456")
    a("s_cmp_eq_u32 s52, 0")
    a(f"s_cselect_b32 s55, {128*G2_NJP*32}, 0")
    a(f"s_cselect_b32 s52, {128*G2_NJP*1152}, 0")
    a(f"s_mov_b32 s58, {128*G2_NJP*1152}")
    a(f"s_cselect_b32 s58, {128*G2_NJC*1152}, s58")
    a(f"s_cselect_b32 s43, {2*G2_NJC}, {2*G2_NJP}")
    a("s_add_u32 s54, s54, s55")
    a("s_lshr_b32 s50, s51, 3")
    a("s_lshl_b32 s55, s50, 11")
    a("s_add_u32 s54, s54, s55")
    a("s_add_u32 s56, s44, s52")
    a("s_addc_u32 s57, s45, 0")
    a("s_mov_b32 s59, 0x00020000")
    a.srd(60, 8, SZ_H, WS_H)
    def pf(rs):
        for r in rs:
            a(f"buffer_load_dword v201, v199, s[56:59], s53 offen")
            a(f"s_add_u32 s53, s53, {64*8192}")
            a("s_cmp_ge_u32 s50, s43")
            a("s_cselect_b32 s55, 0x7f000000, s54")
            a(f"buffer_load_dword v201, v181, s[60:63], s55 offen")
            a("s_add_u32 s54, s54, 16384")
            a("s_add_u32 s50, s50, 8")
    NPF = int(os.environ.get('NPF', '3'))
    pf(range(0, NPF))
    a("s_mov_b32 s49, 0")
    a("v_and_b32 v9, 15, v1")
    a("v_lshrrev_b32 v10, 4, v1")
    a("v_lshlrev_b32 v12, 4, v10")
    a(f"s_waitcnt vmcnt({2*NPF})")
    if 'stamp' in FL: a("s_memtime s[66:67]")
    def conv_body(ts):
        a("v_add_u32 v8, s31, v2")
        a("v_lshlrev_b32 v11, 1, v9")
        a("v_add_u32 v11, v11, v12")
        a("v_and_b32 v14, 1, v9")
        a("v_cmp_eq_u32 vcc, 1, v14")
        a(f"v_mov_b32 v14, {CV_O}")
        a("s_nop 1")
        a("v_cndmask_b32 v14, v14, 2, vcc")
        a("v_add_u32 v11, v11, v14")
        a("v_add_u32 v11, s31, v11")
        a("v_lshlrev_b32 v13, 5, v9")
        a("v_sub_u32 v13, v12, v13")
        a(f"v_add_u32 v13, {CV_U+480}, v13")
        a("v_add_u32 v13, s31, v13")
        KA = [11, 14, 15, 202, 203]
        for i in range(1, 5):
            a(f"v_add_u32 v{KA[i]}, {960*i}, v11")
        a("v_mov_b32 v4, 0"); a("v_mov_b32 v5, 0"); a("v_mov_b32 v6, 0"); a("v_mov_b32 v7, 0")
        a("s_mov_b32 exec_hi, 0")
        a(f"ds_write_b128 v8, v[4:7] offset:{CV_U+4096}")
        a("s_mov_b32 exec_lo, 3")
        a("ds_write_b128 v8, v[4:7]")
        a("s_mov_b32 exec_lo, 1")
        a(f"ds_write_b128 v8, v[4:7] offset:{CV_O}")
        a("s_mov_b64 exec, -1")
        CA = 16; FA = 48; FB = 80
        mx = max(ts)
        for t in ts:
            for i in range(4): a(f"v_mov_b32 v{CA+4*t+i}, 0")
        for i in range(4):
            b = 48 + 6*i
            a(f"ds_write_b128 v8, v[{b}:{b+3}] offset:{32+1024*i}")
            for t in range(4):
                a(f"v_alignbit_b32 v{112+4*(i&1)+t}, v{b+t+1}, v{b+t}, 16")
            a(f"ds_write_b128 v8, v[{112+4*(i&1)}:{115+4*(i&1)}] offset:{CV_O+32+1024*i}")
            if i == 0:
                a("v_lshlrev_b32 v7, 16, v48")
                a("s_mov_b64 exec, 1")
                a(f"ds_write_b128 v8, v[4:7] offset:{CV_O+16}")
                a("s_mov_b64 exec, -1")
        a("s_waitcnt lgkmcnt(0)")
        def creads(rho):
            o = 64 * (rho & 1)
            for pi in range(mx + 1):
                p = 8*pi + rho
                r = FA+o+4*pi
                a(f"ds_read2_b32 v[{r}:{r+1}], v{KA[p//15]} offset0:{16*(p%15)} offset1:{16*(p%15)+1}")
                a(f"ds_read2_b32 v[{r+2}:{r+3}], v{KA[p//15]} offset0:{16*(p%15)+2} offset1:{16*(p%15)+3}")
                w = 8*pi - rho
                a(f"ds_read_b128 v[{FB+o+4*pi}:{FB+o+4*pi+3}], v13 offset:{64*(56-w)}")
        creads(0)
        for rho in range(8):
            a("s_waitcnt lgkmcnt(0)")
            if rho < 7:
                creads(rho + 1)
            o = 64 * (rho & 1)
            for t in ts:
                for pi in range(t + 1):
                    tau = t - pi
                    a(f"v_mfma_f32_16x16x32_bf16 v[{CA+4*t}:{CA+4*t+3}], v[{FA+o+4*pi}:{FA+o+4*pi+3}], v[{FB+o+4*tau}:{FB+o+4*tau+3}], v[{CA+4*t}:{CA+4*t+3}]")
        a("v_lshlrev_b32 v3, 16, v3")
        a("v_lshlrev_b32 v14, 5, v9")
        a("v_lshlrev_b32 v15, 3, v10")
        a("v_add_u32 v14, v14, v15")
        a(f"v_sub_u32 v15, {CV_U+504}, v14")
        a("v_add_u32 v15, s31, v15")
        a("v_add_u32 v14, s32, v14")
        for t in ts:
            a(f"ds_read_b64 v[{48+2*t}:{49+2*t}], v15 offset:{512*(7-t)}")
        a("s_waitcnt lgkmcnt(0)")
        for n_, t in enumerate(ts):
            y = CA + 4*t; kq = 48 + 2*t; T = 64 + 8*(n_ & 1)
            unpack_hi(a, T, kq+1); unpack_lo(a, T+1, kq+1); unpack_hi(a, T+2, kq); unpack_lo(a, T+3, kq)
            for i in range(4):
                a(f"v_mul_f32 v{T+i}, v{T+i}, v3")
            a(f"v_cvt_pk_bf16_f32 v{T+4}, v{T}, v{T+1}")
            a(f"v_cvt_pk_bf16_f32 v{T+5}, v{T+2}, v{T+3}")
            a(f"v_cvt_pk_bf16_f32 v{T+6}, v{y}, v{y+1}")
            a(f"v_cvt_pk_bf16_f32 v{T+7}, v{y+2}, v{y+3}")
            unpack_lo(a, T, T+4); unpack_hi(a, T+1, T+4); unpack_lo(a, T+2, T+5); unpack_hi(a, T+3, T+5)
            unpack_lo(a, y, T+6); unpack_hi(a, y+1, T+6); unpack_lo(a, y+2, T+7); unpack_hi(a, y+3, T+7)
            for i in range(4):
                a(f"v_add_f32 v{T+i}, v{T+i}, v{y+i}")
            a(f"v_cvt_pk_bf16_f32 v{y}, v{T}, v{T+1}")
            a(f"v_cvt_pk_bf16_f32 v{y+1}, v{T+2}, v{T+3}")
            a(f"buffer_store_dwordx2 v[{y}:{y+1}], v14, s[24:27], 0 offen offset:{512*t} sc1")
    conv_body(list(range(8)))
    a("s_mul_i32 s33, s30, 683")
    a("s_lshr_b32 s33, s33, 16")
    a("s_lshl_b32 s33, s33, 7")
    a(f"s_add_u32 s33, s33, {96*128}")
    a("s_cmp_ge_u32 s40, 4")
    a("s_cbranch_scc1 L_g2_pub")
    a("s_mov_b32 s32, s47")
    a("s_mov_b32 s31, s48")
    for i in range(24):
        a(f"v_mov_b32 v{48+i}, v{176+i}")
    a("v_mov_b32 v3, v200")
    for q in range(4):
        if q < 3:
            a(f"s_cmp_lg_u32 s40, {q}")
            a(f"s_cbranch_scc1 L_g2_q{q+1}")
        conv_body([7 - q, q])
        if q < 3:
            a("s_branch L_g2_pub2")
            a.label(f"L_g2_q{q+1}")
    a.label("L_g2_pub2")
    a(f"v_mov_b32 v14, {101*128}")
    a("v_mov_b32 v15, 1")
    a("s_waitcnt vmcnt(0)")
    a("s_mov_b64 exec, 1")
    a("buffer_atomic_add v15, v14, s[36:39], 0 offen")
    a("s_mov_b64 exec, -1")
    a.label("L_g2_pub")
    if 'stamp' in FL: a("s_memtime s[68:69]")
    a("v_mov_b32 v14, s33")
    a("v_mov_b32 v15, 4")
    a("s_waitcnt vmcnt(0)")
    if 'stamp' in FL: a("s_memtime s[70:71]")
    a("s_mov_b64 exec, 1")
    a("buffer_atomic_add v15, v14, s[36:39], 0 offen")
    a("s_mov_b64 exec, -1")
    if 'hpf2' in FL: pf(range(NPF, 6))
    if 'stamp' in FL:
        a("s_waitcnt vmcnt(0)")
        a("s_memtime s[72:73]")
        a("s_waitcnt lgkmcnt(0)")
        a("s_add_u32 s76, s8, 0x8200000")
        a("s_addc_u32 s77, s9, 0")
        a("s_mov_b32 s78, 0x100000")
        a("s_mov_b32 s79, 0x00020000")
        a("s_lshl_b32 s74, s2, 9")
        a("s_lshl_b32 s75, s40, 6")
        a("s_add_u32 s74, s74, s75")
        a("v_mov_b32 v5, s74")
        for i in range(8):
            ii = min(i, 4)
            a(f"v_mov_b32 v6, s{64+2*ii}")
            a(f"v_mov_b32 v7, s{65+2*ii}")
            a(f"buffer_store_dwordx2 v[6:7], v5, s[76:79], 0 offen offset:{8*i}")
            a("s_nop 1")
    a.label("L_g2_end")
    a("s_endpgm")
    return desc("gemm2_kernel", 248, 100)

def gen_final(a):
    a.kernel_begin("final_kernel")
    a("s_cmp_ge_u32 s2, 288")
    a("s_cbranch_scc1 L_fin_end")
    a("s_load_dwordx2 s[4:5], s[0:1], 0")
    a("s_load_dwordx2 s[6:7], s[0:1], 80")
    a("s_load_dwordx2 s[8:9], s[0:1], 96")
    a("s_and_b32 s32, s2, 31")
    a("s_lshr_b32 s33, s2, 5")
    a("s_waitcnt lgkmcnt(0)")
    a.srd(12, 4, SZ_SD)
    a.srd(16, 6, SZ_SD)
    a.srd(20, 8, SZ_SD, WS_XN)
    a.srd(24, 8, SZ_SD, WS_Y2T)
    a.srd(28, 8, SZ_P, WS_P)
    a("v_lshrrev_b32 v1, 2, v0")
    a("v_and_b32 v2, 3, v0")
    a("v_lshlrev_b32 v3, 12, v1")
    a("v_lshlrev_b32 v4, 5, v2")
    a("v_add_u32 v3, v3, v4")
    a("s_lshl_b32 s34, s33, 18")
    a("s_lshl_b32 s35, s32, 7")
    a("s_add_u32 s34, s34, s35")
    a("v_add_u32 v3, s34, v3")
    a("buffer_load_dwordx4 v[8:11], v3, s[24:27], 0 offen")
    a("buffer_load_dwordx4 v[12:15], v3, s[24:27], 0 offen offset:16")
    a("v_mul_u32_u24 v5, 136, v1")
    a("v_add_u32 v5, v5, v4")
    a("v_lshrrev_b32 v6, 3, v0")
    a("v_and_b32 v7, 7, v0")
    a("s_lshl_b32 s34, s32, 6")
    a("v_add_u32 v16, s34, v6")
    a("v_lshrrev_b32 v20, 4, v16")
    a("v_mul_u32_u24 v20, 18432, v20")
    a("v_and_b32 v21, 15, v16")
    a("v_lshlrev_b32 v21, 4, v21")
    a("v_add_u32 v20, v20, v21")
    a("v_and_b32 v21, 1, v7")
    a("v_lshlrev_b32 v21, 10, v21")
    a("v_add_u32 v20, v20, v21")
    a("v_lshrrev_b32 v21, 1, v7")
    a("v_lshlrev_b32 v21, 8, v21")
    a("v_add_u32 v20, v20, v21")
    a("s_lshl_b32 s35, s33, 11")
    a("v_add_u32 v22, s35, v20")
    a(f"v_add_u32 v23, {2*18432}, v22")
    a("v_mul_u32_u24 v16, 1152, v16")
    a("v_lshlrev_b32 v17, 4, v7")
    a("s_lshl_b32 s35, s33, 7")
    a("v_add_u32 v17, s35, v17")
    a("v_add_u32 v16, v16, v17")
    a(f"v_add_u32 v17, {32*1152}, v16")
    a("v_lshlrev_b32 v18, 1, v16")
    a("v_lshlrev_b32 v19, 1, v17")
    for it in range(2):
        b = 24 + 40*it
        a(f"buffer_load_dwordx4 v[{b}:{b+3}], v{16+it}, s[12:15], 0 offen")
        a(f"buffer_load_dwordx4 v[{b+4}:{b+7}], v{22+it}, s[20:23], 0 offen")
        for ks in range(4):
            a(f"s_mov_b32 s36, {ks*S*D*4}")
            a(f"buffer_load_dwordx4 v[{b+8+8*ks}:{b+11+8*ks}], v{18+it}, s[28:31], s36 offen")
            a(f"buffer_load_dwordx4 v[{b+12+8*ks}:{b+15+8*ks}], v{18+it}, s[28:31], s36 offen offset:16")
    a("s_waitcnt vmcnt(20)")
    for m in range(4):
        a(f"ds_write_b64 v5, v[{8+2*m}:{9+2*m}] offset:{8*m}")
    a("s_waitcnt lgkmcnt(0)")
    a("s_barrier")
    a("v_mul_u32_u24 v20, 1088, v7")
    a("v_lshlrev_b32 v21, 1, v6")
    a("v_add_u32 v20, v20, v21")
    for it in range(2):
        for c in range(8):
            a(f"ds_read_u16 v{104+8*it+c}, v20 offset:{136*c + 64*it}")
    a("s_waitcnt vmcnt(0) lgkmcnt(0)")
    for it in range(2):
        b = 24 + 40*it
        for w in range(4):
            T = 120
            y0, y1 = 104 + 8*it + 2*w, 104 + 8*it + 2*w + 1
            unpack_lo(a, y0, y0); unpack_lo(a, y1, y1)
            unpack_lo(a, T, b+4+w); unpack_hi(a, T+1, b+4+w)
            a(f"v_mul_f32 v{T}, v{T}, v{y0}")
            a(f"v_mul_f32 v{T+1}, v{T+1}, v{y1}")
            a(f"v_cvt_pk_bf16_f32 v{T+2}, v{T}, v{T+1}")
            unpack_lo(a, T, T+2); unpack_hi(a, T+1, T+2)
            unpack_lo(a, T+3, b+w); unpack_hi(a, T+4, b+w)
            a(f"v_add_f32 v{T}, v{T}, v{T+3}")
            a(f"v_add_f32 v{T+1}, v{T+1}, v{T+4}")
            a(f"v_cvt_pk_bf16_f32 v{T+2}, v{T}, v{T+1}")
            unpack_lo(a, T, T+2); unpack_hi(a, T+1, T+2)
            p = b + 8 + 2*w
            a(f"v_add_f32 v{T+3}, v{p}, v{p+8}")
            a(f"v_add_f32 v{T+4}, v{p+1}, v{p+9}")
            a(f"v_add_f32 v{T+5}, v{p+16}, v{p+24}")
            a(f"v_add_f32 v{T+6}, v{p+17}, v{p+25}")
            a(f"v_add_f32 v{T+3}, v{T+3}, v{T+5}")
            a(f"v_add_f32 v{T+4}, v{T+4}, v{T+6}")
            a(f"v_cvt_pk_bf16_f32 v{T+2}, v{T+3}, v{T+4}")
            unpack_lo(a, T+3, T+2); unpack_hi(a, T+4, T+2)
            a(f"v_add_f32 v{T}, v{T}, v{T+3}")
            a(f"v_add_f32 v{T+1}, v{T+1}, v{T+4}")
            a(f"v_cvt_pk_bf16_f32 v{b+w}, v{T}, v{T+1}")
        a(f"buffer_store_dwordx4 v[{b}:{b+3}], v{16+it}, s[16:19], 0 offen")
    a.label("L_fin_end")
    a("s_endpgm")
    return desc("final_kernel", 128)

def main(path):
    hdr = open("parallel_sum__ssm_conv_h3__glu_gated_swiglu__prompt.s.ref").read().split("\n")
    head = [l for l in hdr if l.startswith(";") and "@launch" not in l and "Override launch" not in l and "grid=ceil" not in l]
    launches = [
        "; @launch kernel=front_kernel grid=(480,1,1) block=(256,1,1) lds=8704",
        f"; @launch kernel=gemm1_kernel grid=(256,1,1) block=(512,1,1) lds={NST*STAGE}",
        f"; @launch kernel=gemm2_kernel grid=(256,1,1) block=(512,1,1) lds={G2_LDS}",
    ]
    a = Asm()
    descs = [gen_front(a), gen_gemm1(a), gen_gemm2(a)]
    out = "\n".join(head + launches) + "\n"
    out += '.amdgcn_target "amdgcn-amd-amdhsa--gfx950"\n.text\n'
    out += "\n".join(a.l) + "\n"
    out += '.section .rodata,"a"\n'
    for d in descs:
        out += ".p2align 6\n" + d
    open(path, "w").write(out)

if __name__ == "__main__":
    main(sys.argv[1] if len(sys.argv) > 1 else "parallel_sum__ssm_conv_h3__glu_gated_swiglu__prompt.s")
```

```python
import sys, os
FL = set(os.environ.get('FL','').split(','))
FUSE = 'fuse' in FL
KVT = FUSE or 'kvt' in FL

S, D, F = 2048, 576, 4608
WS_XN, WS_KVT, WS_Y2T, WS_H, WS_P = 0x0, 0x400000, 0x800000, 0x1000000, 0x3000000
WS_XP = 0x2400000
WS_FL = 0x3800000
SZ_SD = S * D * 2
SZ_W = D * F * 2
SZ_H = S * F * 2
SZ_P = 4 * S * D * 4

class Asm:
    def __init__(self):
        self.l = []
        self.gemm = False
        self.keepbar = False
        self.vm = []
        self.lg = []
    def __call__(self, s):
        if self.gemm:
            if 'nomfma' in FL and s.startswith('v_mfma'): return
            if 'nolds' in FL and s.startswith('ds_read_b64_tr'): return
            if 'nodma' in FL and s.endswith('offen lds'): return
            if 'noa' in FL and s.startswith('buffer_load_dwordx4 v['): return
            if 'nobar' in FL and s.startswith('s_barrier') and not self.keepbar: return
            if 'nostore' in FL and s.startswith('buffer_store'): return
        self.l.append("    " + s)
    def label(self, s):
        self.l.append(s + ":")
    def c(self, s):
        self.l.append("    ; " + s)
    def vmem(self, s, tag):
        self(s); self.vm.append(tag)
    def lds(self, s, tag):
        self(s); self.lg.append(tag)
    def wait_vm(self, tag):
        if tag not in self.vm: return
        idx = max(i for i, t in enumerate(self.vm) if t == tag)
        n = len(self.vm) - 1 - idx
        assert n <= 63
        self(f"s_waitcnt vmcnt({n})")
        self.vm = self.vm[idx + 1:]
    def wait_lg(self, tag):
        if tag not in self.lg: return
        idx = max(i for i, t in enumerate(self.lg) if t == tag)
        n = len(self.lg) - 1 - idx
        assert n <= 15, n
        self(f"s_waitcnt lgkmcnt({n})")
        self.lg = self.lg[idx + 1:]
    def capture(self, fn):
        l0, vm0 = self.l, self.vm
        self.l, self.vm = [], []
        marks = []
        ov = self.vmem
        def vm2(s_, tag):
            self(s_); marks.append((len(self.l), tag))
        self.vmem = vm2
        fn()
        del self.vmem
        lines = self.l
        self.l, self.vm = l0, vm0
        chunks = []; p = 0
        for k, (e, tag) in enumerate(marks):
            end = e
            if end < len(lines) and 'exec' in lines[end] and '-1' in lines[end]: end += 1
            chunks.append((lines[p:end], tag)); p = end
        if p < len(lines): chunks[-1] = (chunks[-1][0] + lines[p:], chunks[-1][1])
        return chunks
    def emit_chunk(self, ch):
        self.l += ch[0]; self.vm.append(ch[1])
    def wait_all(self):
        self("s_waitcnt vmcnt(0) lgkmcnt(0)")
        self.vm = []; self.lg = []
    def srd(self, d, base, size, off=0):
        if off:
            self(f"s_add_u32 s{d}, s{base}, {off}")
            self(f"s_addc_u32 s{d+1}, s{base+1}, 0")
        else:
            self(f"s_mov_b32 s{d}, s{base}")
            self(f"s_mov_b32 s{d+1}, s{base+1}")
        self(f"s_mov_b32 s{d+2}, {size}")
        self(f"s_mov_b32 s{d+3}, 0x00020000")
    def stamp(self, i):
        if 'stamp' not in FL or (KVT and self.kname == 'gemm1_kernel'): return
        self(f"s_memtime s[{50+2*i}:{51+2*i}]")
        if i == 0: self("s_memrealtime s[62:63]")
    def stamp_flush(self, n, wsb, base):
        if 'stamp' not in FL or (KVT and self.kname == 'gemm1_kernel'): return
        self("s_memrealtime s[64:65]")
        self("s_waitcnt lgkmcnt(0)")
        self(f"s_add_u32 s68, s{wsb}, {base}")
        self(f"s_addc_u32 s69, s{wsb+1}, 0")
        self("s_mov_b32 s70, 0x100000")
        self("s_mov_b32 s71, 0x00020000")
        self("s_lshl_b32 s66, s2, 9")
        self("s_lshl_b32 s67, s40, 6")
        self("s_add_u32 s66, s66, s67")
        self("v_mov_b32 v5, s66")
        for i in range(8):
            self(f"v_mov_b32 v6, s{50+2*i}")
            self(f"v_mov_b32 v7, s{51+2*i}")
            self(f"buffer_store_dwordx2 v[6:7], v5, s[68:71], 0 offen offset:{8*i}")
            self("s_nop 1")
    def kernel_begin(self, name):
        self.l.append(f".globl {name}")
        self.l.append(".p2align 8")
        self.l.append(f".type {name},@function")
        self.label(name)
        self.gemm = name.startswith('gemm'); self.keepbar = False; self.kname = name
        self.vm = []; self.lg = []

def vr(b, n=1):
    return f"v{b}" if n == 1 else f"v[{b}:{b+n-1}]"

def desc(name, vgpr, sgpr=80):
    acc = (vgpr + 3) // 4 * 4
    return f""".amdhsa_kernel {name}
  .amdhsa_next_free_vgpr {vgpr}
  .amdhsa_next_free_sgpr {sgpr}
  .amdhsa_accum_offset {acc}
  .amdhsa_group_segment_fixed_size 0
  .amdhsa_kernarg_size 104
  .amdhsa_user_sgpr_count 2
  .amdhsa_user_sgpr_kernarg_segment_ptr 1
  .amdhsa_system_sgpr_workgroup_id_x 1
  .amdhsa_float_denorm_mode_32 3
.end_amdhsa_kernel
"""

def unpack_lo(a, d, s): a(f"v_lshlrev_b32 v{d}, 16, v{s}")
def unpack_hi(a, d, s): a(f"v_and_b32 v{d}, 0xffff0000, v{s}")

CV_O, CV_U, CV_SZ = 4224, 8448, 13056
def gen_front(a):
    a.kernel_begin("front_kernel")
    a("s_cmp_ge_u32 s2, 192" if KVT else "s_cmp_ge_u32 s2, 480")
    a("s_cbranch_scc1 L_fr_end")
    a("s_cmp_lt_u32 s2, 64")
    a("s_cbranch_scc1 L_fr_pf")
    a("s_cmp_ge_u32 s2, 192")
    a("s_cbranch_scc1 L_fr_kv")
    a("s_load_dwordx2 s[4:5], s[0:1], 0")
    a("s_load_dwordx2 s[14:15], s[0:1], 96")
    a("s_waitcnt lgkmcnt(0)")
    a.srd(16, 4, SZ_SD)
    a.srd(20, 14, SZ_SD, WS_XN)
    a("s_sub_u32 s3, s2, 64")
    a("s_lshl_b32 s3, s3, 4")
    a("v_lshrrev_b32 v1, 4, v0")
    a("v_add_u32 v1, s3, v1")
    a("v_and_b32 v2, 15, v0")
    a("v_mul_u32_u24 v3, 1152, v1")
    a("v_lshlrev_b32 v4, 3, v2")
    a("v_add_u32 v3, v3, v4")
    for i in range(9):
        a(f"buffer_load_dwordx2 v[{8+2*i}:{9+2*i}], v3, s[16:19], 0 offen offset:{128*i}")
    a("v_lshrrev_b32 v4, 4, v1")
    a("v_mul_u32_u24 v4, 18432, v4")
    a("v_and_b32 v5, 15, v1")
    a("v_lshlrev_b32 v5, 4, v5")
    a("v_add_u32 v4, v4, v5")
    a("v_lshrrev_b32 v5, 2, v2")
    a("v_lshlrev_b32 v5, 8, v5")
    a("v_add_u32 v4, v4, v5")
    a("v_lshrrev_b32 v5, 1, v2")
    a("v_and_b32 v5, 1, v5")
    a("v_lshlrev_b32 v5, 10, v5")
    a("v_add_u32 v4, v4, v5")
    a("v_and_b32 v5, 1, v2")
    a("v_lshlrev_b32 v5, 3, v5")
    a("v_add_u32 v1, v4, v5")
    a("s_waitcnt vmcnt(0)")
    X = 32
    for i in range(18):
        unpack_lo(a, X + 2*i, 8 + i)
        unpack_hi(a, X + 2*i + 1, 8 + i)
    for i in range(9):
        a(f"v_mov_b32 v{72+4*i}, v{8+2*i}")
        a(f"v_mov_b32 v{73+4*i}, v{9+2*i}")
    a(f"v_add_f32 v2, v{X}, v{X+1}")
    a(f"v_add_f32 v3, v{X+2}, v{X+3}")
    for i in range(4, 36, 2):
        a(f"v_add_f32 v2, v2, v{X+i}")
        a(f"v_add_f32 v3, v3, v{X+i+1}")
    a("v_add_f32 v2, v2, v3")
    def red16(r, t):
        a("s_nop 1")
        a(f"v_add_f32_dpp v{t}, v{r}, v{r} quad_perm:[1,0,3,2] row_mask:0xf bank_mask:0xf")
        a("s_nop 1")
        a(f"v_add_f32_dpp v{r}, v{t}, v{t} quad_perm:[2,3,0,1] row_mask:0xf bank_mask:0xf")
        a("s_nop 1")
        a(f"v_add_f32_dpp v{t}, v{r}, v{r} row_half_mirror row_mask:0xf bank_mask:0xf")
        a("s_nop 1")
        a(f"v_add_f32_dpp v{r}, v{t}, v{t} row_mirror row_mask:0xf bank_mask:0xf")
    red16(2, 3)
    a("s_mov_b32 s24, 0x3ae38e39")
    a("v_mul_f32 v2, s24, v2")
    a("v_mov_b32 v4, 0")
    a("v_mov_b32 v5, 0")
    for i in range(0, 36, 2):
        a(f"v_sub_f32 v6, v{X+i}, v2")
        a(f"v_sub_f32 v7, v{X+i+1}, v2")
        a("v_fmac_f32 v4, v6, v6")
        a("v_fmac_f32 v5, v7, v7")
    a("v_add_f32 v4, v4, v5")
    red16(4, 5)
    a("v_mul_f32 v4, s24, v4")
    a("v_cvt_pk_bf16_f32 v5, v2, v4")
    unpack_lo(a, 2, 5)
    unpack_hi(a, 4, 5)
    a("v_add_f32 v4, 0x3727c5ac, v4")
    a("v_cvt_pk_bf16_f32 v4, v4, v4")
    unpack_hi(a, 4, 4)
    a("v_sqrt_f32 v4, v4")
    a("s_nop 0")
    a("v_cvt_pk_bf16_f32 v4, v4, v4")
    unpack_hi(a, 4, 4)
    a("v_rcp_f32 v5, v4")
    a("s_nop 0")
    for i in range(18):
        x0, x1 = X + 2*i, X + 2*i + 1
        a(f"v_sub_f32 v{x0}, v{x0}, v2")
        a(f"v_sub_f32 v{x1}, v{x1}, v2")
        a(f"v_cvt_pk_bf16_f32 v6, v{x0}, v{x1}")
        unpack_lo(a, x0, 6)
        unpack_hi(a, x1, 6)
        a(f"v_mul_f32 v6, v{x0}, v5")
        a(f"v_mul_f32 v7, v{x1}, v5")
        a(f"v_fma_f32 v{x0}, -v6, v4, v{x0}")
        a(f"v_fma_f32 v{x1}, -v7, v4, v{x1}")
        a(f"v_fma_f32 v6, v{x0}, v5, v6")
        a(f"v_fma_f32 v7, v{x1}, v5, v7")
        a(f"v_cvt_pk_bf16_f32 v{8+i}, v6, v7")
    for i in range(9):
        a(f"s_mov_b32 s25, {2048*i}")
        a(f"buffer_store_dwordx2 v[{8+2*i}:{9+2*i}], v1, s[20:23], s25 offen")
    a.srd(28, 14, 2*SZ_SD, WS_XP)
    a("v_lshrrev_b32 v2, 4, v0")
    a("v_add_u32 v2, s3, v2")
    a("v_lshrrev_b32 v3, 4, v2")
    a("v_mul_u32_u24 v3, 36864, v3")
    a("v_and_b32 v2, 15, v2")
    a("v_lshlrev_b32 v2, 4, v2")
    a("v_add_u32 v3, v3, v2")
    a("v_bfe_u32 v2, v0, 2, 2")
    a("v_lshlrev_b32 v2, 10, v2")
    a("v_add_u32 v3, v3, v2")
    a("v_and_b32 v2, 3, v0")
    a("v_lshlrev_b32 v2, 8, v2")
    a("v_add_u32 v3, v3, v2")
    for i in range(9):
        a(f"v_mov_b32 v{74+4*i}, v{8+2*i}")
        a(f"v_mov_b32 v{75+4*i}, v{9+2*i}")
        a(f"s_mov_b32 s25, {4096*i}")
        a(f"buffer_store_dwordx4 v[{72+4*i}:{75+4*i}], v3, s[28:31], s25 offen")
    a("s_endpgm")
    a.label("L_fr_pf")
    a("s_load_dwordx4 s[4:7], s[0:1], 56")
    a("s_load_dwordx2 s[8:9], s[0:1], 32")
    a("s_load_dwordx2 s[10:11], s[0:1], 96")
    a("v_and_b32 v1, 63, v0")
    a("v_lshrrev_b32 v2, 6, v0")
    a("s_nop 0")
    a("v_readfirstlane_b32 s40, v2")
    a("s_and_b32 s30, s2, 7")
    a("s_mul_i32 s30, s30, 1152")
    a("s_mov_b32 s31, s2")
    a("s_lshr_b32 s31, s31, 3")
    a("s_lshl_b32 s31, s31, 2")
    a("s_add_u32 s31, s31, s40")
    a(f"s_mul_i32 s31, s31, {7*9216}")
    a("v_mul_u32_u24 v2, 57, v1")
    a("v_lshrrev_b32 v2, 9, v2")
    a("v_mul_u32_u24 v3, 9, v2")
    a("v_sub_u32 v3, v1, v3")
    a("v_mul_u32_u24 v2, 9216, v2")
    a("v_lshlrev_b32 v3, 7, v3")
    a("v_add_u32 v2, v2, v3")
    a("s_waitcnt lgkmcnt(0)")
    a.srd(24, 10, 128*128, WS_FL)
    a("s_cmp_lg_u32 s2, 0")
    a("s_cbranch_scc1 L_fr_pf1")
    a("v_lshlrev_b32 v4, 7, v0")
    a("v_mov_b32 v5, 0")
    a("buffer_store_dword v5, v4, s[24:27], 0 offen")
    a.label("L_fr_pf1")
    for m in range(2):
        a(f"s_add_u32 s{12+4*m}, s{4+2*m}, s30")
        a(f"s_addc_u32 s{13+4*m}, s{5+2*m}, 0")
        a(f"s_sub_u32 s{14+4*m}, {SZ_W}, s30")
        a(f"s_mov_b32 s{15+4*m}, 0x00020000")
    for r in range(0 if 'nofpf' in FL else (3 if 'fpf3' in FL else (2 if 'fpf2' in FL else 1))):
        a(f"buffer_load_dword v{8+2*r}, v2, s[12:15], s31 offen")
        a(f"buffer_load_dword v{9+2*r}, v2, s[16:19], s31 offen")
        a(f"s_add_u32 s31, s31, {32*7*9216}")
    if 'ssmfront' in FL:
        a.srd(20, 8, SZ_SD)
        a("s_mov_b32 s31, s2")
        a("s_lshl_b32 s31, s31, 2")
        a("s_add_u32 s31, s31, s40")
        a("s_lshl_b32 s31, s31, 13")
        a("v_lshlrev_b32 v3, 7, v1")
        a("buffer_load_dword v16, v3, s[20:23], s31 offen")
        a(f"s_add_u32 s31, s31, {256*8192}")
        a("buffer_load_dword v17, v3, s[20:23], s31 offen")
    a("s_endpgm")
    a.label("L_fr_kv")
    a("s_load_dwordx4 s[8:11], s[0:1], 8")
    a("s_load_dwordx2 s[12:13], s[0:1], 24")
    a("s_load_dwordx2 s[14:15], s[0:1], 96")
    a("s_waitcnt lgkmcnt(0)")
    a.srd(16, 8, SZ_SD)
    a.srd(20, 10, SZ_SD)
    a.srd(24, 12, D * 8)
    a.srd(28, 14, SZ_SD, WS_KVT)
    a("s_sub_u32 s3, s2, 192")
    a("s_and_b32 s32, s3, 31")
    a("s_lshr_b32 s33, s3, 5")
    a("v_lshrrev_b32 v1, 3, v0")
    a("v_and_b32 v2, 7, v0")
    a("s_lshl_b32 s34, s32, 6")
    a("v_lshlrev_b32 v3, 1, v1")
    a("v_add_u32 v3, s34, v3")
    a("s_lshl_b32 s35, s33, 7")
    a("v_lshlrev_b32 v4, 4, v2")
    a("v_add_u32 v4, s35, v4")
    a("v_mul_u32_u24 v5, 1152, v3")
    a("v_add_u32 v5, v5, v4")
    for r in range(5):
        a(f"v_add_u32 v{6+r}, {(r-3)*1152 & 0xffffffff}, v5")
    for r in range(5):
        a(f"buffer_load_dwordx4 v[{12+4*r}:{15+4*r}], v{6+r}, s[16:19], 0 offen")
    a("buffer_load_dwordx4 v[32:35], v5, s[20:23], 0 offen")
    a("buffer_load_dwordx4 v[36:39], v5, s[20:23], 0 offen offset:1152")
    a("v_lshlrev_b32 v11, 2, v4")
    for i in range(4):
        a(f"buffer_load_dwordx4 v[{40+4*i}:{43+4*i}], v11, s[24:27], 0 offen offset:{16*i}")
    a("v_mul_u32_u24 v56, 1088, v2")
    a("v_sub_u32 v57, 31, v1")
    a("v_lshlrev_b32 v57, 2, v57")
    a("v_add_u32 v56, v56, v57")
    a("s_waitcnt vmcnt(0)")
    for c in range(8):
        w, hi = c >> 1, c & 1
        up = unpack_hi if hi else unpack_lo
        for r in range(5):
            up(a, 60 + r, 12 + 4*r + w)
        up(a, 65, 32 + w); up(a, 66, 36 + w)
        unpack_lo(a, 67, 40 + 2*c); unpack_hi(a, 68, 40 + 2*c)
        unpack_lo(a, 69, 41 + 2*c); unpack_hi(a, 70, 41 + 2*c)
        for step, j in enumerate([3, 2, 1, 0]):
            kk0 = 60 + (3 - j); kk1 = kk0 + 1
            a(f"v_mul_f32 v71, v{kk0}, v{67+j}")
            a(f"v_mul_f32 v72, v{kk1}, v{67+j}")
            a("v_cvt_pk_bf16_f32 v73, v71, v72")
            if step == 0:
                unpack_lo(a, 74, 73); unpack_hi(a, 75, 73)
            else:
                unpack_lo(a, 71, 73); unpack_hi(a, 72, 73)
                a("v_add_f32 v74, v74, v71")
                a("v_add_f32 v75, v75, v72")
                a("v_cvt_pk_bf16_f32 v73, v74, v75")
                unpack_lo(a, 74, 73); unpack_hi(a, 75, 73)
        a("v_mul_f32 v74, v74, v65")
        a("v_mul_f32 v75, v75, v66")
        a("v_cvt_pk_bf16_f32 v73, v75, v74")
        a(f"ds_write_b32 v56, v73 offset:{136*c}")
    a("s_waitcnt lgkmcnt(0)")
    a("s_barrier")
    a("v_lshrrev_b32 v1, 2, v0")
    a("v_and_b32 v2, 3, v0")
    a("v_mul_u32_u24 v3, 136, v1")
    a("v_lshlrev_b32 v4, 5, v2")
    a("v_add_u32 v3, v3, v4")
    for m in range(4):
        a(f"ds_read_b64 v[{8+2*m}:{9+2*m}], v3 offset:{8*m}")
    a("s_lshl_b32 s36, s33, 18")
    a("s_lshl_b32 s37, s32, 7")
    a("s_sub_u32 s36, s36, s37")
    a("s_add_u32 s36, s36, 3968")
    a("v_lshlrev_b32 v5, 12, v1")
    a("v_add_u32 v5, v5, v4")
    a("v_add_u32 v5, s36, v5")
    a("s_waitcnt lgkmcnt(0)")
    a("buffer_store_dwordx4 v[8:11], v5, s[28:31], 0 offen")
    a("buffer_store_dwordx4 v[12:15], v5, s[28:31], 0 offen offset:16")
    a.label("L_fr_end")
    a("s_endpgm")
    return desc("front_kernel", 128)

STAGE = 36864
NST = 4
PD = int(os.environ.get('PD', '5'))

def gemm_setup_dma(a, row_bytes, vD, sW, sH, perm):
    a("s_and_b32 s41, s40, 3")
    a("s_lshr_b32 s42, s40, 2")
    a("s_mul_i32 s43, s42, 18432")
    a("s_lshl_b32 s44, s41, 12")
    a(f"s_add_u32 s{sW}, s43, s44")
    a("s_lshl_b32 s44, s41, 9")
    a("s_add_u32 s44, s44, 16384")
    a(f"s_add_u32 s{sH}, s43, s44")
    a("s_movk_i32 s45, 3641")
    for i in range(5):
        if i < 4:
            a("s_lshl_b32 s44, s41, 8")
            a(f"s_add_u32 s44, s44, {64*i}")
        else:
            a("s_lshl_b32 s44, s41, 5")
            a("s_add_u32 s44, s44, 1024")
        a("v_add_u32 v17, s44, v1")
        a("v_mul_lo_u32 v18, v17, s45")
        a("v_lshrrev_b32 v18, 16, v18")
        a("v_mul_u32_u24 v19, 18, v18")
        a("v_sub_u32 v19, v17, v19")
        if perm:
            a("v_lshrrev_b32 v17, 4, v18")
            a("v_and_b32 v17, 1, v17")
            a("v_lshlrev_b32 v17, 2, v17")
            a("v_xor_b32 v18, v18, v17")
        a(f"v_mul_u32_u24 v18, {row_bytes}, v18")
        a("v_lshlrev_b32 v19, 4, v19")
        a(f"v_add_u32 v{vD+i}, v18, v19")

def gemm_dma(a, j, vD, sW, sH, srdW, kstep_bytes):
    st = j % NST
    a(f"s_mov_b32 s46, {j*kstep_bytes}")
    for i in range(4):
        a(f"s_add_u32 m0, s{sW}, {st*STAGE + 1024*i}")
        a("s_nop 0")
        a.vmem(f"buffer_load_dwordx4 v{vD+i}, s[{srdW}:{srdW+3}], s46 offen lds", f"D{j}")
    a(f"s_add_u32 m0, s{sH}, {st*STAGE}")
    a("s_mov_b32 exec_hi, 0")
    a.vmem(f"buffer_load_dwordx4 v{vD+4}, s[{srdW}:{srdW+3}], s46 offen lds", f"D{j}")
    a("s_mov_b32 exec_hi, -1")

def gemm_loop(a, units, NU, NAB, w_reads, mfmas, a_loads, dma, early, late=None, NJ=9, NS=4, PD=PD, hooks=None):
    if 'prio' in FL or 'prio0' in FL:
        gemm_loop.n = getattr(gemm_loop, 'n', 0) + 1
        a("s_cmp_ge_u32 s40, 4" if 'prio' in FL else "s_cmp_lt_u32 s40, 4")
        a(f"s_cbranch_scc0 L_prio{gemm_loop.n}")
        a("s_setprio 1")
        a.label(f"L_prio{gemm_loop.n}")
    a.wait_vm("A0")
    a("s_barrier")
    a.stamp(2)
    for U in range(PD):
        w_reads(U)
    bg = []
    spread = 'nospread' not in FL
    every = 2 if NU > 20 else 1
    for U, un in enumerate(units):
        j = un[0]; u = U % NU
        if bg and U % every == 0: a.emit_chunk(bg.pop(0))
        if U == NU*4 and not ('st2' in FL and NJ != 9): a.stamp(3)
        if u == 0 and j > 0:
            a.wait_vm(f"A{j}")
            if j + NAB - 1 <= NJ - 1:
                if spread: bg += a.capture(lambda: a_loads(j + NAB - 1))
                else: a_loads(j + NAB - 1)
        if j == 0 and u in early:
            early[u]()
        if j == NJ - 3 and u == 16 and late: late()
        if hooks and (j, u) in hooks: hooks[(j, u)]()
        if u == NU - PD and j < NJ - 1:
            a.wait_vm(f"D{j+1}")
            a("s_barrier")
            if j + NS - 1 <= NJ - 1:
                if spread: bg += a.capture(lambda: dma(j + NS - 1))
                else: dma(j + NS - 1)
        if U + PD < len(units):
            w_reads(U + PD)
        a.wait_lg(f"W{U}")
        mfmas(U)

CVB = 3 * 36864
G1_LDS = CVB + 4 * CV_SZ
def conv_head_loads(a):
    a("s_lshr_b32 s80, s40, 1")
    a("s_lshl_b32 s81, s80, 8")
    a("s_add_u32 s81, s81, s2")
    a("s_cmp_lt_u32 s81, 576")
    a("s_cselect_b32 s82, 1, 0")
    a("s_min_u32 s81, s81, 575")
    a(f"s_mul_i32 s83, s80, {CV_SZ}")
    a(f"s_add_u32 s83, s83, {CVB}")
    a("s_lshl_b32 s84, s81, 12")
    a.srd(88, 72, SZ_SD)
    a.srd(92, 74, D*2)
    a.srd(96, 8, SZ_SD, WS_KVT)
    a("v_lshlrev_b32 v212, 4, v1")
    for i in range(4):
        a.vmem(f"buffer_load_dwordx4 v[{84+8*i}:{87+8*i}], v212, s[88:91], s84 offen offset:{1024*i}", "CK")
        a.vmem(f"buffer_load_dword v{88+8*i}, v212, s[88:91], s84 offen offset:{1024*i+16}", "CK")
    for i in range(4):
        a(f"s_add_u32 m0, s83, {CV_U + 1024*i}")
        a(f"s_add_u32 s85, s84, {1024*i}")
        a.vmem("buffer_load_dwordx4 v212, s[96:99], s85 offen lds", "CU")
    a("s_lshl_b32 s85, s81, 1")
    a("v_mov_b32 v213, s85")
    a.vmem("buffer_load_ushort v213, v213, s[92:95], 0 offen", "CU")

def conv_head_compute(a):
    Z = 216
    for i in range(4): a(f"v_mov_b32 v{Z+i}, 0")
    a("v_add_u32 v214, s83, v212")
    a("s_mov_b32 exec_hi, 0")
    a(f"ds_write_b128 v214, v[{Z}:{Z+3}] offset:{CV_U+4096}")
    a("s_mov_b32 exec_lo, 3")
    a(f"ds_write_b128 v214, v[{Z}:{Z+3}]")
    a("s_mov_b32 exec_lo, 1")
    a(f"ds_write_b128 v214, v[{Z}:{Z+3}] offset:{CV_O}")
    a("s_mov_b64 exec, -1")
    a("v_and_b32 v220, 15, v1")
    a("v_lshrrev_b32 v221, 4, v1")
    a("v_lshlrev_b32 v222, 1, v220")
    a("v_lshlrev_b32 v223, 4, v221")
    a("v_add_u32 v222, v222, v223")
    a("v_and_b32 v224, 1, v220")
    a("v_cmp_eq_u32 vcc, 1, v224")
    a(f"v_mov_b32 v224, {CV_O}")
    a("s_nop 1")
    a("v_cndmask_b32 v224, v224, 2, vcc")
    a("v_add3_u32 v222, v222, v224, s83")
    a("v_lshlrev_b32 v225, 5, v220")
    a("v_sub_u32 v225, v223, v225")
    a(f"v_add_u32 v225, {CV_U+480}, v225")
    a("v_add_u32 v225, s83, v225")
    KA = [226, 227, 228, 229, 230]
    for i in range(5):
        a(f"v_add_u32 v{KA[i]}, {960*i}, v222")
    ACC = 52; FA = 84; FB = 116
    for i in range(16):
        a(f"v_mov_b32 v{ACC+i}, 0")
    a.wait_vm("CK")
    for i in range(4):
        b = 84 + 8*i
        a(f"ds_write_b128 v214, v[{b}:{b+3}] offset:{32+1024*i}")
        for t in range(4):
            a(f"v_alignbit_b32 v{232+4*(i&1)+t}, v{b+t+1}, v{b+t}, 16")
        a(f"ds_write_b128 v214, v[{232+4*(i&1)}:{235+4*(i&1)}] offset:{CV_O+32+1024*i}")
        if i == 0:
            a(f"v_lshlrev_b32 v{Z+3}, 16, v84")
            a("s_mov_b64 exec, 1")
            a(f"ds_write_b128 v214, v[{Z}:{Z+3}] offset:{CV_O+16}")
            a("s_mov_b64 exec, -1")
    a.wait_vm("CU")
    a("s_waitcnt lgkmcnt(0)")
    a("s_cmp_eq_u32 s82, 0")
    a("s_cbranch_scc1 L_cvh_epi")
    a("s_and_b32 s85, s40, 1")
    a("s_cmp_eq_u32 s85, 1")
    a("s_cbranch_scc1 L_cvh_p1")
    TS = [[7, 4, 1, 0], [6, 5, 3, 2]]
    for part in range(2):
        if part == 1: a.label("L_cvh_p1")
        ts = TS[part]; mx = max(ts)
        def reads(rho):
            o = 64 * (rho & 1)
            for pi in range(mx + 1):
                p = 8*pi + rho
                r = FA+o+4*pi
                a(f"ds_read2_b32 v[{r}:{r+1}], v{KA[p//15]} offset0:{16*(p%15)} offset1:{16*(p%15)+1}")
                a(f"ds_read2_b32 v[{r+2}:{r+3}], v{KA[p//15]} offset0:{16*(p%15)+2} offset1:{16*(p%15)+3}")
                w = 8*pi - rho
                a(f"ds_read_b128 v[{FB+o+4*pi}:{FB+o+4*pi+3}], v225 offset:{64*(56-w)}")
        reads(0)
        for rho in range(8):
            a("s_waitcnt lgkmcnt(0)")
            if rho < 7:
                reads(rho + 1)
            o = 64 * (rho & 1)
            work = [[(ti, t, pi) for pi in range(t + 1)] for ti, t in enumerate(ts)]
            while any(work):
                for wl in work:
                    if wl:
                        ti, t, pi = wl.pop(0)
                        tau = t - pi
                        a(f"v_mfma_f32_16x16x32_bf16 v[{ACC+4*ti}:{ACC+4*ti+3}], v[{FA+o+4*pi}:{FA+o+4*pi+3}], v[{FB+o+4*tau}:{FB+o+4*tau+3}], v[{ACC+4*ti}:{ACC+4*ti+3}]")
        for ti, t in enumerate(ts):
            a(f"s_mov_b32 s{76+ti}, {512*t}")
        if part == 0: a("s_branch L_cvh_epi")
    a.label("L_cvh_epi")
    a.srd(88, 8, SZ_SD, WS_Y2T)
    a("s_cmp_eq_u32 s82, 0")
    a("s_cselect_b32 s84, 0x7f000000, s84")
    for ti in range(4):
        a(f"s_cselect_b32 s{76+ti}, 0, s{76+ti}")
    a("v_lshlrev_b32 v213, 16, v213")
    a("v_lshlrev_b32 v224, 5, v220")
    a("v_lshlrev_b32 v226, 3, v221")
    a("v_add_u32 v224, v224, v226")
    a(f"v_sub_u32 v226, {CV_U+4088}, v224")
    a("v_add_u32 v226, s83, v226")
    a("v_add_u32 v224, s84, v224")
    for ti in range(4):
        a(f"v_subrev_u32 v227, s{76+ti}, v226")
        a(f"ds_read_b64 v[{84+2*ti}:{85+2*ti}], v227")
    a("s_waitcnt lgkmcnt(0)")
    for ti in range(4):
        y = ACC + 4*ti; kq = 84 + 2*ti; T = 100 + 8*(ti & 1)
        unpack_hi(a, T, kq+1); unpack_lo(a, T+1, kq+1); unpack_hi(a, T+2, kq); unpack_lo(a, T+3, kq)
        for i in range(4):
            a(f"v_mul_f32 v{T+i}, v{T+i}, v213")
        a(f"v_cvt_pk_bf16_f32 v{T+4}, v{T}, v{T+1}")
        a(f"v_cvt_pk_bf16_f32 v{T+5}, v{T+2}, v{T+3}")
        a(f"v_cvt_pk_bf16_f32 v{T+6}, v{y}, v{y+1}")
        a(f"v_cvt_pk_bf16_f32 v{T+7}, v{y+2}, v{y+3}")
        unpack_lo(a, T, T+4); unpack_hi(a, T+1, T+4); unpack_lo(a, T+2, T+5); unpack_hi(a, T+3, T+5)
        unpack_lo(a, y, T+6); unpack_hi(a, y+1, T+6); unpack_lo(a, y+2, T+7); unpack_hi(a, y+3, T+7)
        for i in range(4):
            a(f"v_add_f32 v{T+i}, v{T+i}, v{y+i}")
        a(f"v_cvt_pk_bf16_f32 v{240+2*ti}, v{T}, v{T+1}")
        a(f"v_cvt_pk_bf16_f32 v{241+2*ti}, v{T+2}, v{T+3}")
        a.vmem(f"buffer_store_dwordx2 v[{240+2*ti}:{241+2*ti}], v224, s[88:91], s{76+ti} offen", "CS")


def ln_fused(a, R):
    V = lambda i: R + i
    a(f"v_lshrrev_b32 v{V(1)}, 4, v1")
    a(f"v_add_u32 v{V(1)}, s84, v{V(1)}")
    a(f"v_and_b32 v{V(2)}, 15, v1")
    a(f"v_mul_u32_u24 v{V(3)}, 1152, v{V(1)}")
    a(f"v_lshlrev_b32 v{V(4)}, 3, v{V(2)}")
    a(f"v_add_u32 v{V(3)}, v{V(3)}, v{V(4)}")
    for i in range(9):
        a(f"buffer_load_dwordx2 v[{V(8+2*i)}:{V(9+2*i)}], v{V(3)}, s[88:91], 0 offen offset:{128*i}")
    a(f"v_lshrrev_b32 v{V(4)}, 4, v{V(1)}")
    a(f"v_mul_u32_u24 v{V(28)}, 36864, v{V(4)}")
    a(f"v_mul_u32_u24 v{V(4)}, 18432, v{V(4)}")
    a(f"v_and_b32 v{V(5)}, 15, v{V(1)}")
    a(f"v_lshlrev_b32 v{V(5)}, 4, v{V(5)}")
    a(f"v_add_u32 v{V(4)}, v{V(4)}, v{V(5)}")
    a(f"v_add_u32 v{V(28)}, v{V(28)}, v{V(5)}")
    a(f"v_lshrrev_b32 v{V(5)}, 2, v{V(2)}")
    a(f"v_lshlrev_b32 v{V(6)}, 8, v{V(5)}")
    a(f"v_add_u32 v{V(4)}, v{V(4)}, v{V(6)}")
    a(f"v_lshlrev_b32 v{V(6)}, 10, v{V(5)}")
    a(f"v_add_u32 v{V(28)}, v{V(28)}, v{V(6)}")
    a(f"v_and_b32 v{V(6)}, 3, v{V(2)}")
    a(f"v_lshlrev_b32 v{V(6)}, 8, v{V(6)}")
    a(f"v_add_u32 v{V(28)}, v{V(28)}, v{V(6)}")
    a(f"v_lshrrev_b32 v{V(5)}, 1, v{V(2)}")
    a(f"v_and_b32 v{V(5)}, 1, v{V(5)}")
    a(f"v_lshlrev_b32 v{V(5)}, 10, v{V(5)}")
    a(f"v_add_u32 v{V(4)}, v{V(4)}, v{V(5)}")
    a(f"v_and_b32 v{V(5)}, 1, v{V(2)}")
    a(f"v_lshlrev_b32 v{V(5)}, 3, v{V(5)}")
    a(f"v_add_u32 v{V(1)}, v{V(4)}, v{V(5)}")
    a("s_waitcnt vmcnt(0)")
    X = V(32)
    for i in range(18):
        unpack_lo(a, X + 2*i, V(8 + i)); unpack_hi(a, X + 2*i + 1, V(8 + i))
    for i in range(9):
        a(f"v_mov_b32 v{V(72+4*i)}, v{V(8+2*i)}")
        a(f"v_mov_b32 v{V(73+4*i)}, v{V(9+2*i)}")
    a(f"v_add_f32 v{V(2)}, v{X}, v{X+1}")
    a(f"v_add_f32 v{V(3)}, v{X+2}, v{X+3}")
    for i in range(4, 36, 2):
        a(f"v_add_f32 v{V(2)}, v{V(2)}, v{X+i}")
        a(f"v_add_f32 v{V(3)}, v{V(3)}, v{X+i+1}")
    a(f"v_add_f32 v{V(2)}, v{V(2)}, v{V(3)}")
    def red16(r, t):
        a("s_nop 1")
        a(f"v_add_f32_dpp v{t}, v{r}, v{r} quad_perm:[1,0,3,2] row_mask:0xf bank_mask:0xf")
        a("s_nop 1")
        a(f"v_add_f32_dpp v{r}, v{t}, v{t} quad_perm:[2,3,0,1] row_mask:0xf bank_mask:0xf")
        a("s_nop 1")
        a(f"v_add_f32_dpp v{t}, v{r}, v{r} row_half_mirror row_mask:0xf bank_mask:0xf")
        a("s_nop 1")
        a(f"v_add_f32_dpp v{r}, v{t}, v{t} row_mirror row_mask:0xf bank_mask:0xf")
    red16(V(2), V(3))
    a("s_mov_b32 s96, 0x3ae38e39")
    a(f"v_mul_f32 v{V(2)}, s96, v{V(2)}")
    a(f"v_mov_b32 v{V(4)}, 0"); a(f"v_mov_b32 v{V(5)}, 0")
    for i in range(0, 36, 2):
        a(f"v_sub_f32 v{V(6)}, v{X+i}, v{V(2)}")
        a(f"v_sub_f32 v{V(7)}, v{X+i+1}, v{V(2)}")
        a(f"v_fmac_f32 v{V(4)}, v{V(6)}, v{V(6)}")
        a(f"v_fmac_f32 v{V(5)}, v{V(7)}, v{V(7)}")
    a(f"v_add_f32 v{V(4)}, v{V(4)}, v{V(5)}")
    red16(V(4), V(5))
    a(f"v_mul_f32 v{V(4)}, s96, v{V(4)}")
    a(f"v_cvt_pk_bf16_f32 v{V(5)}, v{V(2)}, v{V(4)}")
    unpack_lo(a, V(2), V(5)); unpack_hi(a, V(4), V(5))
    a(f"v_add_f32 v{V(4)}, 0x3727c5ac, v{V(4)}")
    a(f"v_cvt_pk_bf16_f32 v{V(4)}, v{V(4)}, v{V(4)}")
    unpack_hi(a, V(4), V(4))
    a(f"v_sqrt_f32 v{V(4)}, v{V(4)}")
    a("s_nop 0")
    a(f"v_cvt_pk_bf16_f32 v{V(4)}, v{V(4)}, v{V(4)}")
    unpack_hi(a, V(4), V(4))
    a(f"v_rcp_f32 v{V(5)}, v{V(4)}")
    a("s_nop 0")
    for i in range(18):
        x0, x1 = X + 2*i, X + 2*i + 1
        a(f"v_sub_f32 v{x0}, v{x0}, v{V(2)}")
        a(f"v_sub_f32 v{x1}, v{x1}, v{V(2)}")
        a(f"v_cvt_pk_bf16_f32 v{V(6)}, v{x0}, v{x1}")
        unpack_lo(a, x0, V(6)); unpack_hi(a, x1, V(6))
        a(f"v_mul_f32 v{V(6)}, v{x0}, v{V(5)}")
        a(f"v_mul_f32 v{V(7)}, v{x1}, v{V(5)}")
        a(f"v_fma_f32 v{x0}, -v{V(6)}, v{V(4)}, v{x0}")
        a(f"v_fma_f32 v{x1}, -v{V(7)}, v{V(4)}, v{x1}")
        a(f"v_fma_f32 v{V(6)}, v{x0}, v{V(5)}, v{V(6)}")
        a(f"v_fma_f32 v{V(7)}, v{x1}, v{V(5)}, v{V(7)}")
        a(f"v_cvt_pk_bf16_f32 v{V(8+i)}, v{V(6)}, v{V(7)}")
    for i in range(9):
        a(f"s_mov_b32 s97, {2048*i}")
        a(f"buffer_store_dwordx2 v[{V(8+2*i)}:{V(9+2*i)}], v{V(1)}, s[16:19], s97 offen sc1")
    for i in range(9):
        a(f"v_mov_b32 v{V(74+4*i)}, v{V(8+2*i)}")
        a(f"v_mov_b32 v{V(75+4*i)}, v{V(9+2*i)}")
        a(f"s_mov_b32 s97, {4096*i}")
        a(f"buffer_store_dwordx4 v[{V(72+4*i)}:{V(75+4*i)}], v{V(28)}, s[92:95], s97 offen")
    a("s_waitcnt vmcnt(9)")

def gen_gemm1(a):
    a.kernel_begin("gemm1_kernel")
    a("s_cmp_ge_u32 s2, 256")
    a("s_cbranch_scc1 L_g1_end")
    a.stamp(0)
    a("s_load_dwordx4 s[4:7], s[0:1], 56")
    a("s_load_dwordx2 s[8:9], s[0:1], 96")
    a("s_load_dwordx4 s[72:75], s[0:1], 32")
    a("s_load_dwordx2 s[86:87], s[0:1], 72")
    if KVT:
        a("s_load_dwordx2 s[88:89], s[0:1], 0")
        a("s_load_dwordx4 s[60:63], s[0:1], 8")
        a("s_load_dwordx2 s[64:65], s[0:1], 24")
        a("s_load_dwordx2 s[80:81], s[0:1], 88")
    a("v_and_b32 v1, 63, v0")
    a("v_lshrrev_b32 v2, 6, v0")
    a("s_nop 0")
    a("v_readfirstlane_b32 s40, v2")
    a("s_and_b32 s30, s2, 7")
    a("s_lshr_b32 s31, s2, 3")
    a("s_lshl_b32 s30, s30, 2")
    a("s_and_b32 s32, s31, 3")
    a("s_add_u32 s30, s30, s32")
    a("s_lshr_b32 s31, s31, 2")
    a("s_mul_i32 s33, s30, 288")
    vD, vA, vB = 2, 7, 9
    AB, WB, ACC = 20, 84, 108
    NAB = 4
    gemm_setup_dma(a, 9216, vD, 34, 35, True)
    a("s_lshl_b32 s36, s31, 4")
    a("s_lshl_b32 s37, s40, 1")
    a("s_add_u32 s36, s36, s37")
    a("s_mul_i32 s37, s36, 18432")
    a("v_lshlrev_b32 v17, 4, v1")
    a(f"v_add_u32 v{vA}, s37, v17")
    a(f"v_add_u32 v{vA+1}, 18432, v{vA}")
    a("s_waitcnt lgkmcnt(0)")
    a("s_cmp_ge_u32 s40, 4")
    a("s_cselect_b32 s10, s6, s4")
    a("s_cselect_b32 s11, s7, s5")
    a("s_add_u32 s12, s10, s33")
    a("s_addc_u32 s13, s11, 0")
    a(f"s_sub_u32 s14, {SZ_W}, s33")
    a("s_mov_b32 s15, 0x00020000")
    a.srd(16, 8, SZ_SD, WS_XN)
    a.srd(20, 8, SZ_H, WS_H)
    def a_loads(j):
        b = AB + 16 * (j % NAB)
        a(f"s_mov_b32 s47, {2048*j}")
        for t in range(2):
            for kh in range(2):
                r = b + 8*t + 4*kh
                a.vmem(f"buffer_load_dwordx4 v[{r}:{r+3}], v{vA+t}, s[16:19], s47 offen offset:{1024*kh}", f"A{j}")
    KB = 64 * 9216
    dma = lambda j: gemm_dma(a, j, vD, 34, 35, 12, KB)
    if FUSE:
        a(f"s_mov_b32 s90, {SZ_SD}")
        a("s_mov_b32 s91, 0x00020000")
        a.srd(92, 8, 2*SZ_SD, WS_XP)
        a("s_mov_b32 s82, 256")
        a("s_mov_b32 s83, 0x00020000")
        a("s_cmp_ge_u32 s40, 2")
        a("s_cbranch_scc1 L_g1_h1")
        a("s_lshl_b32 s84, s31, 8")
        a("s_lshl_b32 s85, s30, 3")
        a("s_add_u32 s84, s84, s85")
        a("s_lshl_b32 s85, s40, 2")
        a("s_add_u32 s84, s84, s85")
        ln_fused(a, 108)
        a("s_barrier")
        a("s_cmp_lg_u32 s40, 0")
        a("s_cbranch_scc1 L_g1_h0")
        a("s_lshl_b32 s85, s31, 2")
        a("v_mov_b32 v17, s85")
        a("v_mov_b32 v18, 1")
        a("s_mov_b64 exec, 1")
        a("buffer_atomic_add v18, v17, s[80:83], 0 offen")
        a("s_mov_b64 exec, -1")
        a.label("L_g1_h0")
        vm_save = list(a.vm)
        dma(0); dma(1); dma(2)
        a.vm = vm_save
        a("s_cmp_lg_u32 s40, 0")
        a("s_cbranch_scc1 L_g1_h2")
        a.label("L_g1_poll")
        a("buffer_load_dword v18, v17, s[80:83], 0 offen sc1")
        a("s_waitcnt vmcnt(0)")
        a("v_readfirstlane_b32 s85, v18")
        a("s_nop 3")
        a("s_cmp_ge_u32 s85, 32")
        a("s_cbranch_scc1 L_g1_h2")
        a("s_sleep 10")
        a("s_branch L_g1_poll")
        a.label("L_g1_h1")
        dma(0); dma(1); dma(2)
        a("s_cmp_ge_u32 s40, 6")
        a("s_cbranch_scc1 L_g1_h1b")
        a("s_and_b32 s41, s40, 1")
        a("s_cmp_eq_u32 s41, 1")
        a("s_cselect_b32 s24, s6, s4")
        a("s_cselect_b32 s25, s7, s5")
        a("s_and_b32 s41, s2, 7")
        a("s_mul_i32 s41, s41, 1152")
        a("s_add_u32 s24, s24, s41")
        a("s_addc_u32 s25, s25, 0")
        a(f"s_sub_u32 s26, {SZ_W}, s41")
        a("s_mov_b32 s27, 0x00020000")
        a("s_lshr_b32 s41, s2, 3")
        a("s_lshl_b32 s41, s41, 1")
        a("s_lshr_b32 s42, s40, 2")
        a("s_add_u32 s41, s41, s42")
        a(f"s_mul_i32 s41, s41, {7*9216}")
        a(f"s_add_u32 s41, s41, {192*9216}")
        a("v_mul_u32_u24 v17, 57, v1")
        a("v_lshrrev_b32 v17, 9, v17")
        a("v_mul_u32_u24 v18, 9, v17")
        a("v_sub_u32 v18, v1, v18")
        a("v_mul_u32_u24 v17, 9216, v17")
        a("v_lshlrev_b32 v18, 7, v18")
        a("v_add_u32 v17, v17, v18")
        a("buffer_load_dword v0, v17, s[24:27], s41 offen")
        a.label("L_g1_h1b")
        a("s_add_u32 s41, s2, s40")
        a("s_cmp_lg_u32 s2, 0")
        a("s_cbranch_scc1 L_g1_h1c")
        a("s_cmp_lg_u32 s40, 7")
        a("s_cbranch_scc1 L_g1_h1c")
        a.srd(76, 8, 128*128, WS_FL)
        a("v_lshlrev_b32 v17, 7, v1")
        a("v_mov_b32 v18, 0")
        a("buffer_store_dword v18, v17, s[76:79], 0 offen")
        a("s_movk_i32 s41, 8192")
        a("buffer_store_dword v18, v17, s[76:79], s41 offen")
        a.label("L_g1_h1c")
        a("s_barrier")
        a.label("L_g1_h2")
        a("s_barrier")
        a_loads(0); a_loads(1); a_loads(2)
    else:
        dma(0); a_loads(0); dma(1); a_loads(1)
    def g1_pf():
        a("s_and_b32 s41, s2, 7")
        a("s_mul_i32 s41, s41, 1152")
        a("s_add_u32 s24, s10, s41")
        a("s_addc_u32 s25, s11, 0")
        a(f"s_sub_u32 s26, {SZ_W}, s41")
        a("s_mov_b32 s27, 0x00020000")
        a("s_lshr_b32 s41, s2, 3")
        a("v_mul_u32_u24 v17, 3641, v1")
        a("v_lshrrev_b32 v17, 16, v17")
        a("v_mul_u32_u24 v18, 18, v17")
        a("v_sub_u32 v18, v1, v18")
        a("v_lshlrev_b32 v17, 5, v17")
        a("v_add_u32 v17, s41, v17")
        a("v_mul_u32_u24 v17, 9216, v17")
        a("v_lshlrev_b32 v18, 6, v18")
        a("v_add_u32 v17, v17, v18")
        a("s_and_b32 s42, s40, 3")
        a(f"s_mul_i32 s43, s42, {3*32*9216}")
        a(f"s_add_u32 s43, s43, {4*32*9216}")
        a.vmem("buffer_load_dword v0, v17, s[24:27], s43 offen", "PF")
        a("s_and_b32 s42, s41, 3")
        a("s_lshl_b32 s42, s42, 2")
        a("s_lshl_b32 s44, s31, 4")
        a("s_add_u32 s42, s42, s44")
        a("s_and_b32 s44, s40, 1")
        a("s_lshl_b32 s44, s44, 1")
        a("s_add_u32 s42, s42, s44")
        a("s_mul_i32 s42, s42, 18432")
        a("s_lshr_b32 s44, s40, 1")
        a("s_lshl_b32 s44, s44, 11")
        a("s_add_u32 s42, s42, s44")
        a("s_add_u32 s42, s42, 4096")
        a("v_lshrrev_b32 v18, 5, v1")
        a("v_mul_u32_u24 v18, 18432, v18")
        a("v_and_b32 v19, 31, v1")
        a("v_lshlrev_b32 v19, 6, v19")
        a("v_add_u32 v18, v18, v19")
        a.vmem("buffer_load_dword v0, v18, s[16:19], s42 offen", "PF")
        a(f"s_add_u32 s43, s43, {12*32*9216}")
        a.vmem("buffer_load_dword v0, v17, s[24:27], s43 offen", "PF")
        a("s_add_u32 s42, s42, 8192")
        a("s_cmp_ge_u32 s40, 6")
        a("s_cselect_b32 s42, 0x7f000000, s42")
        a.vmem("buffer_load_dword v0, v18, s[16:19], s42 offen", "PF")
    if 'cvhead' in FL: conv_head_compute(a)
    a("v_lshrrev_b32 v17, 4, v1")
    a("v_lshrrev_b32 v18, 2, v1")
    a("v_and_b32 v18, 3, v18")
    a("v_and_b32 v19, 1, v17")
    a("v_lshlrev_b32 v17, 4, v17")
    a("v_add_u32 v17, v17, v18")
    a("v_lshlrev_b32 v19, 2, v19")
    a("v_add_u32 v18, v17, v19")
    a("v_xor_b32 v19, 4, v19")
    a("v_add_u32 v19, v17, v19")
    a("v_mul_u32_u24 v18, 288, v18")
    a("v_mul_u32_u24 v19, 288, v19")
    a("v_and_b32 v17, 3, v1")
    a("v_lshlrev_b32 v17, 3, v17")
    a(f"v_add_u32 v{vB}, v18, v17")
    a(f"v_add_u32 v{vB+1}, v19, v17")
    for st in range(1, NST):
        a(f"v_add_u32 v{vB+2*st}, {st*STAGE}, v{vB}")
        a(f"v_add_u32 v{vB+2*st+1}, {st*STAGE}, v{vB+1}")
    for i in range(144):
        a(f"v_mov_b32 v{ACC+i}, 0")
    a.stamp(1)
    NU = 36
    units = [(j, kh, mat, c) for j in range(9) for kh in range(2) for mat in range(2) for c in range(9)]
    def w_reads(U):
        j, kh, mat, c = units[U]
        st = j % NST
        r = WB + 4 * (U % (PD + 1))
        off = mat*18432 + 8*kh*288 + c*32
        a.lds(f"ds_read_b64_tr_b16 v[{r}:{r+1}], v{vB+2*st} offset:{off}", f"W{U}")
        a.lds(f"ds_read_b64_tr_b16 v[{r+2}:{r+3}], v{vB+2*st+1} offset:{off}", f"W{U}")
    def mfmas(U):
        j, kh, mat, c = units[U]
        r = WB + 4 * (U % (PD + 1))
        for t in range(2):
            ac = ACC + 4 * (t*18 + mat*9 + c)
            ar = AB + 16*(j % NAB) + 8*t + 4*kh
            a(f"v_mfma_f32_16x16x32_bf16 v[{ac}:{ac+3}], v[{r}:{r+3}], v[{ar}:{ar+3}], v[{ac}:{ac+3}]")
    def w2_pf():
        a("s_bfe_u32 s41, s2, 0x10002")
        if 'swap' in FL: a("s_xor_b32 s41, s41, 1")
        a("s_cmp_eq_u32 s41, 0")
        a(f"s_cselect_b32 s41, {128*int(os.environ.get('NJP','15'))*1152}, 0")
        a(f"s_mov_b32 s26, {128*int(os.environ.get('NJP','15'))*1152}")
        a(f"s_cselect_b32 s26, {128*(36-int(os.environ.get('NJP','15')))*1152}, s26")
        a("s_add_u32 s24, s86, s41")
        a("s_addc_u32 s25, s87, 0")
        a("s_mov_b32 s27, 0x00020000")
        a("s_and_b32 s41, s2, 0xf8")
        a("s_add_u32 s41, s41, s40")
        a("s_lshl_b32 s41, s41, 13")
        a(f"s_add_u32 s42, s41, {256*8192}")
        a("v_lshlrev_b32 v17, 7, v1")
        a.vmem("buffer_load_dword v0, v17, s[24:27], s41 offen", "PF2")
        a.vmem("buffer_load_dword v0, v17, s[24:27], s42 offen", "PF2")
        if 'ssmfront' in FL: return
        a.srd(76, 72, SZ_SD)
        a("s_lshl_b32 s41, s2, 3")
        a("s_add_u32 s41, s41, s40")
        a("s_mul_i32 s41, s41, 1152")
        a("s_mov_b32 exec_lo, 0x1ff")
        a("s_mov_b32 exec_hi, 0")
        a.vmem("buffer_load_dword v0, v17, s[76:79], s41 offen", "PF2")
        a("s_mov_b64 exec, -1")
        if KVT:
            a("s_lshl_b32 s41, s2, 1")
            a("s_lshr_b32 s42, s40, 2")
            a("s_add_u32 s41, s41, s42")
            a("s_and_b32 s42, s41, 31")
            a("s_lshr_b32 s43, s41, 5")
            a(f"s_mul_i32 s42, s42, {64*1152}")
            a("s_lshl_b32 s43, s43, 7")
            a("s_add_u32 s42, s42, s43")
            a("s_and_b32 s43, s40, 3")
            a("s_cmp_eq_u32 s43, 1")
            a("s_cselect_b32 s76, s62, s60")
            a("s_cselect_b32 s77, s63, s61")
            a("s_cmp_eq_u32 s43, 2")
            a(f"s_cselect_b32 s44, {(-3*1152) & 0xffffffff}, 0")
            a("s_add_u32 s42, s42, s44")
            a("s_cmp_ge_u32 s41, 288")
            a("s_cselect_b32 s42, 0x7f000000, s42")
            a("s_cmp_eq_u32 s43, 3")
            a("s_cselect_b32 s42, 0x7f000000, s42")
            a("v_mul_u32_u24 v17, 1152, v1")
            a("v_add_u32 v17, s42, v17")
            a.vmem("buffer_load_dword v0, v17, s[76:79], 0 offen", "PF2")
    gemm_loop(a, units, NU, NAB, w_reads, mfmas, a_loads, dma,
              ({10: lambda: a_loads(3)} if FUSE else {2: lambda: dma(2), 8: lambda: a_loads(2), 22: lambda: a_loads(3)}), late=(None if 'nopf2' in FL else w2_pf))
    a.stamp(4)
    a("s_mul_i32 s37, s36, 147456")
    a("s_mul_i32 s38, s30, 9")
    a("s_and_b32 s39, s38, 1")
    a("s_lshr_b32 s38, s38, 1")
    a("s_lshl_b32 s38, s38, 10")
    a("s_add_u32 s37, s37, s38")
    a("v_lshlrev_b32 v17, 4, v1")
    a("v_add_u32 v2, s37, v17")
    a("v_add_u32 v3, 147456, v2")
    a("s_mov_b32 s46, 0xbfb8aa3b")
    a("s_mov_b32 s47, 0xbfb8aa3b")
    a("s_mov_b32 s48, 1.0")
    a("s_mov_b32 s49, 1.0")
    a("s_movk_i32 s45, 4096")
    a("s_cmp_eq_u32 s39, 0")
    a("s_cbranch_scc0 L_g1_epi_odd")
    def group(t, c, T, O):
        g = ACC + 4*(t*18 + c); u_ = ACC + 4*(t*18 + 9 + c)
        a(f"v_cvt_pk_bf16_f32 v{T}, v{g}, v{g+1}")
        a(f"v_cvt_pk_bf16_f32 v{T+1}, v{g+2}, v{g+3}")
        a(f"v_cvt_pk_bf16_f32 v{T+2}, v{u_}, v{u_+1}")
        a(f"v_cvt_pk_bf16_f32 v{T+3}, v{u_+2}, v{u_+3}")
        unpack_lo(a, g, T); unpack_hi(a, g+1, T); unpack_lo(a, g+2, T+1); unpack_hi(a, g+3, T+1)
        a(f"v_pk_mul_f32 v[{T+4}:{T+5}], v[{g}:{g+1}], s[46:47]")
        a(f"v_pk_mul_f32 v[{T+6}:{T+7}], v[{g+2}:{g+3}], s[46:47]")
        unpack_lo(a, u_, T+2); unpack_hi(a, u_+1, T+2)
        for i in range(4):
            a(f"v_exp_f32 v{T+4+i}, v{T+4+i}")
        unpack_lo(a, u_+2, T+3); unpack_hi(a, u_+3, T+3)
        a(f"v_pk_add_f32 v[{T+4}:{T+5}], v[{T+4}:{T+5}], s[48:49]")
        a(f"v_pk_add_f32 v[{T+6}:{T+7}], v[{T+6}:{T+7}], s[48:49]")
        for i in range(4):
            a(f"v_rcp_f32 v{T+4+i}, v{T+4+i}")
        a("s_nop 0")
        a(f"v_pk_mul_f32 v[{T+4}:{T+5}], v[{T+4}:{T+5}], v[{g}:{g+1}]")
        a(f"v_pk_mul_f32 v[{T+6}:{T+7}], v[{T+6}:{T+7}], v[{g+2}:{g+3}]")
        a(f"v_cvt_pk_bf16_f32 v{T}, v{T+4}, v{T+5}")
        a(f"v_cvt_pk_bf16_f32 v{T+1}, v{T+6}, v{T+7}")
        unpack_lo(a, T+4, T); unpack_hi(a, T+5, T); unpack_lo(a, T+6, T+1); unpack_hi(a, T+7, T+1)
        a(f"v_pk_mul_f32 v[{T+4}:{T+5}], v[{T+4}:{T+5}], v[{u_}:{u_+1}]")
        a(f"v_pk_mul_f32 v[{T+6}:{T+7}], v[{T+6}:{T+7}], v[{u_+2}:{u_+3}]")
        a(f"v_cvt_pk_bf16_f32 v{O}, v{T+4}, v{T+5}")
        a(f"v_cvt_pk_bf16_f32 v{O+1}, v{T+6}, v{T+7}")
    HF = ' sc1' if 'hsc1' in FL else (' nt' if 'hnt' in FL else (' sc0 sc1' if 'hsc01' in FL else ''))
    for par in range(2):
        if par == 1: a.label("L_g1_epi_odd")
        n = 0
        for t in range(2):
            for c in range(9):
                T2 = c + par
                m, hi = T2 >> 1, T2 & 1
                O = 52 + 4 * ((t*5 + m) & 3)
                group(t, c, 20 + 8*(n & 3), O + 2*hi); n += 1
                so, imm = ("0", m*1024) if m < 4 else ("s45", 0)
                if hi == 1 and c > 0:
                    a(f"buffer_store_dwordx4 v[{O}:{O+3}], v{2+t}, s[20:23], {so} offen offset:{imm}{HF}")
                elif hi == 1 and c == 0:
                    a(f"buffer_store_dwordx2 v[{O+2}:{O+3}], v{2+t}, s[20:23], {so} offen offset:{imm+8}{HF}")
                elif hi == 0 and c == 8:
                    a(f"buffer_store_dwordx2 v[{O}:{O+1}], v{2+t}, s[20:23], {so} offen offset:{imm}{HF}")
        if par == 0: a("s_branch L_g1_epi_done")
    a.label("L_g1_epi_done")
    if KVT:
        a("s_cmp_ge_u32 s2, 144")
        a("s_cbranch_scc1 L_g1_end")
        a("s_and_b32 s41, s40, 3")
        a("s_lshl_b32 s41, s41, 6")
        a("s_waitcnt vmcnt(0)")
        a("v_add_u32 v0, s41, v1")
        a("s_barrier")
        a.srd(16, 60, SZ_SD)
        a.srd(20, 62, SZ_SD)
        a.srd(24, 64, D * 8)
        a.srd(28, 8, SZ_SD, WS_KVT)
        a("s_lshl_b32 s3, s2, 1")
        a("s_lshr_b32 s38, s40, 2")
        a("s_add_u32 s3, s3, s38")
        a("s_mul_i32 s38, s38, 8704")
        a("s_and_b32 s32, s3, 31")
        a("s_lshr_b32 s33, s3, 5")
        a("v_lshrrev_b32 v1, 3, v0")
        a("v_and_b32 v2, 7, v0")
        a("s_lshl_b32 s34, s32, 6")
        a("v_lshlrev_b32 v3, 1, v1")
        a("v_add_u32 v3, s34, v3")
        a("s_lshl_b32 s35, s33, 7")
        a("v_lshlrev_b32 v4, 4, v2")
        a("v_add_u32 v4, s35, v4")
        a("v_mul_u32_u24 v5, 1152, v3")
        a("v_add_u32 v5, v5, v4")
        for r in range(5):
            a(f"v_add_u32 v{6+r}, {(r-3)*1152 & 0xffffffff}, v5")
        for r in range(5):
            a(f"buffer_load_dwordx4 v[{12+4*r}:{15+4*r}], v{6+r}, s[16:19], 0 offen")
        a("buffer_load_dwordx4 v[32:35], v5, s[20:23], 0 offen")
        a("buffer_load_dwordx4 v[36:39], v5, s[20:23], 0 offen offset:1152")
        a("v_lshlrev_b32 v11, 2, v4")
        for i in range(4):
            a(f"buffer_load_dwordx4 v[{40+4*i}:{43+4*i}], v11, s[24:27], 0 offen offset:{16*i}")
        a("v_mul_u32_u24 v56, 1088, v2")
        a("v_sub_u32 v57, 31, v1")
        a("v_lshlrev_b32 v57, 2, v57")
        a("v_add3_u32 v56, v56, v57, s38")
        a("s_waitcnt vmcnt(0)")
        for c in range(8):
            w, hi = c >> 1, c & 1
            up = unpack_hi if hi else unpack_lo
            for r in range(5):
                up(a, 60 + r, 12 + 4*r + w)
            up(a, 65, 32 + w); up(a, 66, 36 + w)
            unpack_lo(a, 67, 40 + 2*c); unpack_hi(a, 68, 40 + 2*c)
            unpack_lo(a, 69, 41 + 2*c); unpack_hi(a, 70, 41 + 2*c)
            for step, j in enumerate([3, 2, 1, 0]):
                kk0 = 60 + (3 - j); kk1 = kk0 + 1
                a(f"v_mul_f32 v71, v{kk0}, v{67+j}")
                a(f"v_mul_f32 v72, v{kk1}, v{67+j}")
                a("v_cvt_pk_bf16_f32 v73, v71, v72")
                if step == 0:
                    unpack_lo(a, 74, 73); unpack_hi(a, 75, 73)
                else:
                    unpack_lo(a, 71, 73); unpack_hi(a, 72, 73)
                    a("v_add_f32 v74, v74, v71")
                    a("v_add_f32 v75, v75, v72")
                    a("v_cvt_pk_bf16_f32 v73, v74, v75")
                    unpack_lo(a, 74, 73); unpack_hi(a, 75, 73)
            a("v_mul_f32 v74, v74, v65")
            a("v_mul_f32 v75, v75, v66")
            a("v_cvt_pk_bf16_f32 v73, v75, v74")
            a(f"ds_write_b32 v56, v73 offset:{136*c}")
        a("s_waitcnt lgkmcnt(0)")
        a("s_barrier")
        a("v_lshrrev_b32 v1, 2, v0")
        a("v_and_b32 v2, 3, v0")
        a("v_mul_u32_u24 v3, 136, v1")
        a("v_lshlrev_b32 v4, 5, v2")
        a("v_add3_u32 v3, v3, v4, s38")
        for m in range(4):
            a(f"ds_read_b64 v[{8+2*m}:{9+2*m}], v3 offset:{8*m}")
        a("s_lshl_b32 s36, s33, 18")
        a("s_lshl_b32 s37, s32, 7")
        a("s_sub_u32 s36, s36, s37")
        a("s_add_u32 s36, s36, 3968")
        a("v_lshlrev_b32 v5, 12, v1")
        a("v_add_u32 v5, v5, v4")
        a("v_add_u32 v5, s36, v5")
        a("s_waitcnt lgkmcnt(0)")
        a("buffer_store_dwordx4 v[8:11], v5, s[28:31], 0 offen")
        a("buffer_store_dwordx4 v[12:15], v5, s[28:31], 0 offen offset:16")
    a.stamp(5)
    a.stamp_flush(6, 8, 0x8000000)
    a.label("L_g1_end")
    a("s_endpgm")
    return desc("gemm1_kernel", 252, 100)

G2_ST = 24576
G2_NS = 5
G2_NJP = int(os.environ.get('NJP', '15')); G2_NJC = 36 - G2_NJP
G2_HP = int(os.environ.get('HP', '3')); G2_HL = int(os.environ.get('HL', '2'))
G2_Y = G2_NS * G2_ST
G2_LDS = G2_Y + 24576
def gen_gemm2(a):
    a.kernel_begin("gemm2_kernel")
    a("s_cmp_ge_u32 s2, 256")
    a("s_cbranch_scc1 L_g2_end")
    a("s_cmp_lt_u32 s2, 64")
    a("s_cbranch_scc1 L_g2_pf")
    a("s_sub_u32 s2, s2, 64")
    a.stamp(0)
    a("s_load_dwordx2 s[4:5], s[0:1], 72")
    a("s_load_dwordx2 s[6:7], s[0:1], 0")
    a("s_load_dwordx2 s[8:9], s[0:1], 96")
    a("s_load_dwordx2 s[10:11], s[0:1], 80")
    a("v_and_b32 v1, 63, v0")
    a("v_lshrrev_b32 v2, 6, v0")
    a("s_nop 0")
    a("v_readfirstlane_b32 s40, v2")
    a("s_and_b32 s30, s2, 7")
    a("s_lshr_b32 s31, s2, 3")
    a("s_mul_i32 s32, s31, 43")
    a("s_lshr_b32 s32, s32, 8")
    a("s_mul_i32 s33, s32, 6")
    a("s_sub_u32 s31, s31, s33")
    a("s_lshr_b32 s29, s30, 2")
    if 'swap' in FL: a("s_xor_b32 s29, s29, 1")
    a("s_and_b32 s30, s30, 3")
    a("s_lshl_b32 s30, s30, 2")
    a("s_add_u32 s32, s32, s30")
    a("s_and_b32 s41, s40, 3")
    a("s_lshr_b32 s42, s40, 2")
    a("s_cmp_eq_u32 s29, 0")
    a(f"s_cselect_b32 s28, {128*G2_NJP}, 0")
    a("s_mul_i32 s33, s28, 1152")
    a("s_mul_i32 s34, s31, 192")
    a("s_add_u32 s33, s33, s34")
    a("s_mul_i32 s36, s40, 3072")
    vD, vA, vB = 2, 5, 8
    AB, WB, ACC = 20, 100, 124
    NAB, PD2 = 5, 5
    a("s_movk_i32 s45, 5462")
    a("s_mul_i32 s44, s40, 192")
    for i in range(3):
        a(f"s_add_u32 s43, s44, {64*i}")
        a("v_add_u32 v17, s43, v1")
        a("v_mul_lo_u32 v18, v17, s45")
        a("v_lshrrev_b32 v18, 16, v18")
        a("v_mul_u32_u24 v19, 12, v18")
        a("v_sub_u32 v19, v17, v19")
        a("v_lshrrev_b32 v17, 1, v19")
        a("v_bfe_u32 v16, v18, 2, 1")
        a("v_sub_u32 v17, v17, v16")
        a("v_cmp_gt_i32 vcc, 0, v17")
        a("v_and_b32 v19, 1, v19")
        a("v_lshlrev_b32 v19, 4, v19")
        a("v_cndmask_b32 v17, v17, 5, vcc")
        a("v_lshlrev_b32 v17, 5, v17")
        a("v_mul_u32_u24 v18, 1152, v18")
        a(f"v_add3_u32 v{vD+i}, v17, v18, v19")
    a("s_lshl_b32 s38, s32, 3")
    a("s_lshl_b32 s39, s41, 1")
    a("s_add_u32 s38, s38, s39")
    a("s_mul_i32 s34, s38, 147456")
    a("s_lshl_b32 s35, s28, 5")
    a("s_add_u32 s34, s34, s35")
    a("s_lshl_b32 s35, s42, 11")
    a("s_add_u32 s34, s34, s35")
    a("v_lshlrev_b32 v17, 4, v1")
    a(f"v_add_u32 v{vA}, s34, v17")
    a(f"v_add_u32 v{vA+1}, 147456, v{vA}")
    a("s_waitcnt lgkmcnt(0)")
    a("s_add_u32 s12, s4, s33")
    a("s_addc_u32 s13, s5, 0")
    a(f"s_sub_u32 s14, {SZ_W}, s33")
    a("s_mov_b32 s15, 0x00020000")
    a.srd(16, 8, SZ_H, WS_H)
    a.srd(20, 8, SZ_SD, WS_Y2T)
    a.srd(24, 8, 2*SZ_SD, WS_XP)
    a.srd(72, 6, SZ_SD)
    a.srd(76, 10, SZ_SD)
    a.srd(84, 8, 96*49152, WS_P)
    a.srd(80, 8, 128*128, WS_FL)
    def a_loads(j):
        b = AB + 16 * (j % NAB)
        a(f"s_mov_b32 s47, {4096*j}")
        for t in range(2):
            for mm in range(2):
                r = b + 8*t + 4*mm
                a.vmem(f"buffer_load_dwordx4 v[{r}:{r+3}], v{vA+t}, s[16:19], s47 offen offset:{1024*mm}", f"A{j}")
    def dma(j):
        st = j % G2_NS
        a(f"s_mov_b32 s46, {j*128*1152}")
        for i in range(3):
            a(f"s_add_u32 m0, s36, {st*G2_ST + 1024*i}")
            a("s_nop 0")
            a.vmem(f"buffer_load_dwordx4 v{vD+i}, s[12:15], s46 offen lds", f"D{j}")
    dma(0); a_loads(0); dma(1); a_loads(1)
    a("v_lshrrev_b32 v17, 2, v1")
    a("v_mul_u32_u24 v17, 192, v17")
    a("v_and_b32 v18, 3, v1")
    a("v_lshlrev_b32 v18, 3, v18")
    a(f"s_mul_i32 s43, s42, {64*192}")
    a("v_add3_u32 v17, v17, v18, s43")
    a("v_bfe_u32 v18, v1, 4, 1")
    a("v_lshlrev_b32 v19, 5, v18")
    a(f"v_add_u32 v{vB}, v17, v19")
    a("v_xor_b32 v18, 1, v18")
    a("v_mul_u32_u24 v18, 160, v18")
    a(f"v_add_u32 v{vB+1}, v17, v18")
    for grp in range(1, 3):
        a(f"v_add_u32 v{vB+2*grp}, {2*grp*G2_ST}, v{vB}")
        a(f"v_add_u32 v{vB+2*grp+1}, {2*grp*G2_ST}, v{vB+1}")
    for i in range(48):
        a(f"v_mov_b32 v{ACC+i}, 0")
    a.stamp(1)
    NU = 12
    PFD = int(os.environ.get('PFD', '8'))
    a("s_lshr_b32 s43, s2, 3")
    a("s_lshl_b32 s43, s43, 2")
    a("s_add_u32 s43, s43, s41")
    a("s_mul_i32 s43, s43, 12")
    a("v_add_u32 v17, s43, v1")
    a("v_lshlrev_b32 v18, 7, v17")
    a("v_lshrrev_b32 v19, 5, v17")
    a("v_mul_u32_u24 v19, 147456, v19")
    a("v_and_b32 v17, 31, v17")
    a("v_lshlrev_b32 v17, 7, v17")
    a("v_add_u32 v19, v19, v17")
    a("s_cmp_eq_u32 s42, 0")
    a("s_cselect_b64 vcc, -1, 0")
    a("s_mul_i32 s43, s28, 1152")
    a("s_add_u32 s92, s4, s43")
    a("s_addc_u32 s93, s5, 0")
    a(f"s_sub_u32 s94, {SZ_W}, s43")
    a("v_cndmask_b32 v247, v19, v18, vcc")
    a("s_and_b32 s44, s2, 3")
    a(f"s_mul_i32 s44, s44, {32*147456}")
    a("s_lshl_b32 s45, s28, 5")
    a("s_add_u32 s44, s44, s45")
    a(f"s_add_u32 s44, s44, {PFD*4096}")
    a("s_cmp_eq_u32 s42, 0")
    a("s_cselect_b32 s92, s92, s16")
    a("s_cselect_b32 s93, s93, s17")
    a("s_cselect_b32 s94, s94, s18")
    a("s_mov_b32 s95, 0x00020000")
    a(f"s_cselect_b32 s90, {PFD*147456}, s44")
    a("s_mov_b32 s91, 4096")
    a("s_cselect_b32 s91, 147456, s91")
    def touch():
        a("s_mov_b32 exec_lo, 0xfff")
        a("s_mov_b32 exec_hi, 0")
        a.vmem("buffer_load_dword v246, v247, s[92:95], s90 offen", "T")
        a("s_mov_b64 exec, -1")
        a("s_add_u32 s90, s90, s91")
    a("s_mul_i32 s43, s40, 6144")
    a("v_lshlrev_b32 v16, 4, v1")
    a("v_add_u32 v14, s43, v16")
    a("s_xor_b32 s44, s40, 4")
    a("s_mul_i32 s44, s44, 6144")
    a("v_add_u32 v7, s44, v16")
    a("s_mul_i32 s44, s32, 6")
    a("s_add_u32 s44, s44, s31")
    a("s_mul_i32 s45, s44, 49152")
    a("v_add_u32 v15, s45, v14")
    a("s_lshl_b32 s48, s44, 7")
    a("s_mov_b32 s49, 1")
    a("s_movk_i32 s88, 4096")
    XR, NR, PR, YL, OF = 172, 184, 196, 220, 232
    a("v_and_b32 v17, 15, v1")
    a("v_lshrrev_b32 v18, 4, v1")
    a("s_add_u32 s43, s38, s42")
    a("s_mul_i32 s43, s43, 18432")
    a("s_mul_i32 s34, s31, 192")
    a("s_add_u32 s34, s34, s43")
    a("v_mul_u32_u24 v19, 1152, v17")
    a(f"v_lshlrev_b32 v{OF}, 3, v18")
    a(f"v_add3_u32 v{OF}, v19, v{OF}, s34")
    a("s_lshl_b32 s43, s43, 1")
    a("s_mul_i32 s34, s31, 6144")
    a("s_add_u32 s43, s43, s34")
    a(f"v_add_u32 v{OF+1}, s43, v16")
    def run_loop(NJ, hooks):
        units = [(j, mm, ct) for j in range(NJ) for mm in range(2) for ct in range(6)]
        def w_reads(U):
            j, mm, ct = units[U]
            st = j % G2_NS
            r = WB + 4 * (U % (PD2 + 1))
            base = vB + 2*(st >> 1) + (0 if ct < 5 else 1)
            off = (st & 1)*G2_ST + 32*mm*192 + (32*ct if ct < 5 else 0)
            a.lds(f"ds_read_b64_tr_b16 v[{r}:{r+1}], v{base} offset:{off}", f"W{U}")
            a.lds(f"ds_read_b64_tr_b16 v[{r+2}:{r+3}], v{base} offset:{off+3072}", f"W{U}")
        def mfmas(U):
            j, mm, ct = units[U]
            r = WB + 4 * (U % (PD2 + 1))
            for t in range(2):
                ac = ACC + 4 * (t*6 + ct)
                ar = AB + 16*(j % NAB) + 8*t + 4*mm
                a(f"v_mfma_f32_16x16x32_bf16 v[{ac}:{ac+3}], v[{r}:{r+3}], v[{ar}:{ar+3}], v[{ac}:{ac+3}]")
        hk = dict(hooks or {})
        if 'coop' in FL:
            for j in range(NJ - PFD):
                hk[(j, 9)] = touch
        gemm_loop(a, units, NU, NAB, w_reads, mfmas, a_loads, dma,
                  {1: lambda: dma(2), 3: lambda: a_loads(2), 4: lambda: dma(3), 5: lambda: a_loads(3), 6: lambda: a_loads(4)},
                  NJ=NJ, NS=G2_NS, PD=PD2, hooks=hk)
    def pofs(i):
        return ("0", 1024*i) if i < 4 else ("s88", 1024*(i-4))
    def exchange():
        a("s_barrier")
        a("s_cmp_lt_u32 s40, 4")
        a(f"s_cbranch_scc1 L_g2_x{exchange.n}a")
        a("s_nop 4")
        for i in range(6):
            a(f"ds_write_b128 v14, v[{ACC+4*i}:{ACC+4*i+3}] offset:{1024*i}")
        for i in range(24):
            a(f"v_mov_b32 v{20+i}, v{ACC+24+i}")
        a(f"s_branch L_g2_x{exchange.n}b")
        a.label(f"L_g2_x{exchange.n}a")
        a("s_nop 4")
        for i in range(6):
            a(f"ds_write_b128 v14, v[{ACC+24+4*i}:{ACC+24+4*i+3}] offset:{1024*i}")
        for i in range(24):
            a(f"v_mov_b32 v{20+i}, v{ACC+i}")
        a.label(f"L_g2_x{exchange.n}b")
        exchange.n += 1
    exchange.n = 0
    a("s_cmp_eq_u32 s29, 0")
    a("s_cbranch_scc1 L_g2_consumer")
    vm_save = list(a.vm)
    run_loop(G2_NJP, None)
    a.stamp(4)
    a.keepbar = True
    exchange()
    a("s_waitcnt lgkmcnt(0)")
    a("s_barrier")
    for i in range(6):
        a(f"ds_read_b128 v[{44+4*i}:{47+4*i}], v7 offset:{1024*i}")
    for i in range(6):
        a(f"s_waitcnt lgkmcnt({5-i})")
        for e in range(4):
            a(f"v_add_f32 v{20+4*i+e}, v{20+4*i+e}, v{44+4*i+e}")
        so, imm = pofs(i)
        a(f"buffer_store_dwordx4 v[{20+4*i}:{23+4*i}], v15, s[84:87], {so} offen offset:{imm} sc1")
    a("s_waitcnt vmcnt(0)")
    a("s_barrier")
    a("s_cmp_lg_u32 s40, 0")
    a("s_cbranch_scc1 L_g2_fin")
    a("v_mov_b32 v20, s48")
    a("v_mov_b32 v21, s49")
    a("s_mov_b64 exec, 1")
    a("buffer_store_dword v21, v20, s[80:83], 0 offen sc1")
    a("s_mov_b64 exec, -1")
    a("s_branch L_g2_fin")
    a.label("L_g2_consumer")
    a.vm = vm_save; a.lg = []; a.keepbar = False
    def x_loads():
        for ct in range(6):
            so, imm = pofs(ct)
            a.vmem(f"buffer_load_dwordx4 v[{XR+4*ct}:{XR+4*ct+3}], v{OF+1}, s[24:27], {so} offen offset:{imm}", "X")
    def early_polls():
        a("v_mov_b32 v17, s48")
        a.vmem("buffer_load_dword v244, v17, s[80:83], 0 offen sc1", "F")
    def early_loads():
        if 'st2' in FL: a.stamp(1)
        a.wait_vm("F")
        a("v_readfirstlane_b32 s43, v244")
        a("v_mov_b32 v17, s48")
        a("s_nop 2")
        a("s_and_b32 s43, s43, s49")
        a("s_cbranch_scc1 L_g2_go2")
        a.label("L_g2_poll2")
        a("s_sleep 8")
        a("buffer_load_dword v18, v17, s[80:83], 0 offen sc1")
        a("s_waitcnt vmcnt(0)")
        a("v_readfirstlane_b32 s43, v18")
        a("s_nop 3")
        a("s_and_b32 s43, s43, s49")
        a("s_cbranch_scc0 L_g2_poll2")
        a.label("L_g2_go2")
        for i in range(6):
            so, imm = pofs(i)
            a.vmem(f"buffer_load_dwordx4 v[{PR+4*i}:{PR+4*i+3}], v15, s[84:87], {so} offen offset:{imm} sc1", "E")
        if 'st2' in FL: a.stamp(3)
    def y_loads():
        for p in range(3):
            a(f"buffer_load_dwordx4 v[{YL+4*p}:{YL+4*p+3}], v{OF+2}, s[20:23], s{96+p} offen sc1")
    def conv_poll():
        a("s_lshl_b32 s43, s31, 7")
        a(f"s_add_u32 s43, s43, {96*128}")
        a(f"v_mov_b32 v{OF+3}, s43")
        a.vmem(f"buffer_load_dword v245, v{OF+3}, s[80:83], 0 offen sc1", "G")
        a("v_lshrrev_b32 v17, 4, v1")
        a("v_lshlrev_b32 v17, 12, v17")
        a("v_and_b32 v18, 15, v1")
        a("v_lshlrev_b32 v18, 4, v18")
        a(f"v_add_u32 v{OF+2}, v17, v18")
        a("s_mul_i32 s96, s31, 96")
        a("s_mul_i32 s35, s40, 12")
        a("s_add_u32 s96, s96, s35")
        a("s_lshl_b32 s96, s96, 12")
        a("s_lshl_b32 s35, s32, 8")
        a("s_add_u32 s96, s96, s35")
        a("s_add_u32 s97, s96, 16384")
        a("s_add_u32 s98, s96, 32768")
    def conv_check():
        a.wait_vm("G")
        a("v_readfirstlane_b32 s89, v245")
        a("s_nop 3")
        a("s_cmp_lt_u32 s89, 384")
        a("s_cbranch_scc1 L_g2_cc")
        y_loads()
        a.label("L_g2_cc")
    run_loop(G2_NJC, {(6, 1): x_loads, (G2_NJC - G2_HP, 1): early_polls, (G2_NJC - G2_HL, 1): early_loads,
                      (G2_NJC - 3, 2): conv_poll, (G2_NJC - 1, 2): conv_check})
    a.stamp(4)
    a.keepbar = True
    a("s_cmp_ge_u32 s89, 384")
    a("s_cbranch_scc1 L_g2_go")
    a.label("L_g2_poll")
    a("s_sleep 24")
    a(f"buffer_load_dword v18, v{OF+3}, s[80:83], 0 offen sc1")
    a("s_waitcnt vmcnt(0)")
    a("v_readfirstlane_b32 s44, v18")
    a("s_nop 3")
    a("s_cmp_ge_u32 s44, 384")
    a("s_cbranch_scc0 L_g2_poll")
    y_loads()
    a.label("L_g2_go")
    a("s_mul_i32 s35, s40, 3072")
    a(f"s_add_u32 s35, s35, {G2_Y}")
    a("v_add_u32 v19, s35, v16")
    exchange()
    a("v_lshrrev_b32 v16, 2, v1")
    a("v_lshlrev_b32 v16, 8, v16")
    a("v_and_b32 v17, 3, v1")
    a("v_lshlrev_b32 v17, 3, v17")
    a("s_lshl_b32 s43, s41, 6")
    a("s_lshl_b32 s44, s42, 5")
    a("s_add_u32 s43, s43, s44")
    a(f"s_add_u32 s43, s43, {G2_Y}")
    a("v_add3_u32 v16, v16, v17, s43")
    a("s_waitcnt vmcnt(3)")
    for i in range(24):
        a(f"v_add_f32 v{20+i}, v{20+i}, v{PR+i}")
    a("s_waitcnt vmcnt(0)")
    for p in range(3):
        a(f"ds_write_b128 v19, v[{YL+4*p}:{YL+4*p+3}] offset:{1024*p}")
    a("s_waitcnt lgkmcnt(0)")
    a("s_barrier")
    YR = 68
    for i in range(6):
        a(f"ds_read_b128 v[{44+4*i}:{47+4*i}], v7 offset:{1024*i}")
    for ct in range(6):
        a(f"ds_read_b64_tr_b16 v[{YR+2*ct}:{YR+2*ct+1}], v16 offset:{4096*ct}")
    a("s_waitcnt lgkmcnt(0)")
    for z in range(6):
        T = 92 + 6*(z & 1)
        for e in range(4):
            a(f"v_add_f32 v{20+4*z+e}, v{20+4*z+e}, v{44+4*z+e}")
        for w in range(2):
            xr, xnr, yr, br = XR+4*z+w, XR+4*z+2+w, YR+2*z+w, 20+4*z+2*w
            unpack_lo(a, T, xnr); unpack_hi(a, T+1, xnr)
            unpack_lo(a, T+2, yr); unpack_hi(a, T+3, yr)
            a(f"v_mul_f32 v{T}, v{T}, v{T+2}")
            a(f"v_mul_f32 v{T+1}, v{T+1}, v{T+3}")
            a(f"v_cvt_pk_bf16_f32 v{T+2}, v{T}, v{T+1}")
            unpack_lo(a, T, T+2); unpack_hi(a, T+1, T+2)
            unpack_lo(a, T+3, xr); unpack_hi(a, T+4, xr)
            a(f"v_add_f32 v{T}, v{T}, v{T+3}")
            a(f"v_add_f32 v{T+1}, v{T+1}, v{T+4}")
            a(f"v_cvt_pk_bf16_f32 v{T+2}, v{T}, v{T+1}")
            unpack_lo(a, T, T+2); unpack_hi(a, T+1, T+2)
            a(f"v_cvt_pk_bf16_f32 v{T+2}, v{br}, v{br+1}")
            unpack_lo(a, T+3, T+2); unpack_hi(a, T+4, T+2)
            a(f"v_add_f32 v{T}, v{T}, v{T+3}")
            a(f"v_add_f32 v{T+1}, v{T+1}, v{T+4}")
            a(f"v_cvt_pk_bf16_f32 v{xr}, v{T}, v{T+1}")
        a(f"buffer_store_dwordx2 v[{XR+4*z}:{XR+4*z+1}], v{OF}, s[76:79], 0 offen offset:{32*z}")
    a.label("L_g2_fin")
    a.stamp(5)
    a.stamp_flush(6, 8, 0x8100000)
    a("s_endpgm")
    a.label("L_g2_pf")
    if 'stamp' in FL: a("s_memtime s[64:65]")
    a("s_load_dwordx2 s[44:45], s[0:1], 72")
    a("s_load_dwordx2 s[8:9], s[0:1], 96")
    a("s_load_dwordx4 s[4:7], s[0:1], 32")
    a("v_and_b32 v1, 63, v0")
    a("v_lshrrev_b32 v2, 6, v0")
    a("s_nop 0")
    a("v_readfirstlane_b32 s40, v2")
    a("s_lshl_b32 s31, s40, 6")
    a("s_add_u32 s30, s2, s31")
    a(f"s_mul_i32 s31, s40, {CV_SZ}")
    a("s_lshl_b32 s32, s30, 12")
    a("v_lshlrev_b32 v2, 4, v1")
    a("s_waitcnt lgkmcnt(0)")
    a.srd(12, 4, SZ_SD)
    a.srd(16, 6, D*2)
    a.srd(20, 8, SZ_SD, WS_KVT)
    a.srd(24, 8, SZ_SD, WS_Y2T)
    a.srd(36, 8, 128*128, WS_FL)
    def cloads(kb, dreg, sd, sdb, slds):
        for i in range(4):
            a(f"buffer_load_dwordx4 v[{kb+6*i}:{kb+3+6*i}], v2, s[12:15], s{sdb} offen offset:{1024*i}")
            a(f"buffer_load_dword v{kb+4+6*i}, v2, s[12:15], s{sdb} offen offset:{1024*i+16}")
        for i in range(4):
            a(f"s_add_u32 m0, s{slds}, {CV_U + 1024*i}")
            a(f"s_add_u32 s33, s{sdb}, {1024*i}")
            a("buffer_load_dwordx4 v2, s[20:23], s33 offen lds")
        a(f"s_lshl_b32 s33, s{sd}, 1")
        a(f"v_mov_b32 v{dreg}, s33")
        a(f"buffer_load_ushort v{dreg}, v{dreg}, s[16:19], 0 offen")
    cloads(48, 3, 30, 32, 31)
    a("s_add_u32 s46, s2, 512")
    a("s_lshl_b32 s47, s46, 12")
    a(f"s_mov_b32 s48, {8*CV_SZ}")
    a("s_cmp_ge_u32 s40, 4")
    a("s_cbranch_scc1 L_g2_pf2")
    cloads(176, 200, 46, 47, 48)
    a.label("L_g2_pf2")
    a("s_barrier")
    a("s_and_b32 s50, s2, 7")
    a("s_and_b32 s51, s2, 56")
    a("s_add_u32 s51, s51, s40")
    a("s_lshr_b32 s52, s50, 2")
    if 'swap' in FL: a("s_xor_b32 s52, s52, 1")
    a("v_lshlrev_b32 v199, 7, v1")
    a("s_lshl_b32 s53, s51, 13")
    a("v_lshrrev_b32 v5, 4, v1")
    a("v_mul_u32_u24 v5, 147456, v5")
    a("v_and_b32 v6, 15, v1")
    a("v_lshlrev_b32 v6, 7, v6")
    a("v_add_u32 v181, v5, v6")
    a("s_and_b32 s54, s50, 3")
    a("s_lshl_b32 s54, s54, 5")
    a("s_and_b32 s55, s51, 7")
    a("s_lshl_b32 s55, s55, 2")
    a("s_add_u32 s54, s54, s55")
    a("s_mul_i32 s54, s54, 147456")
    a("s_cmp_eq_u32 s52, 0")
    a(f"s_cselect_b32 s55, {128*G2_NJP*32}, 0")
    a(f"s_cselect_b32 s52, {128*G2_NJP*1152}, 0")
    a(f"s_mov_b32 s58, {128*G2_NJP*1152}")
    a(f"s_cselect_b32 s58, {128*G2_NJC*1152}, s58")
    a(f"s_cselect_b32 s43, {2*G2_NJC}, {2*G2_NJP}")
    a("s_add_u32 s54, s54, s55")
    a("s_lshr_b32 s50, s51, 3")
    a("s_lshl_b32 s55, s50, 11")
    a("s_add_u32 s54, s54, s55")
    a("s_add_u32 s56, s44, s52")
    a("s_addc_u32 s57, s45, 0")
    a("s_mov_b32 s59, 0x00020000")
    a.srd(60, 8, SZ_H, WS_H)
    def pf(rs):
        for r in rs:
            a(f"buffer_load_dword v201, v199, s[56:59], s53 offen")
            a(f"s_add_u32 s53, s53, {64*8192}")
            a("s_cmp_ge_u32 s50, s43")
            a("s_cselect_b32 s55, 0x7f000000, s54")
            a(f"buffer_load_dword v201, v181, s[60:63], s55 offen")
            a("s_add_u32 s54, s54, 16384")
            a("s_add_u32 s50, s50, 8")
    NPF = int(os.environ.get('NPF', '3'))
    pf(range(0, NPF))
    a("s_mov_b32 s49, 0")
    a("v_and_b32 v9, 15, v1")
    a("v_lshrrev_b32 v10, 4, v1")
    a("v_lshlrev_b32 v12, 4, v10")
    a(f"s_waitcnt vmcnt({2*NPF})")
    if 'stamp' in FL: a("s_memtime s[66:67]")
    def conv_body(ts):
        a("v_add_u32 v8, s31, v2")
        a("v_lshlrev_b32 v11, 1, v9")
        a("v_add_u32 v11, v11, v12")
        a("v_and_b32 v14, 1, v9")
        a("v_cmp_eq_u32 vcc, 1, v14")
        a(f"v_mov_b32 v14, {CV_O}")
        a("s_nop 1")
        a("v_cndmask_b32 v14, v14, 2, vcc")
        a("v_add_u32 v11, v11, v14")
        a("v_add_u32 v11, s31, v11")
        a("v_lshlrev_b32 v13, 5, v9")
        a("v_sub_u32 v13, v12, v13")
        a(f"v_add_u32 v13, {CV_U+480}, v13")
        a("v_add_u32 v13, s31, v13")
        KA = [11, 14, 15, 202, 203]
        for i in range(1, 5):
            a(f"v_add_u32 v{KA[i]}, {960*i}, v11")
        a("v_mov_b32 v4, 0"); a("v_mov_b32 v5, 0"); a("v_mov_b32 v6, 0"); a("v_mov_b32 v7, 0")
        a("s_mov_b32 exec_hi, 0")
        a(f"ds_write_b128 v8, v[4:7] offset:{CV_U+4096}")
        a("s_mov_b32 exec_lo, 3")
        a("ds_write_b128 v8, v[4:7]")
        a("s_mov_b32 exec_lo, 1")
        a(f"ds_write_b128 v8, v[4:7] offset:{CV_O}")
        a("s_mov_b64 exec, -1")
        CA = 16; FA = 48; FB = 80
        mx = max(ts)
        for t in ts:
            for i in range(4): a(f"v_mov_b32 v{CA+4*t+i}, 0")
        for i in range(4):
            b = 48 + 6*i
            a(f"ds_write_b128 v8, v[{b}:{b+3}] offset:{32+1024*i}")
            for t in range(4):
                a(f"v_alignbit_b32 v{112+4*(i&1)+t}, v{b+t+1}, v{b+t}, 16")
            a(f"ds_write_b128 v8, v[{112+4*(i&1)}:{115+4*(i&1)}] offset:{CV_O+32+1024*i}")
            if i == 0:
                a("v_lshlrev_b32 v7, 16, v48")
                a("s_mov_b64 exec, 1")
                a(f"ds_write_b128 v8, v[4:7] offset:{CV_O+16}")
                a("s_mov_b64 exec, -1")
        a("s_waitcnt lgkmcnt(0)")
        def creads(rho):
            o = 64 * (rho & 1)
            for pi in range(mx + 1):
                p = 8*pi + rho
                r = FA+o+4*pi
                a(f"ds_read2_b32 v[{r}:{r+1}], v{KA[p//15]} offset0:{16*(p%15)} offset1:{16*(p%15)+1}")
                a(f"ds_read2_b32 v[{r+2}:{r+3}], v{KA[p//15]} offset0:{16*(p%15)+2} offset1:{16*(p%15)+3}")
                w = 8*pi - rho
                a(f"ds_read_b128 v[{FB+o+4*pi}:{FB+o+4*pi+3}], v13 offset:{64*(56-w)}")
        creads(0)
        for rho in range(8):
            a("s_waitcnt lgkmcnt(0)")
            if rho < 7:
                creads(rho + 1)
            o = 64 * (rho & 1)
            for t in ts:
                for pi in range(t + 1):
                    tau = t - pi
                    a(f"v_mfma_f32_16x16x32_bf16 v[{CA+4*t}:{CA+4*t+3}], v[{FA+o+4*pi}:{FA+o+4*pi+3}], v[{FB+o+4*tau}:{FB+o+4*tau+3}], v[{CA+4*t}:{CA+4*t+3}]")
        a("v_lshlrev_b32 v3, 16, v3")
        a("v_lshlrev_b32 v14, 5, v9")
        a("v_lshlrev_b32 v15, 3, v10")
        a("v_add_u32 v14, v14, v15")
        a(f"v_sub_u32 v15, {CV_U+504}, v14")
        a("v_add_u32 v15, s31, v15")
        a("v_add_u32 v14, s32, v14")
        for t in ts:
            a(f"ds_read_b64 v[{48+2*t}:{49+2*t}], v15 offset:{512*(7-t)}")
        a("s_waitcnt lgkmcnt(0)")
        for n_, t in enumerate(ts):
            y = CA + 4*t; kq = 48 + 2*t; T = 64 + 8*(n_ & 1)
            unpack_hi(a, T, kq+1); unpack_lo(a, T+1, kq+1); unpack_hi(a, T+2, kq); unpack_lo(a, T+3, kq)
            for i in range(4):
                a(f"v_mul_f32 v{T+i}, v{T+i}, v3")
            a(f"v_cvt_pk_bf16_f32 v{T+4}, v{T}, v{T+1}")
            a(f"v_cvt_pk_bf16_f32 v{T+5}, v{T+2}, v{T+3}")
            a(f"v_cvt_pk_bf16_f32 v{T+6}, v{y}, v{y+1}")
            a(f"v_cvt_pk_bf16_f32 v{T+7}, v{y+2}, v{y+3}")
            unpack_lo(a, T, T+4); unpack_hi(a, T+1, T+4); unpack_lo(a, T+2, T+5); unpack_hi(a, T+3, T+5)
            unpack_lo(a, y, T+6); unpack_hi(a, y+1, T+6); unpack_lo(a, y+2, T+7); unpack_hi(a, y+3, T+7)
            for i in range(4):
                a(f"v_add_f32 v{T+i}, v{T+i}, v{y+i}")
            a(f"v_cvt_pk_bf16_f32 v{y}, v{T}, v{T+1}")
            a(f"v_cvt_pk_bf16_f32 v{y+1}, v{T+2}, v{T+3}")
            a(f"buffer_store_dwordx2 v[{y}:{y+1}], v14, s[24:27], 0 offen offset:{512*t} sc1")
    conv_body(list(range(8)))
    a("s_mul_i32 s33, s30, 683")
    a("s_lshr_b32 s33, s33, 16")
    a("s_lshl_b32 s33, s33, 7")
    a(f"s_add_u32 s33, s33, {96*128}")
    a("s_cmp_ge_u32 s40, 4")
    a("s_cbranch_scc1 L_g2_pub")
    a("s_mov_b32 s32, s47")
    a("s_mov_b32 s31, s48")
    for i in range(24):
        a(f"v_mov_b32 v{48+i}, v{176+i}")
    a("v_mov_b32 v3, v200")
    for q in range(4):
        if q < 3:
            a(f"s_cmp_lg_u32 s40, {q}")
            a(f"s_cbranch_scc1 L_g2_q{q+1}")
        conv_body([7 - q, q])
        if q < 3:
            a("s_branch L_g2_pub2")
            a.label(f"L_g2_q{q+1}")
    a.label("L_g2_pub2")
    a(f"v_mov_b32 v14, {101*128}")
    a("v_mov_b32 v15, 1")
    a("s_waitcnt vmcnt(0)")
    a("s_mov_b64 exec, 1")
    a("buffer_atomic_add v15, v14, s[36:39], 0 offen")
    a("s_mov_b64 exec, -1")
    a.label("L_g2_pub")
    if 'stamp' in FL: a("s_memtime s[68:69]")
    a("v_mov_b32 v14, s33")
    a("v_mov_b32 v15, 4")
    a("s_waitcnt vmcnt(0)")
    if 'stamp' in FL: a("s_memtime s[70:71]")
    a("s_mov_b64 exec, 1")
    a("buffer_atomic_add v15, v14, s[36:39], 0 offen")
    a("s_mov_b64 exec, -1")
    if 'hpf2' in FL: pf(range(NPF, 6))
    if 'stamp' in FL:
        a("s_waitcnt vmcnt(0)")
        a("s_memtime s[72:73]")
        a("s_waitcnt lgkmcnt(0)")
        a("s_add_u32 s76, s8, 0x8200000")
        a("s_addc_u32 s77, s9, 0")
        a("s_mov_b32 s78, 0x100000")
        a("s_mov_b32 s79, 0x00020000")
        a("s_lshl_b32 s74, s2, 9")
        a("s_lshl_b32 s75, s40, 6")
        a("s_add_u32 s74, s74, s75")
        a("v_mov_b32 v5, s74")
        for i in range(8):
            ii = min(i, 4)
            a(f"v_mov_b32 v6, s{64+2*ii}")
            a(f"v_mov_b32 v7, s{65+2*ii}")
            a(f"buffer_store_dwordx2 v[6:7], v5, s[76:79], 0 offen offset:{8*i}")
            a("s_nop 1")
    a.label("L_g2_end")
    a("s_endpgm")
    return desc("gemm2_kernel", 248, 100)

def gen_final(a):
    a.kernel_begin("final_kernel")
    a("s_cmp_ge_u32 s2, 288")
    a("s_cbranch_scc1 L_fin_end")
    a("s_load_dwordx2 s[4:5], s[0:1], 0")
    a("s_load_dwordx2 s[6:7], s[0:1], 80")
    a("s_load_dwordx2 s[8:9], s[0:1], 96")
    a("s_and_b32 s32, s2, 31")
    a("s_lshr_b32 s33, s2, 5")
    a("s_waitcnt lgkmcnt(0)")
    a.srd(12, 4, SZ_SD)
    a.srd(16, 6, SZ_SD)
    a.srd(20, 8, SZ_SD, WS_XN)
    a.srd(24, 8, SZ_SD, WS_Y2T)
    a.srd(28, 8, SZ_P, WS_P)
    a("v_lshrrev_b32 v1, 2, v0")
    a("v_and_b32 v2, 3, v0")
    a("v_lshlrev_b32 v3, 12, v1")
    a("v_lshlrev_b32 v4, 5, v2")
    a("v_add_u32 v3, v3, v4")
    a("s_lshl_b32 s34, s33, 18")
    a("s_lshl_b32 s35, s32, 7")
    a("s_add_u32 s34, s34, s35")
    a("v_add_u32 v3, s34, v3")
    a("buffer_load_dwordx4 v[8:11], v3, s[24:27], 0 offen")
    a("buffer_load_dwordx4 v[12:15], v3, s[24:27], 0 offen offset:16")
    a("v_mul_u32_u24 v5, 136, v1")
    a("v_add_u32 v5, v5, v4")
    a("v_lshrrev_b32 v6, 3, v0")
    a("v_and_b32 v7, 7, v0")
    a("s_lshl_b32 s34, s32, 6")
    a("v_add_u32 v16, s34, v6")
    a("v_lshrrev_b32 v20, 4, v16")
    a("v_mul_u32_u24 v20, 18432, v20")
    a("v_and_b32 v21, 15, v16")
    a("v_lshlrev_b32 v21, 4, v21")
    a("v_add_u32 v20, v20, v21")
    a("v_and_b32 v21, 1, v7")
    a("v_lshlrev_b32 v21, 10, v21")
    a("v_add_u32 v20, v20, v21")
    a("v_lshrrev_b32 v21, 1, v7")
    a("v_lshlrev_b32 v21, 8, v21")
    a("v_add_u32 v20, v20, v21")
    a("s_lshl_b32 s35, s33, 11")
    a("v_add_u32 v22, s35, v20")
    a(f"v_add_u32 v23, {2*18432}, v22")
    a("v_mul_u32_u24 v16, 1152, v16")
    a("v_lshlrev_b32 v17, 4, v7")
    a("s_lshl_b32 s35, s33, 7")
    a("v_add_u32 v17, s35, v17")
    a("v_add_u32 v16, v16, v17")
    a(f"v_add_u32 v17, {32*1152}, v16")
    a("v_lshlrev_b32 v18, 1, v16")
    a("v_lshlrev_b32 v19, 1, v17")
    for it in range(2):
        b = 24 + 40*it
        a(f"buffer_load_dwordx4 v[{b}:{b+3}], v{16+it}, s[12:15], 0 offen")
        a(f"buffer_load_dwordx4 v[{b+4}:{b+7}], v{22+it}, s[20:23], 0 offen")
        for ks in range(4):
            a(f"s_mov_b32 s36, {ks*S*D*4}")
            a(f"buffer_load_dwordx4 v[{b+8+8*ks}:{b+11+8*ks}], v{18+it}, s[28:31], s36 offen")
            a(f"buffer_load_dwordx4 v[{b+12+8*ks}:{b+15+8*ks}], v{18+it}, s[28:31], s36 offen offset:16")
    a("s_waitcnt vmcnt(20)")
    for m in range(4):
        a(f"ds_write_b64 v5, v[{8+2*m}:{9+2*m}] offset:{8*m}")
    a("s_waitcnt lgkmcnt(0)")
    a("s_barrier")
    a("v_mul_u32_u24 v20, 1088, v7")
    a("v_lshlrev_b32 v21, 1, v6")
    a("v_add_u32 v20, v20, v21")
    for it in range(2):
        for c in range(8):
            a(f"ds_read_u16 v{104+8*it+c}, v20 offset:{136*c + 64*it}")
    a("s_waitcnt vmcnt(0) lgkmcnt(0)")
    for it in range(2):
        b = 24 + 40*it
        for w in range(4):
            T = 120
            y0, y1 = 104 + 8*it + 2*w, 104 + 8*it + 2*w + 1
            unpack_lo(a, y0, y0); unpack_lo(a, y1, y1)
            unpack_lo(a, T, b+4+w); unpack_hi(a, T+1, b+4+w)
            a(f"v_mul_f32 v{T}, v{T}, v{y0}")
            a(f"v_mul_f32 v{T+1}, v{T+1}, v{y1}")
            a(f"v_cvt_pk_bf16_f32 v{T+2}, v{T}, v{T+1}")
            unpack_lo(a, T, T+2); unpack_hi(a, T+1, T+2)
            unpack_lo(a, T+3, b+w); unpack_hi(a, T+4, b+w)
            a(f"v_add_f32 v{T}, v{T}, v{T+3}")
            a(f"v_add_f32 v{T+1}, v{T+1}, v{T+4}")
            a(f"v_cvt_pk_bf16_f32 v{T+2}, v{T}, v{T+1}")
            unpack_lo(a, T, T+2); unpack_hi(a, T+1, T+2)
            p = b + 8 + 2*w
            a(f"v_add_f32 v{T+3}, v{p}, v{p+8}")
            a(f"v_add_f32 v{T+4}, v{p+1}, v{p+9}")
            a(f"v_add_f32 v{T+5}, v{p+16}, v{p+24}")
            a(f"v_add_f32 v{T+6}, v{p+17}, v{p+25}")
            a(f"v_add_f32 v{T+3}, v{T+3}, v{T+5}")
            a(f"v_add_f32 v{T+4}, v{T+4}, v{T+6}")
            a(f"v_cvt_pk_bf16_f32 v{T+2}, v{T+3}, v{T+4}")
            unpack_lo(a, T+3, T+2); unpack_hi(a, T+4, T+2)
            a(f"v_add_f32 v{T}, v{T}, v{T+3}")
            a(f"v_add_f32 v{T+1}, v{T+1}, v{T+4}")
            a(f"v_cvt_pk_bf16_f32 v{b+w}, v{T}, v{T+1}")
        a(f"buffer_store_dwordx4 v[{b}:{b+3}], v{16+it}, s[16:19], 0 offen")
    a.label("L_fin_end")
    a("s_endpgm")
    return desc("final_kernel", 128)

def main(path):
    hdr = open("parallel_sum__ssm_conv_h3__glu_gated_swiglu__prompt.s.ref").read().split("\n")
    head = [l for l in hdr if l.startswith(";") and "@launch" not in l and "Override launch" not in l and "grid=ceil" not in l]
    launches = ([] if FUSE else [f"; @launch kernel=front_kernel grid=({192 if KVT else 480},1,1) block=(256,1,1) lds=8704"]) + [
        f"; @launch kernel=gemm1_kernel grid=(256,1,1) block=(512,1,1) lds={NST*STAGE}",
        f"; @launch kernel=gemm2_kernel grid=(256,1,1) block=(512,1,1) lds={G2_LDS}",
    ]
    a = Asm()
    descs = ([] if FUSE else [gen_front(a)]) + [gen_gemm1(a), gen_gemm2(a)]
    out = "\n".join(head + launches) + "\n"
    out += '.amdgcn_target "amdgcn-amd-amdhsa--gfx950"\n.text\n'
    out += "\n".join(a.l) + "\n"
    out += '.section .rodata,"a"\n'
    for d in descs:
        out += ".p2align 6\n" + d
    open(path, "w").write(out)

if __name__ == "__main__":
    main(sys.argv[1] if len(sys.argv) > 1 else "parallel_sum__ssm_conv_h3__glu_gated_swiglu__prompt.s")
```
